```python
import torch

def _softmax(x, axis=-1):
    return torch.softmax(x, dim=axis)

def _gelu(x):
    return torch.nn.functional.gelu(x, approximate='tanh')

def _silu(x):
    return torch.nn.functional.silu(x)

def _sigmoid(x):
    return torch.sigmoid(x)

def _layernorm(x, axis=-1, eps=1e-05):
    m = x.mean(dim=axis, keepdim=True)
    v = x.var(dim=axis, keepdim=True, unbiased=False)
    return (x - m) / torch.sqrt(v + eps)

def _scatter_add(tgt, idx, src, axis=0):
    return tgt.clone().index_add_(axis, idx, src)

def _segment_sum(src, seg, n):
    out = torch.zeros((n,) + src.shape[1:], dtype=src.dtype)
    return out.index_add_(0, seg, src)

def _pad(x, pw):
    flat = tuple((v for pair in reversed(pw) for v in pair))
    return torch.nn.functional.pad(x, flat)
kernel_name = 'adaLN_cond__grouped_kv_mqa__dense_activation_silu__prompt'

def setup_inputs():

    _w = lambda a: (lambda t: t.to(torch.bfloat16) if t.is_floating_point() else t)(torch.as_tensor(a))

    def _A_setup():
        B, S, D, H = (1, 2048, 1024, 32)
        Dh = D // H
        return {'x': _w((lambda *s: torch.randn(*s, dtype=torch.bfloat16) * 0.05)(B, S, D)), 'wq': _w((lambda *s: torch.randn(*s, dtype=torch.bfloat16) * 0.05)(D, H * Dh)), 'wk': _w((lambda *s: torch.randn(*s, dtype=torch.bfloat16) * 0.05)(D, Dh)), 'wv': _w((lambda *s: torch.randn(*s, dtype=torch.bfloat16) * 0.05)(D, Dh)), 'wo': _w((lambda *s: torch.randn(*s, dtype=torch.bfloat16) * 0.05)(H * Dh, D))}
    _A_in = _A_setup()

    def _B_setup():
        B, S, D, F = (1, 2048, 1024, 3584)
        return {'x': _w((lambda *s: torch.randn(*s, dtype=torch.bfloat16) * 0.05)(B, S, D)), 'w1': _w((lambda *s: torch.randn(*s, dtype=torch.bfloat16) * 3.2)(D, F) * D ** (-0.5)), 'w2': _w((lambda *s: torch.randn(*s, dtype=torch.bfloat16) * 0.8)(F, D) * F ** (-0.5))}
    _B_in = _B_setup()
    return {'A_x': _A_in['x'], 'A_wq': _A_in['wq'], 'A_wk': _A_in['wk'], 'A_wv': _A_in['wv'], 'A_wo': _A_in['wo'], 'B_x': _B_in['x'], 'B_w1': _B_in['w1'], 'B_w2': _B_in['w2'], 'c': _w((lambda *s: torch.randn(*s, dtype=torch.bfloat16) * 0.1)(1, 1024) * 8.0), 'w_mod': _w((lambda *s: torch.randn(*s, dtype=torch.bfloat16) * 0.1)(1024, 6 * 1024) * 1024 ** (-0.5) * 8.0)}

def reference(A_x, A_wq, A_wk, A_wv, A_wo, B_x, B_w1, B_w2, c, w_mod):

    def _A_ref(x, wq, wk, wv, wo):
        B, S, D = x.shape
        H = 32
        Dh = D // H
        q = (lambda x, *d: x.permute(*d))((x @ wq).reshape(B, S, H, Dh), 0, 2, 1, 3)
        k = x @ wk
        v = x @ wv
        scores = torch.einsum('bhqd,bkd->bhqk', q, k) * Dh ** (-0.5)
        p = _softmax(scores, axis=-1)
        o = torch.einsum('bhqk,bkd->bhqd', p, v)
        return (lambda x, *d: x.permute(*d))(o, 0, 2, 1, 3).reshape(B, S, H * Dh) @ wo

    def _B_ref(x, w1, w2):
        h = torch.einsum('bsd,df->bsf', x, w1)
        h = _silu(h)
        out = torch.einsum('bsf,fd->bsd', h, w2)
        return out
    x = A_x
    mod = (_silu(c) @ w_mod).reshape(c.shape[0], 6, 1, -1)
    sa, ca, ga, sb, cb, gb = (mod[:, 0].clone(), mod[:, 1].clone(), mod[:, 2].clone(), mod[:, 3].clone(), mod[:, 4].clone(), mod[:, 5].clone())
    h = _layernorm(x, axis=-1) * (1 + ca) + sa
    x = x + ga * _A_ref(h, A_wq, A_wk, A_wv, A_wo)
    h = _layernorm(x, axis=-1) * (1 + cb) + sb
    x = x + gb * _B_ref(h, B_w1, B_w2)
    return x
```

```python
import sys
def gen(name, body, waves_per_simd, iters=200, vgprs=128):
    threads = 256 * waves_per_simd
    nblk = 256
    if threads > 1024:
        nblk = 256 * threads // 1024; threads = 1024
    s = f"""; @launch grid=({nblk},1,1) block=({threads},1,1) lds=0
.amdgcn_target "amdgcn-amd-amdhsa--gfx950"
.text
.globl mb_kernel
.p2align 8
.type mb_kernel,@function
mb_kernel:
  s_load_dwordx2 s[4:5], s[0:1], 0
  s_load_dwordx2 s[6:7], s[0:1], 8
  s_waitcnt lgkmcnt(0)
  v_lshlrev_b32 v1, 4, v0
"""
    for i in range(16):
        s += f"  global_load_dwordx4 v[{8+4*i}:{11+4*i}], v1, s[4:5] offset:{i*16}\n"
    s += "  s_waitcnt vmcnt(0)\n"
    for i in range(72, vgprs):
        s += f"  v_mov_b32 v{i}, 0\n"
    s += f"""  s_barrier
  s_memtime s[10:11]
  s_memrealtime s[14:15]
  s_mov_b32 s8, {iters}
  s_waitcnt lgkmcnt(0)
.p2align 6
L_loop:
{body}
  s_sub_u32 s8, s8, 1
  s_cmp_lg_u32 s8, 0
  s_cbranch_scc1 L_loop
  s_nop 15
  s_memtime s[12:13]
  s_memrealtime s[16:17]
  s_waitcnt lgkmcnt(0)
  s_sub_u32 s12, s12, s10
  s_sub_u32 s16, s16, s14
  v_mov_b32 v4, s12
  v_mov_b32 v5, s16
  s_lshl_b32 s3, s2, 7
  v_lshrrev_b32 v3, 6, v0
  v_lshlrev_b32 v3, 3, v3
  v_add_u32 v3, s3, v3
  global_store_dwordx2 v3, v[4:5], s[6:7]
  s_waitcnt vmcnt(0)
  s_endpgm
.section .rodata,"a"
.p2align 6
.amdhsa_kernel mb_kernel
  .amdhsa_next_free_vgpr {vgprs}
  .amdhsa_next_free_sgpr 32
  .amdhsa_accum_offset {vgprs}
  .amdhsa_group_segment_fixed_size 0
  .amdhsa_kernarg_size 16
  .amdhsa_user_sgpr_count 2
  .amdhsa_user_sgpr_kernarg_segment_ptr 1
  .amdhsa_system_sgpr_workgroup_id_x 1
.end_amdhsa_kernel
"""
    open(name, "w").write(s)

def rep(fmt, n, base=72, src=8):
    return "\n".join(fmt.format(d=base + (i % 16), s=src + (i % 16), s2=src + 16 + (i % 16), d2=base+2*(i%8), ss=src+2*(i%8), ss2=src+16+2*(i%8)) for i in range(n))

tests = {
 "exp": rep("  v_exp_f32 v{d}, v{s}", 64),
 "add": rep("  v_add_f32 v{d}, v{s}, v{s2}", 64),
 "fma": rep("  v_fma_f32 v{d}, v{s}, v{s2}, v{s}", 64),
 "cvt": rep("  v_cvt_pk_bf16_f32 v{d}, v{s}, v{s2}", 64),
 "pkadd": rep("  v_pk_add_f32 v[{d2}:{d2}+1], v[{ss}:{ss}+1], v[{ss2}:{ss2}+1]", 64),
 "pkfma": rep("  v_pk_fma_f32 v[{d2}:{d2}+1], v[{ss}:{ss}+1], v[{ss2}:{ss2}+1], v[{ss}:{ss}+1]", 64),
 "max3": rep("  v_max3_f32 v{d}, v{s}, v{s2}, v{s}", 64),
 "perm": rep("  v_perm_b32 v{d}, v{s}, v{s2}, v{s}", 64),
 "dot2": rep("  v_dot2_f32_bf16 v{d}, v{s}, v{s2}, v{s}", 64),
 "dot2c": rep("  v_dot2c_f32_bf16 v{d}, v{s}, v{s2}", 64),
}
tests["expadd"] = "\n".join(f"  v_exp_f32 v{72+(i%8)}, v{8+(i%16)}\n  v_add_f32 v{80+(i%8)}, v{8+(i%16)}, v{24+(i%16)}" for i in range(32))
for nm, body in (tests.items() if __name__ == '__main__' else []):
    for w in (1, 2, 4):
        gen(f"valu_{nm}_w{w}.s", body, w)
```

```python
from gen_valu import gen
import sys
ITERS=int(sys.argv[1]) if len(sys.argv)>1 else 40
T = {}
def m32(i):
    a = 8 + 4*(i % 8); b = 40 + 4*(i % 8); c = 72 + 16*(i % 3)
    return f"  v_mfma_f32_32x32x16_bf16 v[{c}:{c+15}], v[{a}:{a+3}], v[{b}:{b+3}], v[{c}:{c+15}]"
def m16(i):
    a = 8 + 4*(i % 8); b = 40 + 4*((i//2) % 8); c = 72 + 4*(i % 12)
    return f"  v_mfma_f32_16x16x32_bf16 v[{c}:{c+3}], v[{a}:{a+3}], v[{b}:{b+3}], v[{c}:{c+3}]"
def s32(i):
    a = 8 + 4*(i % 8); b = 40 + 8*(i % 4); c = 72 + 16*(i % 3)
    return f"  v_smfmac_f32_32x32x32_bf16 v[{c}:{c+15}], v[{a}:{a+3}], v[{b}:{b+7}], v120"
def s16(i):
    a = 8 + 4*(i % 8); b = 40 + 8*(i % 4); c = 72 + 4*(i % 12)
    return f"  v_smfmac_f32_16x16x64_bf16 v[{c}:{c+3}], v[{a}:{a+3}], v[{b}:{b+7}], v120"
def m32same(i):
    a = 8 ; b = 40 + 4*(i % 8); c = 72 + 16*(i % 3)
    return f"  v_mfma_f32_32x32x16_bf16 v[{c}:{c+15}], v[{a}:{a+3}], v[{b}:{b+3}], v[{c}:{c+15}]"
def m32sameB(i):
    a = 8 + 4*(i % 8); b = 40; c = 72 + 16*(i % 3)
    return f"  v_mfma_f32_32x32x16_bf16 v[{c}:{c+15}], v[{a}:{a+3}], v[{b}:{b+3}], v[{c}:{c+15}]"
def m32chain(i):
    a = 8 + 4*(i % 8); b = 40 + 4*(i % 8); c = 72
    return f"  v_mfma_f32_32x32x16_bf16 v[{c}:{c+15}], v[{a}:{a+3}], v[{b}:{b+3}], v[{c}:{c+15}]"
def m16chain(i):
    a = 8 + 4*(i % 8); b = 40 + 4*((i//2) % 8); c = 72
    return f"  v_mfma_f32_16x16x32_bf16 v[{c}:{c+3}], v[{a}:{a+3}], v[{b}:{b+3}], v[{c}:{c+3}]"
def m32c0(i):
    a = 8 + 4*(i % 8); b = 40 + 4*(i % 8); c = 72 + 16*(i % 3)
    return f"  v_mfma_f32_32x32x16_bf16 v[{c}:{c+15}], v[{a}:{a+3}], v[{b}:{b+3}], 0"
pre = "  v_mov_b32 v120, 0xdddddddd\n"
T["m32"] = "\n".join(m32(i) for i in range(24))
T["m16"] = "\n".join(m16(i) for i in range(48))
T["s32"] = pre + "\n".join(s32(i) for i in range(24))
T["s16"] = pre + "\n".join(s16(i) for i in range(48))
T["m32sameA"] = "\n".join(m32same(i) for i in range(24))
T["m32sameB"] = "\n".join(m32sameB(i) for i in range(24))
T["m32chain"] = "\n".join(m32chain(i) for i in range(24))
T["m16chain"] = "\n".join(m16chain(i) for i in range(48))
T["m32c0"] = "\n".join(m32c0(i) for i in range(24))
T["exp"] = "\n".join(f"  v_exp_f32 v{72+i%32}, v{8+i%64}" for i in range(96))
T["cvt"] = "\n".join(f"  v_cvt_pk_bf16_f32 v{72+i%32}, v{8+i%64}, v{8+(i+1)%64}" for i in range(192))
T["nop"] = "\n".join(f"  s_nop 7" for i in range(96))
for nm, body in T.items():
    gen(f"pw_{nm}.s", body, 1, iters=ITERS)
print(" ".join(T.keys()))
```

```python
from gen_valu import gen
import sys
ITERS=int(sys.argv[1]) if len(sys.argv)>1 else 8
def tile(Sc, Sn, mode):
    mf = [f"  v_mfma_f32_32x32x16_bf16 v[{Sn}:{Sn+15}], v[8:11], v[16:19], v[56:71]",
          f"  v_mfma_f32_32x32x16_bf16 v[{Sn}:{Sn+15}], v[12:15], v[20:23], v[{Sn}:{Sn+15}]"]
    q16 = [f"  v_mfma_f32_16x16x32_bf16 v[{Sn+4*i}:{Sn+4*i+3}], v[{8+4*(i%2)}:{11+4*(i%2)}], v[{16+4*(i//2)}:{19+4*(i//2)}], v[56:59]" for i in range(4)]
    pv0 = f"  v_smfmac_f32_32x32x32_bf16 v[112:127], v[24:27], v[{Sc}:{Sc+7}], v40"
    sm0 = f"  v_smfmac_f32_16x16x64_bf16 v[36:39], v[32:35], v[{Sc}:{Sc+7}], v40"
    pvp = f"  v_smfmac_f32_32x32x32_bf16 v[112:127], v[28:31], v[{Sn+8}:{Sn+15}], v40"
    smp = f"  v_smfmac_f32_16x16x64_bf16 v[36:39], v[32:35], v[{Sn+8}:{Sn+15}], v40"
    p16 = lambda S, j, o: f"  v_smfmac_f32_16x16x64_bf16 v[{112+4*o}:{115+4*o}], v[{24+4*j}:{27+4*j}], v[{S}:{S+7}], v40"
    e = [f"  v_exp_f32 v{Sc+i}, v{Sc+i}" for i in range(16)]
    if mode in ("base", "ones"):   return e[0:2] + [pvp] + e[2:5] + [smp] + e[5:7] + [mf[0]] + e[7:10] + [mf[1]] + e[10:13] + [pv0] + e[13:16] + [sm0]
    if mode == "nosum":  return e[0:2] + [pvp] + e[2:7] + [mf[0]] + e[7:10] + [mf[1]] + e[10:13] + [pv0] + e[13:16]
    if mode == "noexp":  return [pvp, smp, mf[0], mf[1], pv0, sm0]
    if mode == "all16":
        return e[0:2] + [p16(Sn+8,0,2)] + e[2:3] + [p16(Sn+8,1,3)] + e[3:5] + [smp] + e[5:6] + [q16[0]] + e[6:7] + [q16[1]] + e[7:9] + [q16[2]] + e[9:10] + [q16[3]] + e[10:12] + [p16(Sc,0,0)] + e[12:14] + [p16(Sc,1,1)] + e[14:16] + [sm0]
    if mode == "dense":
        cv = [f"  v_cvt_pk_bf16_f32 v{104+i}, v{Sc+2*i}, v{Sc+2*i+1}" for i in range(8)]
        d0 = "  v_mfma_f32_32x32x16_bf16 v[112:127], v[24:27], v[104:107], v[112:127]"
        d1 = "  v_mfma_f32_32x32x16_bf16 v[112:127], v[28:31], v[108:111], v[112:127]"
        s1 = "  v_smfmac_f32_16x16x64_bf16 v[36:39], v[32:35], v[104:111], v40"
        return e[0:2] + [d1] + e[2:4] + [s1] + e[4:7] + [mf[0]] + e[7:9] + cv[0:2] + [mf[1]] + cv[2:4] + e[9:12] + [d0] + e[12:16] + cv[4:8]
modes = ("base", "ones", "nosum", "noexp", "all16", "dense")
for mode in modes:
    pre = "  v_mov_b32 v40, 0xdddddddd\n"
    if mode != "base":
        pre += "  v_and_b32 v41, 7, v0\n  v_mov_b32 v42, 0x3f803f80\n  v_cmp_eq_u32 vcc, 0, v41\n  s_nop 1\n  v_cndmask_b32 v32, 0, v42, vcc\n  v_cndmask_b32 v33, 0, v42, vcc\n  v_cmp_eq_u32 vcc, 4, v41\n  s_nop 1\n  v_cndmask_b32 v34, 0, v42, vcc\n  v_cndmask_b32 v35, 0, v42, vcc\n"
    body = pre + "\n".join(sum([tile(72, 88, mode) + tile(88, 72, mode) for _ in range(4)], []))
    gen(f"attn4_{mode}.s", body, 2, iters=ITERS)
print(" ".join(modes))
```

```python
import re

class Kern:
    def __init__(self, name, vgprs, sgprs=96, agprs=0):
        import os
        if os.environ.get('TIMING', '0') != '0': vgprs = 256
        self.name = name; self.lines = []; self.vgprs = vgprs; self.sgprs = sgprs; self.agprs = agprs
        self.lblc = 0
    def __call__(self, s):
        for ln in s.split("\n"):
            ln = ln.strip()
            if ln: self.lines.append(ln)
    def label(self, base):
        self.lblc += 1
        return f"L_{self.name}_{base}_{self.lblc}"
    def text(self):
        out = [f".globl {self.name}", ".p2align 8", f".type {self.name},@function", f"{self.name}:"]
        for ln in self.lines:
            out.append(ln if ln.endswith(":") or ln.startswith(".") else "  " + ln)
        return "\n".join(out) + "\n"
    def desc(self):
        acc = (self.vgprs + 3) // 4 * 4
        nfv = acc + self.agprs if self.agprs else self.vgprs
        return f""".p2align 6
.amdhsa_kernel {self.name}
  .amdhsa_next_free_vgpr {nfv}
  .amdhsa_next_free_sgpr {self.sgprs}
  .amdhsa_accum_offset {acc}
  .amdhsa_group_segment_fixed_size 0
  .amdhsa_kernarg_size 104
  .amdhsa_user_sgpr_count 2
  .amdhsa_user_sgpr_kernarg_segment_ptr 1
  .amdhsa_system_sgpr_workgroup_id_x 1
  .amdhsa_float_denorm_mode_32 3
  .amdhsa_float_denorm_mode_16_64 3
.end_amdhsa_kernel
"""

def vr(b, n=1):
    return f"v{b}" if n == 1 else f"v[{b}:{b+n-1}]"
def sr(b, n=1):
    return f"s{b}" if n == 1 else f"s[{b}:{b+n-1}]"

_REG = re.compile(r"^-?\|?(abs\()?([vsa])(\d+|\[(\d+):(\d+)\])\)?\|?$")
def regs_of(op):
    op = op.strip()
    if op in ("vcc", "exec", "m0", "scc"): return {op}
    if op in ("vcc_lo", "vcc_hi"): return {"vcc"}
    if op in ("exec_lo", "exec_hi"): return {"exec"}
    m = _REG.match(op)
    if not m: return set()
    kind = m.group(2)
    if m.group(4) is not None:
        return {f"{kind}{i}" for i in range(int(m.group(4)), int(m.group(5)) + 1)}
    return {f"{kind}{int(m.group(3))}"}

TRANS = ("v_exp_f32", "v_log_f32", "v_rcp_f32", "v_rsq_f32", "v_sqrt_f32", "v_sin_f32", "v_cos_f32")
def split_ops(s):
    ops = []; depth = 0; cur = ""
    for ch in s:
        if ch in "[(": depth += 1
        if ch in "])": depth -= 1
        if ch == "," and depth == 0: ops.append(cur.strip()); cur = ""
        else: cur += ch
    if cur.strip(): ops.append(cur.strip())
    return ops

class Ins:
    def __init__(self, text):
        self.text = text
        t = text.split(";")[0].strip()
        p = t.split(None, 1)
        self.mn = p[0]
        rest = p[1] if len(p) > 1 else ""
        ops = split_ops(rest)
        if ops:
            last = ops[-1].split()
            self.mods = last[1:]
            ops[-1] = last[0]
        else: self.mods = []
        self.ops = ops
        mn = self.mn
        self.is_mfma = mn.startswith("v_mfma") or mn.startswith("v_smfmac")
        self.is_valu = mn.startswith("v_") and not self.is_mfma
        self.is_trans = any(mn.startswith(x) for x in TRANS)
        self.is_vmem = mn.startswith(("buffer_", "global_", "flat_"))
        self.is_ds = mn.startswith("ds_")
        self.is_salu = mn.startswith("s_")
        self.is_dpp = "dpp" in mn or any(m.startswith(("row_", "quad_perm")) for m in self.mods)
        self.is_perml = mn.startswith("v_permlane")
        R = [regs_of(o) for o in ops]
        self.dst = set(); self.src = set(); self.srcA = set(); self.srcB = set(); self.srcC = set()
        self.store_data = set()
        if self.is_mfma:
            self.dst = R[0]; self.srcA = R[1]; self.srcB = R[2]
            if mn.startswith("v_smfmac"):
                self.srcC = R[0]; self.srcB = R[2] | R[3]
            else: self.srcC = R[3]
            self.src = self.srcA | self.srcB | self.srcC
            self.passes = 8 if "32x32" in mn else 4
        elif self.is_valu:
            if mn.startswith("v_cmp"):
                self.dst = R[0]; self.src = set().union(*R[1:])
                if mn.startswith("v_cmpx"): self.dst |= {"exec"}
            elif mn.startswith("v_readfirstlane") or mn.startswith("v_readlane"):
                self.dst = R[0]; self.src = set().union(*R[1:])
            elif self.is_perml and "swap" in mn:
                self.dst = R[0] | R[1]; self.src = R[0] | R[1]
            elif mn.startswith(("v_add_co", "v_addc_co", "v_sub_co", "v_subb_co")):
                self.dst = R[0] | R[1]; self.src = set().union(*R[2:])
            elif mn == "v_nop": pass
            else:
                self.dst = R[0]; self.src = set().union(*R[1:]) if len(R) > 1 else set()
                if mn.startswith(("v_fmac", "v_dot2c", "v_pk_fmac")) or self.is_dpp: self.src |= R[0]
                if mn.startswith("v_cndmask") and len(R) == 3: self.src |= {"vcc"}
        elif self.is_vmem:
            lds = "lds" in self.mods or "_lds_" in mn
            if "store" in mn:
                if mn.startswith("buffer_"): self.store_data = R[0]; self.src = set().union(*R)
                else: self.store_data = R[1]; self.src = set().union(*R)
            elif "atomic" in mn:
                self.src = set().union(*R)
                if "sc0" in self.mods: self.dst = R[0]
            elif mn in ("buffer_inv", "buffer_wbl2"): pass
            elif lds:
                self.src = set().union(*R) | {"m0"}
            else:
                self.dst = R[0]; self.src = set().union(*R[1:])
            self.lds = lds
        elif self.is_ds:
            if mn.startswith(("ds_read", "ds_bpermute", "ds_permute", "ds_swizzle")) or "_rtn" in mn:
                self.dst = R[0]; self.src = set().union(*R[1:])
            else: self.src = set().union(*R)
        elif self.is_salu:
            if mn.startswith(("s_cmp", "s_bitcmp", "s_cbranch", "s_branch", "s_waitcnt", "s_barrier", "s_nop", "s_endpgm", "s_setprio", "s_sleep")):
                self.src = set().union(*R) if R else set()
            else:
                self.dst = R[0] if R else set(); self.src = set().union(*R[1:]) if len(R) > 1 else set()
                if "saveexec" in mn: self.dst |= {"exec"}
    def states(self):
        if self.mn == "s_nop": return int(self.ops[0], 0) + 1
        return 1

def need(p, c):
    n = 0
    vd = {r for r in p.dst if r[0] in "va" and r not in ("vcc",)}
    sd = {r for r in p.dst if (r[0] == "s" and r != "scc") or r == "vcc"}
    if p.is_mfma:
        P = p.passes
        big = {4: 8, 8: 12}[P]
        if c.is_mfma:
            if vd & (c.srcA | c.srcB): n = max(n, big)
            if vd & c.srcC:
                if c.srcC == p.dst and c.passes == P: pass
                else: n = max(n, {4: 6, 8: 10}[P])
            elif vd & c.dst: n = max(n, {4: 6, 8: 10}[P])
        elif c.is_valu or c.is_vmem or c.is_ds:
            if vd & (c.src | c.dst): n = max(n, big)
        if (c.is_valu) and (p.srcC & c.dst): n = max(n, {4: 3, 8: 7}[P])
    if p.is_valu:
        if c.is_mfma and (vd & c.src): n = max(n, 2)
        if c.is_mfma and "exec" in p.dst: n = max(n, 4)
        if p.is_trans and c.is_valu and not c.is_trans and (vd & c.src): n = max(n, 1)
        if c.is_perml and (vd & c.src): n = max(n, 2)
        if c.is_dpp and (vd & c.src): n = max(n, 2)
        if c.is_dpp and "exec" in p.dst: n = max(n, 5)
        if c.mn.startswith(("v_readfirstlane", "v_readlane")) and (vd & c.src): n = max(n, 1)
        if c.is_vmem and (sd & c.src): n = max(n, 5)
        if c.is_valu and (sd & c.src): n = max(n, 2)
        if ("sdwa" in p.mn or any(m.startswith("op_sel") for m in p.mods)) and c.is_valu and (vd & c.src): n = max(n, 1)
    if p.is_salu and "m0" in p.dst and c.is_vmem and getattr(c, "lds", False): n = max(n, 1)
    if p.is_vmem and p.store_data and len(p.store_data) >= 3:
        if c.is_valu and (p.store_data & c.dst): n = max(n, 2)
        elif (p.store_data & c.dst): n = max(n, 1)
    return n

def check(kern, window=24):
    L = kern.lines
    ins = []; labels = {}
    for ln in L:
        if ln.endswith(":"): labels[ln[:-1]] = len(ins); continue
        if ln.startswith(".") or ln.startswith(";"): continue
        ins.append(Ins(ln))
    def succ(i):
        x = ins[i]
        if x.mn == "s_endpgm": return []
        if x.mn == "s_branch": return [labels[x.ops[0]]]
        if x.mn.startswith("s_cbranch"): return [i + 1, labels[x.ops[0]]]
        return [i + 1]
    errs = []
    for i, p in enumerate(ins):
        if not (p.is_mfma or p.is_valu or (p.is_salu and "m0" in p.dst) or (p.is_vmem and p.store_data)): continue
        stack = [(j, 0) for j in succ(i)]
        seen = {}
        while stack:
            j, d = stack.pop()
            if j >= len(ins) or d >= window: continue
            if j in seen and seen[j] <= d: continue
            seen[j] = d
            c = ins[j]
            n = need(p, c)
            if n > d: errs.append(f"{kern.name}: need {n} have {d}: [{p.text}] -> [{c.text}]")
            for k in succ(j): stack.append((k, d + c.states()))
    mv = ms = ma = -1
    for x in ins:
        for r in x.dst | x.src:
            if r in ("vcc", "exec", "m0", "scc"): continue
            n = int(r[1:])
            if r[0] == "v": mv = max(mv, n)
            elif r[0] == "s": ms = max(ms, n)
            elif r[0] == "a": ma = max(ma, n)
    if mv >= kern.vgprs: errs.append(f"{kern.name}: uses v{mv} but vgprs={kern.vgprs}")
    if ms >= kern.sgprs: errs.append(f"{kern.name}: uses s{ms} but sgprs={kern.sgprs}")
    if ma >= kern.agprs and ma >= 0: errs.append(f"{kern.name}: uses a{ma} but agprs={kern.agprs}")
    return errs, (mv, ms, ma, len(ins))
```

```python
from asmlib import Kern, vr, sr, check
NAME = "adaLN_cond__grouped_kv_mqa__dense_activation_silu__prompt"
A_X, A_WQ, A_WK, A_WV, A_WO, B_X, B_W1, B_W2, A_C, A_WMOD, A_OUT, A_DBG, A_WS = [8*i for i in range(13)]
MB = 1 << 20
WS_MOD = 0
WS_MODP = 65536
WS_SC = 196608
WS_ST1 = 262144
WS_ST2 = 524288
WS_H1 = 1*MB
WS_KV = 5*MB
WS_O = 6*MB
WS_X1 = 10*MB
WS_H2 = 14*MB
WS_U = 18*MB
WS_WQP = 32*MB
WS_WOP = 34*MB
WS_W1P = 36*MB
WS_W2P = 43*MB
SZ_ACT = 4*MB
SZ_U = 2048*3584*2
LOG2E = 1.4426950408889634
def f2u(x):
    import struct
    return struct.unpack("<I", struct.pack("<f", x))[0]

def srd_arg(k, d, tmp, argoff, size):
    k(f"s_mov_b32 s{d}, s{tmp}\ns_and_b32 s{d+1}, s{tmp+1}, 0xffff\ns_mov_b32 s{d+2}, {size}\ns_mov_b32 s{d+3}, 0x20000")
def srd_ws(k, d, ws, off, size):
    k(f"s_add_u32 s{d}, s{ws}, {off}\ns_addc_u32 s{d+1}, s{ws+1}, 0\ns_and_b32 s{d+1}, s{d+1}, 0xffff\ns_mov_b32 s{d+2}, {size}\ns_mov_b32 s{d+3}, 0x20000")

def xlane_sum(k, v, t, op="v_add_f32"):
    k(f"v_mov_b32 v{t}, v{v}\ns_nop 1\nv_permlane16_swap_b32 v{v}, v{t}\n{op} v{v}, v{v}, v{t}")
    k(f"v_mov_b32 v{t}, v{v}\ns_nop 1\nv_permlane32_swap_b32 v{v}, v{t}\n{op} v{v}, v{v}, v{t}")

def round_bf16(k, v):
    k(f"v_cvt_pk_bf16_f32 v{v}, v{v}, v{v}\nv_and_b32 v{v}, 0xffff0000, v{v}")


import os
TIMING = os.environ.get("TIMING", "0") != "0"
TINS = "s_memtime" if os.environ.get("TIMING") == "2" else "s_memrealtime"
WS_TIME = 56*MB
TS0 = 70
def stamp(k, i):
    if TIMING: k(f"{TINS} s[{TS0+2*i}:{TS0+2*i+1}]")
def stamps_out(k, kidx, n, wsreg=10, vtmp=0):
    if not TIMING: return
    k(f"""s_waitcnt vmcnt(0) lgkmcnt(0)
    {TINS} s[{TS0+2*n}:{TS0+2*n+1}]
    s_add_u32 s66, s{wsreg}, {WS_TIME + kidx*262144}
    s_addc_u32 s67, s{wsreg+1}, 0
    s_lshl_b32 s94, s2, 9
    s_lshl_b32 s95, s42, 6
    s_add_u32 s94, s94, s95
    v_mov_b32 v{vtmp}, s94
    s_waitcnt lgkmcnt(0)""")
    for i in range(n+1):
        k(f"v_mov_b32 v{vtmp+1}, s{TS0+2*i}\nglobal_store_dword v{vtmp}, v{vtmp+1}, s[66:67] offset:{4*i}")
    k("s_waitcnt vmcnt(0)")

PRE_AT = int(os.environ.get("PRE_AT", "4"))
WT = "sc0 sc1"
ORD = {"nat": (16, 8, 4), "split": (8, 4, 16), "att": (16, 4, 8)}

def pack_addr(k, order, pitch, vl, vsrc, vtr, vt, stmp):
    a, b, sel = ORD[order]
    k(f"""v_lshrrev_b32 v{vsrc}, 3, v{vl}
    s_mov_b32 s{stmp}, {pitch}
    v_mul_lo_u32 v{vsrc}, v{vsrc}, s{stmp}
    v_and_b32 v{vt}, 7, v{vl}
    v_lshl_add_u32 v{vsrc}, v{vt}, 4, v{vsrc}
    v_bfe_u32 v{vtr}, v{vl}, 2, 2
    v_bfe_u32 v{vt}, v{vl}, 4, 1
    v_lshl_add_u32 v{vtr}, v{vt}, {b.bit_length()-1}, v{vtr}
    v_lshrrev_b32 v{vt}, 5, v{vl}
    v_lshl_add_u32 v{vtr}, v{vt}, {a.bit_length()-1}, v{vtr}
    v_lshlrev_b32 v{vtr}, 7, v{vtr}
    v_and_b32 v{vt}, 3, v{vl}
    v_lshl_add_u32 v{vtr}, v{vt}, 3, v{vtr}""")

def pack_issue(k, srd, pitch, vsrc, s_src, s_lds, stmp):
    for i in range(4):
        k(f"s_add_u32 m0, s{s_lds}, {1024*i}\ns_add_u32 s{stmp}, s{s_src}, {8*i*pitch}")
        k(f"buffer_load_dwordx4 v{vsrc}, s[{srd}:{srd+3}], s{stmp} offen lds")

def pack_read(k, order, vaddr, F):
    sel = ORD[order][2]
    for nt in range(4):
        k(f"ds_read_b64_tr_b16 {vr(F+4*nt,2)}, v{vaddr} offset:{32*nt}")
        k(f"ds_read_b64_tr_b16 {vr(F+4*nt+2,2)}, v{vaddr} offset:{32*nt+128*sel}")

def wg_map(k, mode, rb, ct, tmp=39):
    lr = {"R2": 1, "R4": 2, "R8": 3, "R16": 4}[mode]
    k(f"""s_and_b32 s{rb}, s2, 7
    s_lshr_b32 s3, s2, 3
    s_and_b32 s{ct}, s{rb}, {(1 << (lr-1)) - 1}
    s_lshl_b32 s{ct}, s{ct}, {5-lr}
    s_lshr_b32 s{rb}, s{rb}, {lr-1}
    s_lshl_b32 s{rb}, s{rb}, {lr}
    s_and_b32 s{tmp}, s3, {(1 << lr) - 1}
    s_or_b32 s{rb}, s{rb}, s{tmp}
    s_lshr_b32 s{tmp}, s3, {lr}
    s_or_b32 s{ct}, s{ct}, s{tmp}""")

def interleave(mf, other, start=0, step=1):
    slots = [[] for _ in mf]
    for i, o in enumerate(other):
        slots[min(start + int(i*step), len(mf)-1)].append(o)
    out = []
    for m, s in zip(mf, slots):
        out.append(m); out += s
    return out

class Gemm:
    def __init__(self, k, name, KB, KS, NS, BN, base=0):
        self.k, self.name, self.KB, self.KS, self.NS, self.BN, self.base = k, name, KB, KS, NS, BN, base
        self.S = KB // KS
        self.ASZ = KS * 8192
        self.BSZ = KS * BN * 64
        self.STG = self.ASZ + self.BSZ
        self.LDS = self.STG * NS
        self.NT = BN // 32; self.MT = 4
        self.bper = self.BSZ // 4
        self.nb = (self.bper + 1023) // 1024
        self.d = 2*KS + self.nb
    def L(self, s): return f"L_{self.name}_{s}"
    def slot_adv(self):
        return [f"s_add_u32 s53, s53, {self.STG}", f"s_cmp_eq_u32 s53, {self.base+self.LDS}", f"s_cselect_b32 s53, {self.base}, s53"]
    def issue(self):
        k = self.k
        k("s_add_u32 m0, s53, s46\ns_add_u32 s54, s53, s49")
        for i in range(2*self.KS):
            k(f"buffer_load_dwordx4 v3, s[12:15], s45 offen offset:{1024*i} lds")
        k(f"s_mov_b32 m0, s54\ns_add_u32 s45, s45, {self.ASZ}")
        for i in range(self.nb):
            half = (i+1)*1024 > self.bper
            if half: k("s_mov_b32 exec_hi, 0")
            k(f"buffer_load_dwordx4 v3, s[16:19], s47 offen offset:{1024*i} lds")
            if half: k("s_mov_b32 exec_hi, -1")
        k(f"s_add_u32 s47, s47, {self.BSZ}")
        k("\n".join(self.slot_adv()))
    def loader(self, tail_hooks=None):
        k, S, NS, d = self.k, self.S, self.NS, self.d
        tail_hooks = tail_hooks or {}
        k(f"""s_sub_u32 s43, s42, 4
        s_mul_i32 s45, s40, {self.KB*8192}
        s_mul_i32 s46, s43, {2*self.KS*1024}
        s_add_u32 s45, s45, s46
        s_mul_i32 s47, s41, {self.KB*self.BN*64}
        s_mul_i32 s49, s43, {self.bper}
        s_add_u32 s47, s47, s49
        s_add_u32 s49, s49, {self.ASZ}
        s_mov_b32 s53, {self.base}""")
        issued = 0
        def iss(n):
            nonlocal issued
            for _ in range(n): self.issue(); issued += 1
        iss(2)
        stamp(k, 1)
        k(f"s_waitcnt vmcnt({(issued-1)*d})")
        stamp(k, 2)
        k("s_barrier")
        iss(min(2, NS-2))
        s = 0
        while issued < s + NS:
            k(f"s_waitcnt vmcnt({(issued-(s+2))*d})\ns_barrier")
            iss(min(2, s + NS + 1 - issued))
            s += 1
        assert issued == s + NS
        k(f"s_mov_b32 s56, {S-NS-s}\n{self.L('lloop')}:")
        k(f"s_waitcnt vmcnt({(NS-2)*d})\ns_barrier")
        self.issue()
        k(f"s_sub_u32 s56, s56, 1\ns_cmp_lg_u32 s56, 0\ns_cbranch_scc1 {self.L('lloop')}")
        extra = 0
        for i, s in enumerate(range(S-NS, S)):
            k(f"s_waitcnt vmcnt({max(0, S-2-s)*d + extra})\ns_barrier")
            if i in tail_hooks:
                fn, n = tail_hooks[i]; fn(); extra += n
    def compute(self, X, ACC, va, vb, vca, vcb, pre=None):
        k, KS, MT, NT = self.k, self.KS, self.MT, self.NT
        NF = KS * (MT + NT); Y = X + 4*NF
        k(f"""s_lshl_b32 s45, s43, 12
        v_add_u32 v{va}, s45, v3
        s_mul_i32 s46, s44, {NT*1024}
        s_add_u32 s46, s46, {self.ASZ}
        v_add_u32 v{vb}, s46, v3
        s_mov_b32 s53, {self.base}""")
        for i in range(4*MT*NT): k(f"v_mov_b32 v{ACC+i}, 0")
        upd = [f"v_add_u32 v{vca}, s53, v{va}", f"v_add_u32 v{vcb}, s53, v{vb}"] + self.slot_adv()
        def reads(F):
            r = []
            for ks in range(KS):
                f = F + 4*ks*(MT+NT)
                a = [f"ds_read_b128 {vr(f+4*m,4)}, v{vca} offset:{ks*8192+1024*m}" for m in range(MT)]
                b = [f"ds_read_b128 {vr(f+4*MT+4*n,4)}, v{vcb} offset:{ks*self.BN*64+1024*n}" for n in range(NT)]
                r += [b[0]] + a + b[1:]
            return r
        def mfmas(F):
            r = []
            for ks in range(KS):
                f = F + 4*ks*(MT+NT)
                for n in range(NT):
                    for m in range(MT):
                        a = ACC + 4*(m*NT + n)
                        r.append(f"v_mfma_f32_16x16x32_bf16 {vr(a,4)}, {vr(f+4*MT+4*n,4)}, {vr(f+4*m,4)}, {vr(a,4)}")
            return r
        k("\n".join(upd))
        stamp(k, 1)
        k("s_barrier")
        stamp(k, 2)
        k("\n".join(reads(X) + upd))
        k(f"s_mov_b32 s56, {self.S//2}\ns_waitcnt lgkmcnt(0)")
        k(f".p2align 6\n{self.L('cloop')}:")
        for (cu, nx) in ((X, Y), (Y, X)):
            k("s_barrier")
            mf = mfmas(cu); oth = reads(nx) + upd
            k("\n".join(interleave(mf, oth, 0, min(1.0, (len(mf)-1)/len(oth)))))
            k("s_waitcnt lgkmcnt(0)")
        if pre:
            k(f"s_cmp_lg_u32 s56, {PRE_AT}\ns_cbranch_scc1 {self.L('nopre')}")
            pre()
            k(f"{self.L('nopre')}:")
        k(f"s_sub_u32 s56, s56, 1\ns_cmp_lg_u32 s56, 0\ns_cbranch_scc1 {self.L('cloop')}")
        return X + 8*NF
```

```python
from common import *
import math

OST = os.environ.get('OST', WT)
def k_attn(force_fallback=False):
    k = Kern("attn_kernel", 168)
    L = lambda s: f"L_attn_{s}"
    QB = 65536; SCR = 128*1024; XCH = SCR; CMB = 0; FLAG = 36*1024
    SA, SB, OA, OB, MA, MB_ = 16, 32, 48, 64, 80, 96
    QA, QBr, KF, V0, V1, LA, LB, ONE = 112, 120, 128, 136, 140, 144, 148, 152
    IDX, VC, VN = 156, 157, 158
    k(f"s_cmp_ge_u32 s2, 256\ns_cbranch_scc1 {L('end')}")
    stamp(k, 0)
    k(f"""s_load_dwordx2 s[10:11], s[0:1], {A_WS}
    s_load_dwordx2 s[8:9], s[0:1], {B_W1}
    s_load_dwordx2 s[6:7], s[0:1], {B_W2}
    s_load_dwordx2 s[4:5], s[0:1], {A_WMOD}
    s_load_dwordx2 s[64:65], s[0:1], {A_X}""")
    wg_map(k, "R2", 40, 41)
    k(f"""v_lshrrev_b32 v1, 6, v0
    v_and_b32 v2, 63, v0
    v_readfirstlane_b32 s42, v1
    v_lshlrev_b32 v3, 4, v2
    s_waitcnt lgkmcnt(0)""")
    srd_ws(k, 12, 10, WS_H1, SZ_ACT)
    srd_ws(k, 16, 10, WS_WQP, 2*MB)
    srd_ws(k, 20, 10, WS_KV, 262144)
    G = Gemm(k, "attnq", 32, 2, 4, 64, base=QB)
    def kv4(lds, goff):
        k(f"s_add_u32 m0, s58, {lds}\ns_add_u32 s59, s57, {goff}")
        for i in range(4): k(f"buffer_load_dwordx4 v3, s[20:23], s59 offen offset:{1024*i} lds")
    def zero_init():
        for i in range(16): k(f"v_mov_b32 v{OA+i}, 0\nv_mov_b32 v{OB+i}, 0\nv_mov_b32 v{SB+i}, 0")
        for i in range(4): k(f"v_mov_b32 v{LA+i}, 0\nv_mov_b32 v{LB+i}, 0\nv_mov_b32 v{V1+i}, 0")
    k(f"s_cmp_lt_u32 s42, 4\ns_cbranch_scc1 {L('qcomp')}\ns_cmp_eq_u32 s42, 8\ns_cbranch_scc1 {L('service')}")
    k("s_and_b32 s57, s42, 3\ns_lshl_b32 s57, s57, 13\ns_mov_b32 s58, s57")
    def kvh(h):
        def f():
            kv4(32768*h, 131072*h); kv4(32768*h + 4096, 131072*h + 4096)
        return (f, 8)
    G.loader({0: kvh(0), 1: kvh(1)})
    k(f"""s_branch {L('join')}
    {L('qcomp')}:
    s_and_b32 s43, s42, 1
    s_lshr_b32 s44, s42, 1""")
    QACC = 112
    G.compute(16, QACC, 8, 9, 10, 11)
    k(f"""s_mov_b32 s50, {hex(f2u(LOG2E / math.sqrt(32.0)))}
    s_lshl_b32 s51, s42, 12
    s_add_u32 s51, s51, {XCH}
    v_add_u32 v11, s51, v3
    s_nop 4""")
    for i in range(0, 32, 2): k(f"v_pk_mul_f32 {vr(QACC+i,2)}, {vr(QACC+i,2)}, s[50:51] op_sel_hi:[1,0]")
    for i in range(16): k(f"v_cvt_pk_bf16_f32 v{SA+i}, v{QACC+2*i}, v{QACC+2*i+1}")
    k("s_nop 1")
    for p in range(2):
        for i in range(4): k(f"v_permlane16_swap_b32 v{SA+8*p+i}, v{SA+8*p+4+i}")
    for i in range(4): k(f"ds_write_b128 v11, {vr(SA+4*i,4)} offset:{1024*i}")
    k(f"{L('join')}:\ns_setprio 2")
    stamp(k, 3)
    srd_ws(k, 24, 10, WS_O, SZ_ACT)
    zero_init()
    k(f"""s_and_b32 s43, s42, 3
    s_lshr_b32 s44, s42, 2
    s_lshl_b32 s57, s44, 17
    s_lshl_b32 s58, s43, 13
    s_add_u32 s57, s57, s58
    s_lshl_b32 s58, s42, 13
    s_lshl_b32 s50, s43, 11
    s_add_u32 s50, s50, {XCH}
    v_add_u32 v11, s50, v3
    v_mov_b32 v{IDX}, 0xdddddddd
    v_and_b32 v12, 7, v2
    v_mov_b32 v13, 0x3f803f80
    v_cmp_eq_u32 vcc, 0, v12
    s_nop 1
    v_cndmask_b32 v{ONE}, 0, v13, vcc
    v_cndmask_b32 v{ONE+1}, 0, v13, vcc
    v_cmp_eq_u32 vcc, 4, v12
    s_nop 1
    v_cndmask_b32 v{ONE+2}, 0, v13, vcc
    v_cndmask_b32 v{ONE+3}, 0, v13, vcc
    s_lshl_b32 s50, s44, 15
    v_add_u32 v14, s50, v3
    s_mov_b32 s60, 0
    s_waitcnt vmcnt(0) lgkmcnt(0)
    s_barrier
    ds_read_b128 {vr(QA,4)}, v11
    ds_read_b128 {vr(QA+4,4)}, v11 offset:1024
    ds_read_b128 {vr(QBr,4)}, v11 offset:8192
    ds_read_b128 {vr(QBr+4,4)}, v11 offset:9216
    ds_read_b128 {vr(KF,4)}, v3
    ds_read_b128 {vr(KF+4,4)}, v3 offset:1024""")
    k(f"""s_waitcnt lgkmcnt(0)
    s_barrier
    v_mfma_f32_32x32x16_bf16 {vr(SA,16)}, {vr(KF,4)}, {vr(QA,4)}, 0
    v_mfma_f32_32x32x16_bf16 {vr(MB_,16)}, {vr(KF,4)}, {vr(QBr,4)}, 0
    v_mfma_f32_32x32x16_bf16 {vr(SA,16)}, {vr(KF+4,4)}, {vr(QA+4,4)}, {vr(SA,16)}
    v_mfma_f32_32x32x16_bf16 {vr(MB_,16)}, {vr(KF+4,4)}, {vr(QBr+4,4)}, {vr(MB_,16)}
    s_nop 10""")
    def rowmax(S, dst, first):
        if first:
            k(f"v_max3_f32 v{dst}, v{S}, v{S+1}, v{S+2}")
            for i in range(3, 15, 2): k(f"v_max3_f32 v{dst}, v{dst}, v{S+i}, v{S+i+1}")
            k(f"v_max_f32 v{dst}, v{dst}, v{S+15}")
        else:
            for i in range(0, 16, 2): k(f"v_max3_f32 v{dst}, v{dst}, v{S+i}, v{S+i+1}")
    rowmax(SA, 12, True); rowmax(MB_, 13, True)
    if force_fallback:
        k("v_add_f32 v12, 0xc3000000, v12\nv_add_f32 v13, 0xc3000000, v13")
    k(f"""{L('setmax')}:
    v_mov_b32 v{VC}, v14
    v_add_u32 v{VN}, 0x10000, v14
    v_mov_b32 v15, v12
    v_mov_b32 v11, v13
    ds_read_b128 {vr(KF,4)}, v{VC}
    ds_read_b128 {vr(KF+4,4)}, v{VC} offset:1024
    ds_read_b128 {vr(V0,4)}, v{VC} offset:2048
    v_permlane32_swap_b32 v12, v15
    v_permlane32_swap_b32 v13, v11
    v_max_f32 v12, v12, v15
    v_max_f32 v13, v13, v11""")
    for i in range(16): k(f"v_sub_f32 v{MA+i}, 0, v12")
    k(f"""s_mov_b32 s56, 0                 ; stage
    s_mov_b32 s61, 0                 ; slot(s)
    s_mov_b32 s63, {2*32768}
    s_waitcnt lgkmcnt(0)
    v_mfma_f32_32x32x16_bf16 {vr(SA,16)}, {vr(KF,4)}, {vr(QA,4)}, {vr(MA,16)}
    v_mfma_f32_32x32x16_bf16 {vr(SA,16)}, {vr(KF+4,4)}, {vr(QA+4,4)}, {vr(SA,16)}""")
    for i in range(16): k(f"v_sub_f32 v{MB_+i}, 0, v13")
    stamp(k, 4)
    if TIMING: k("s_waitcnt lgkmcnt(0)")
    k(f".p2align 6\n{L('loop')}:")
    def pv(O, V, S): return f"v_smfmac_f32_32x32x32_bf16 {vr(O,16)}, {vr(V,4)}, {vr(S,8)}, v{IDX}"
    def sm(Lr, S): return f"v_smfmac_f32_16x16x64_bf16 {vr(Lr,4)}, {vr(ONE,4)}, {vr(S,8)}, v{IDX}"
    NTL = 8
    PRIO = {2: 1, 4: 0} if os.environ.get('PRIO', '1') == '1' else {}
    def phase(X, OX, LX, Y, OY, LY, QY, MY, isA, j):
        e = [f"v_exp_f32 v{X+i}, v{X+i}" for i in range(16)]
        last = j == NTL - 1
        nx = (VC, (j+1)*4096) if not last else (VN, 0)
        o = e[0:2] + [pv(OY, V1, Y+8)]
        if isA: o.append(f"ds_read_b128 {vr(V1,4)}, v{VC} offset:{j*4096+3072}")
        o += e[2:5] + [sm(LY, Y+8)]
        o.append("s_waitcnt lgkmcnt(1)" if isA else "s_waitcnt lgkmcnt(0)")
        o += e[5:6] + [f"v_mfma_f32_32x32x16_bf16 {vr(Y,16)}, {vr(KF,4)}, {vr(QY,4)}, {vr(MY,16)}"]
        if isA and not last: o.append(f"ds_read_b128 {vr(KF,4)}, v{nx[0]} offset:{nx[1]}")
        o += e[6:9] + [f"v_mfma_f32_32x32x16_bf16 {vr(Y,16)}, {vr(KF+4,4)}, {vr(QY+4,4)}, {vr(Y,16)}"]
        if isA and last:
            o += [f"s_cmp_eq_u32 s56, 3", f"s_cbranch_scc1 {L('nobar')}", "s_waitcnt vmcnt(0) lgkmcnt(0)", "s_barrier", "s_setprio 2", f"{L('nobar')}:",
                  f"ds_read_b128 {vr(KF,4)}, v{nx[0]} offset:{nx[1]}"]
        if isA: o += [f"ds_read_b128 {vr(KF+4,4)}, v{nx[0]} offset:{nx[1]+1024}"]
        else: o.append("s_nop 0")
        o += e[9:12] + [pv(OX, V0, X)]
        if not isA: o.append(f"ds_read_b128 {vr(V0,4)}, v{nx[0]} offset:{nx[1]+2048}")
        elif j in PRIO: o.append(f"s_setprio {PRIO[j]}")
        else: o.append("s_nop 0")
        o += e[12:15] + [sm(LX, X)]
        if isA: o.append("s_waitcnt lgkmcnt(2)")
        else: o.append("s_nop 0")
        o += e[15:16]
        k("\n".join(o))
    for j in range(NTL):
        phase(SA, OA, LA, SB, OB, LB, QBr, MB_, True, j)
        phase(SB, OB, LB, SA, OA, LA, QA, MA, False, j)
    k(f"""s_cmp_eq_u32 s56, 3
    s_cbranch_scc1 {L('done')}
    s_cmp_eq_u32 s60, 0
    s_cbranch_scc1 {L('hooke_ret')}
    s_cmp_ge_u32 s56, 2
    s_cbranch_scc1 {L('hooke_ret')}
    s_add_u32 s62, s61, 4096
    s_add_u32 s47, s63, 4096""")
    kv4("s61", "s63"); kv4("s62", "s47")
    k(f"""{L('hooke_ret')}:
    s_add_u32 s63, s63, 32768
    v_mov_b32 v{VC}, v{VN}
    v_add_u32 v{VN}, s61, v14
    s_xor_b32 s61, s61, 0x10000
    s_add_u32 s56, s56, 1
    s_branch {L('loop')}""")
    k(f"{L('service')}:\ns_setprio 3")
    srd_arg(k, 32, 8, 0, 1024*7168)
    srd_arg(k, 36, 6, 0, 3584*2048)
    srd_arg(k, 4, 4, 0, 1024*12288)
    srd_arg(k, 64, 64, 0, 4*MB)
    srd_ws(k, 12, 10, WS_W1P, 7*MB)
    srd_ws(k, 16, 10, WS_W2P, 7*MB)
    srd_ws(k, 28, 10, 0, WS_WOP + 2*MB)
    pack_addr(k, "split", 2048, 2, 4, 5, 6, 47)
    k(f"""v_add_u32 v5, {SCR}, v5
    v_lshrrev_b32 v7, 3, v2
    v_mul_u32_u24 v7, 7168, v7
    v_and_b32 v6, 7, v2
    v_lshl_add_u32 v7, v6, 4, v7
    s_mul_i32 s45, s2, 7
    s_mov_b32 s56, {G.S + 2}
    {L('sbar')}:
    s_barrier
    s_sub_u32 s56, s56, 1
    s_cmp_lg_u32 s56, 0
    s_cbranch_scc1 {L('sbar')}""")
    def kvstage(st):
        k(f"s_mov_b32 s58, {65536*(st%2)}\ns_mov_b32 s57, {32768*st}\ns_mov_b32 s56, 8\n{L('skv%d' % st)}:")
        kv4(0, 0); kv4(32768, 131072)
        k(f"s_add_u32 s58, s58, 4096\ns_add_u32 s57, s57, 4096\ns_sub_u32 s56, s56, 1\ns_cmp_lg_u32 s56, 0\ns_cbranch_scc1 {L('skv%d' % st)}")
    def loop7(name, body):
        k(f"s_mov_b32 s56, 0\n{L(name)}:\ns_add_u32 s52, s45, s56\ns_lshl_b32 s53, s56, 12")
        body()
        k(f"s_add_u32 s56, s56, 1\ns_cmp_lt_u32 s56, 7\ns_cbranch_scc1 {L(name)}")
    def w2_in():
        k(f"""s_lshr_b32 s47, s52, 4
        s_lshl_b32 s47, s47, 16
        s_and_b32 s48, s52, 15
        s_lshl_b32 s48, s48, 7
        s_add_u32 s47, s47, s48
        s_add_u32 s46, s53, {SCR}""")
        pack_issue(k, 36, 2048, 4, 47, 46, 48)
    def w2_out():
        k("v_add_u32 v10, s53, v5")
        pack_read(k, "split", 10, 16)
        k(f"""s_and_b32 s47, s52, 15
        s_mul_i32 s47, s47, 112
        s_lshr_b32 s48, s52, 4
        s_add_u32 s47, s47, s48
        s_lshl_b32 s47, s47, 12
        s_waitcnt lgkmcnt(0)""")
        for nt in range(4): k(f"buffer_store_dwordx4 {vr(16+4*nt,4)}, v3, s[16:19], s47 offen offset:{1024*nt} {WT}")
    def w1_in():
        k(f"""s_and_b32 s47, s52, 31
        s_mul_i32 s47, s47, {32*7168}
        s_lshr_b32 s48, s52, 5
        s_lshl_b32 s48, s48, 7
        s_add_u32 s47, s47, s48
        s_add_u32 s46, s53, {SCR}""")
        pack_issue(k, 32, 7168, 7, 47, 46, 48)
    def w1_out():
        k("v_add_u32 v10, s53, v5")
        pack_read(k, "split", 10, 16)
        k(f"""s_and_b32 s47, s52, 31
        s_mul_i32 s47, s47, {14*1024}
        s_lshr_b32 s48, s52, 5
        s_lshl_b32 s48, s48, 2
        s_waitcnt lgkmcnt(0)""")
        for nt in range(4):
            k(f"""s_add_u32 s49, s48, {nt}
            s_mul_i32 s50, s49, 4682
            s_lshr_b32 s50, s50, 16
            s_mul_i32 s51, s50, 14
            s_sub_u32 s49, s49, s51
            s_cmp_ge_u32 s49, 6
            s_addc_u32 s51, s49, 0
            s_cmp_eq_u32 s49, 12
            s_cselect_b32 s51, 6, s51
            s_min_u32 s51, s51, 13
            s_mul_i32 s50, s50, {32*14*1024}
            s_lshl_b32 s51, s51, 10
            s_add_u32 s50, s50, s51
            s_add_u32 s50, s50, s47
            buffer_store_dwordx4 {vr(16+4*nt,4)}, v3, s[12:15], s50 offen {WT}""")
    k(f"""v_lshrrev_b32 v11, 3, v2
    v_mul_u32_u24 v11, 12288, v11
    v_lshl_add_u32 v11, v6, 4, v11
    v_lshlrev_b32 v8, 7, v2
    v_lshrrev_b32 v13, 4, v2
    v_lshlrev_b32 v15, 3, v13
    s_and_b32 s54, s2, 63
    s_lshr_b32 s55, s2, 6            ; k quarter""")
    k("s_barrier")
    kvstage(1)
    k(f"""s_lshl_b32 s47, s54, 7
    s_add_u32 s47, s47, 4096
    s_mul_i32 s48, s55, {256*12288}
    s_add_u32 s47, s47, s48
    s_mov_b32 s46, {SCR}
    s_mov_b32 s56, 32
    {L('sgi')}:
    s_mov_b32 m0, s46
    s_add_u32 s46, s46, 1024
    buffer_load_dwordx4 v11, s[4:7], s47 offen lds
    s_add_u32 s47, s47, {8*12288}
    s_sub_u32 s56, s56, 1
    s_cmp_lg_u32 s56, 0
    s_cbranch_scc1 {L('sgi')}""")
    k(f"s_lshl_b32 s47, s55, 9\ns_add_u32 s47, s47, {WS_SC}")
    for i in range(8):
        k(f"buffer_load_dwordx2 {vr(32+4*i,2)}, v15, s[28:31], s47 offen offset:{64*i}")
        k(f"buffer_load_dwordx2 {vr(34+4*i,2)}, v15, s[28:31], s47 offen offset:{64*i+32}")
    k("s_waitcnt vmcnt(48)")
    stamp(k, 1)
    k("s_barrier")
    stamp(k, 2)
    k("s_waitcnt vmcnt(0)")
    kvstage(2)
    for c in range(8):
        k(f"v_add_u32 v10, {4096*c}, v5")
        pack_read(k, "split", 10, 16)
        k("s_waitcnt lgkmcnt(0)")
        for nt in range(4):
            k(f"v_mfma_f32_16x16x32_bf16 {vr(64+4*nt,4)}, {vr(16+4*nt,4)}, {vr(32+4*c,4)}, {'0' if c == 0 else vr(64+4*nt,4)}")
    k(f"""s_mul_i32 s47, s55, {6144*4}
    s_lshl_b32 s48, s54, 8
    s_add_u32 s47, s47, s48
    s_add_u32 s47, s47, {WS_MODP + 8192}
    v_lshlrev_b32 v15, 1, v15
    s_nop 3""")
    for nt in range(4): k(f"buffer_store_dwordx4 {vr(64+4*nt,4)}, v15, s[28:31], s47 offen offset:{64*nt} {WT}")
    loop7("sw2i", w2_in)
    k("s_waitcnt vmcnt(32)")
    stamp(k, 3)
    k("s_barrier")
    stamp(k, 4)
    k("s_waitcnt vmcnt(0)")
    kvstage(3)
    loop7("sw2o", w2_out)
    loop7("sw1i", w1_in)
    k("s_waitcnt vmcnt(56)")
    stamp(k, 5)
    k("s_barrier")
    stamp(k, 6)
    k(f"""s_lshr_b32 s50, s2, 3
    s_lshl_b32 s51, s50, 16
    s_add_u32 s51, s51, {WS_WOP}
    s_lshl_b32 s50, s50, 14
    s_and_b32 s49, s2, 7
    s_lshl_b32 s49, s49, 19
    s_add_u32 s50, s50, s49
    s_waitcnt vmcnt(0)""")
    for i in range(2): k(f"buffer_load_dword v14, v8, s[64:67], s50 offen\ns_add_u32 s50, s50, 8192")
    for i in range(8): k(f"buffer_load_dword v14, v8, s[28:31], s51 offen\ns_add_u32 s51, s51, 8192")
    code_pull(k, "oproj_kernel", "w1_kernel", 2, 80)
    loop7("sw1o", w1_out)
    if TIMING:
        stamp(k, 7)
        k("s_mov_b32 s42, 0")
        stamps_out(k, 9, 8)
    k("s_endpgm")
    k(f"{L('done')}:")
    stamp(k, 5)
    k(f"""s_nop 0
    {pv(OB, V1, SB+8)}
    {sm(LB, SB+8)}
    s_mul_i32 s50, s42, 4352
    v_add_u32 v11, s50, v3
    v_lshlrev_b32 v15, 2, v2
    v_add_u32 v15, s50, v15
    s_xor_b32 s51, s42, 4
    s_mul_i32 s51, s51, 4352
    s_lshl_b32 s52, s42, 2
    v_mov_b32 v13, s52
    v_max3_f32 v12, |v{OA}|, |v{OA+1}|, |v{OA+2}|""")
    for i in range(3, 15, 2): k(f"v_max3_f32 v12, v12, |v{OA+i}|, |v{OA+i+1}|")
    k(f"v_max3_f32 v12, v12, |v{OA+15}|, |v{OB}|")
    for i in range(1, 15, 2): k(f"v_max3_f32 v12, v12, |v{OB+i}|, |v{OB+i+1}|")
    k(f"""v_max_f32 v12, v12, |v{OB+15}|
    s_mov_b32 s52, {hex(f2u(2.0**126))}
    s_mov_b32 s53, {hex(f2u(2.0**79))}
    v_cmp_nlt_f32 s[54:55], v12, s52
    v_cmp_nlt_f32 s[48:49], v{LA}, s53
    v_cmp_nlt_f32 vcc, v{LB}, s53
    s_or_b64 s[54:55], s[54:55], vcc
    s_or_b64 s[54:55], s[54:55], s[48:49]
    s_cselect_b32 s52, 1, 0
    v_mov_b32 v12, s52
    ds_write_b32 v13, v12 offset:{FLAG}
    s_cmp_eq_u32 s44, 0
    s_cbranch_scc1 {L('sendB')}""")
    for i in range(4): k(f"ds_write_b128 v11, {vr(OA+4*i,4)} offset:{1024*i}")
    k(f"ds_write_b32 v15, v{LA} offset:4096")
    for i in range(0, 16, 2): k(f"v_mov_b64 {vr(OA+i,2)}, {vr(OB+i,2)}")
    k(f"v_mov_b32 v{LA}, v{LB}\ns_branch {L('sent')}\n{L('sendB')}:")
    for i in range(4): k(f"ds_write_b128 v11, {vr(OB+4*i,4)} offset:{1024*i}")
    k(f"ds_write_b32 v15, v{LB} offset:4096")
    k(f"""{L('sent')}:
    v_add_u32 v11, s51, v3
    v_lshlrev_b32 v15, 2, v2
    v_and_b32 v13, 28, v15
    v_add_u32 v15, s51, v15
    s_waitcnt lgkmcnt(0)
    s_barrier
    ds_read_b32 v13, v13 offset:{FLAG}
    ds_read_b32 v{LB}, v15 offset:4096""")
    for i in range(4): k(f"ds_read_b128 {vr(OB+4*i,4)}, v11 offset:{1024*i}")
    k(f"""v_bfe_u32 v11, v2, 4, 1
    v_lshlrev_b32 v11, 10, v11
    v_lshrrev_b32 v15, 5, v2
    v_lshl_add_u32 v11, v15, 8, v11
    v_and_b32 v15, 15, v2
    v_lshl_add_u32 v11, v15, 4, v11
    s_lshl_b32 s50, s40, 18
    s_lshl_b32 s51, s41, 14
    s_add_u32 s50, s50, s51
    s_lshl_b32 s51, s44, 13
    s_add_u32 s50, s50, s51
    s_lshl_b32 s51, s43, 11
    s_add_u32 s50, s50, s51
    s_waitcnt lgkmcnt(4)
    v_cmp_lt_u32 vcc, s60, v13
    v_add_f32 v{LA}, v{LA}, v{LB}
    v_rcp_f32 v{LA}, v{LA}
    s_cmp_lg_u64 vcc, 0
    s_cbranch_scc1 {L('fallback')}""")
    for i in range(4):
        k(f"s_waitcnt lgkmcnt({3-i})")
        for h in range(2): k(f"v_pk_add_f32 {vr(OA+4*i+2*h,2)}, {vr(OA+4*i+2*h,2)}, {vr(OB+4*i+2*h,2)}")
        for h in range(2): k(f"v_pk_mul_f32 {vr(OA+4*i+2*h,2)}, {vr(OA+4*i+2*h,2)}, {vr(LA,2)} op_sel_hi:[1,0]")
        k("s_nop 0")
        for h in range(2): k(f"v_cvt_pk_bf16_f32 v{SA+2*i+h}, v{OA+4*i+2*h}, v{OA+4*i+2*h+1}")
        if i % 2 == 1: k(f"buffer_store_dwordx4 {vr(SA+2*i-2,4)}, v11, s[24:27], s50 offen offset:{256*(i-1)} {OST}")
    stamps_out(k, 2, 6)
    k(f"""s_endpgm
    {L('fallback')}:
    s_mov_b32 s60, 1
    v_mov_b32 v12, 0xff800000
    v_mov_b32 v13, 0xff800000
    s_mov_b32 s50, 0
    s_waitcnt lgkmcnt(0)
    s_barrier
    {L('floop')}:
    buffer_load_dwordx4 {vr(KF,4)}, v3, s[20:23], s50 offen
    buffer_load_dwordx4 {vr(KF+4,4)}, v3, s[20:23], s50 offen offset:1024
    s_waitcnt vmcnt(0)
    v_mfma_f32_32x32x16_bf16 {vr(SA,16)}, {vr(KF,4)}, {vr(QA,4)}, 0
    v_mfma_f32_32x32x16_bf16 {vr(SB,16)}, {vr(KF,4)}, {vr(QBr,4)}, 0
    v_mfma_f32_32x32x16_bf16 {vr(SA,16)}, {vr(KF+4,4)}, {vr(QA+4,4)}, {vr(SA,16)}
    v_mfma_f32_32x32x16_bf16 {vr(SB,16)}, {vr(KF+4,4)}, {vr(QBr+4,4)}, {vr(SB,16)}
    s_nop 11""")
    rowmax(SA, 12, False); rowmax(SB, 13, False)
    k(f"""s_add_u32 s50, s50, 4096
    s_cmp_lt_u32 s50, 262144
    s_cbranch_scc1 {L('floop')}""")
    for st in range(2):
        kv4(65536*st, 32768*st); kv4(65536*st + 4096, 32768*st + 4096)
    zero_init()
    k(f"""s_waitcnt vmcnt(0)
    s_barrier
    s_branch {L('setmax')}
    {L('end')}:
    s_endpgm""")
    return k, (256, 576, 163840)
```

```python
from common import *

CFG = {
  "oproj": dict(A=WS_O, Asz=SZ_ACT, KB=32, W=WS_WOP, Wsz=2*MB, BN=64, KS=2, NS=6, map="R2"),
  "w1":    dict(A=WS_H2, Asz=SZ_ACT, KB=32, W=WS_W1P, Wsz=7*MB, BN=224, KS=1, NS=7, map="R8"),
  "w2":    dict(A=WS_U, Asz=SZ_U, KB=112, W=WS_W2P, Wsz=7*MB, BN=64, KS=2, NS=6, map="R4"),
}
for nm in CFG:
    if os.environ.get("MAP_" + nm): CFG[nm]["map"] = os.environ["MAP_" + nm]
UST = os.environ.get("UST", WT)
X1ST = os.environ.get("X1ST", WT)
OUTST = os.environ.get("OUTST", WT)

def k_gemm(name):
    c = CFG[name]
    BN = c["BN"]
    k = Kern(f"{name}_kernel", 216 if BN == 224 else 192)
    G = Gemm(k, name, c["KB"], c["KS"], c["NS"], BN)
    L = G.L
    NT = G.NT
    k(f"s_cmp_ge_u32 s2, 256\ns_cbranch_scc1 {L('end')}")
    stamp(k, 0)
    KIDX = {"oproj": 3, "w1": 5, "w2": 6}[name]
    k(f"s_load_dwordx2 s[10:11], s[0:1], {A_WS}")
    if name == "oproj": k(f"s_load_dwordx2 s[6:7], s[0:1], {A_X}")
    if name == "w2": k(f"s_load_dwordx2 s[6:7], s[0:1], {A_OUT}")
    wg_map(k, c["map"], 40, 41)
    k(f"""v_lshrrev_b32 v1, 6, v0
    v_and_b32 v2, 63, v0
    v_readfirstlane_b32 s42, v1
    v_lshlrev_b32 v3, 4, v2
    s_waitcnt lgkmcnt(0)""")
    srd_ws(k, 12, 10, c["A"], c["Asz"])
    srd_ws(k, 16, 10, c["W"], c["Wsz"])
    k(f"s_cmp_lt_u32 s42, 4\ns_cbranch_scc1 {L('compute')}")
    G.loader()
    if name == "oproj":
        k(f"""s_cmp_lg_u32 s42, 4
        s_cbranch_scc1 {L('lend')}
        s_cmp_ge_u32 s2, 48
        s_cbranch_scc1 {L('lend')}""")
        srd_ws(k, 24, 10, 0, WS_MODP + 4*6144*4)
        k(f"s_lshl_b32 s57, s2, 8\ns_add_u32 s57, s57, {3072*4}\nv_lshlrev_b32 v4, 2, v2")
        for p in range(4): k(f"s_add_u32 s58, s57, {WS_MODP + p*6144*4}\nbuffer_load_dword v{8+p}, v4, s[24:27], s58 offen")
        k(f"""s_lshr_b32 s58, s2, 4
        s_cmp_eq_u32 s58, 1
        s_cselect_b32 s58, 1.0, 0
        s_waitcnt vmcnt(0)
        v_add_f32 v8, v8, v9
        v_add_f32 v10, v10, v11
        v_add_f32 v8, v8, v10""")
        round_bf16(k, 8)
        k("v_add_f32 v8, s58, v8")
        round_bf16(k, 8)
        k(f"buffer_store_dword v8, v4, s[24:27], s57 offen {WT}\n{L('lend')}:")
    stamp(k, 3)
    stamps_out(k, KIDX, 4)
    k("s_endpgm")
    k(f"{L('compute')}:")
    X = 12
    NF = G.KS * (G.MT + NT)
    ACC = X + 8*NF
    EPI = ACC + 16*NT
    k(f"""s_and_b32 s43, s42, 1            ; th
    s_lshr_b32 s44, s42, 1           ; nh
    v_and_b32 v4, 15, v2             ; t
    v_lshrrev_b32 v5, 4, v2          ; g""")
    if name in ("oproj", "w2"):
        srd_ws(k, 24, 10, WS_MODP if name == 'oproj' else WS_MOD, 4*6144*4)
        gate = 2048 if name == "oproj" else 5120
        srd_ws(k, 20, 10, WS_X1, SZ_ACT)
        srd_arg(k, 28, 6, 0, 4*MB)
        k(f"""s_lshl_b32 s57, s41, 8
        s_lshl_b32 s58, s44, 7
        s_add_u32 s57, s57, s58
        s_add_u32 s57, s57, {gate*4}
        s_lshl_b32 s59, s40, 18
        s_lshl_b32 s58, s41, 14
        s_add_u32 s59, s59, s58
        s_lshl_b32 s58, s44, 13
        s_add_u32 s59, s59, s58
        s_lshl_b32 s58, s43, 12
        s_add_u32 s59, s59, s58
        s_lshl_b32 s60, s40, 18
        s_lshl_b32 s58, s43, 17
        s_add_u32 s60, s60, s58
        s_lshl_b32 s58, s41, 7
        s_add_u32 s60, s60, s58
        s_lshl_b32 s58, s44, 6
        s_add_u32 s60, s60, s58
        v_lshlrev_b32 v6, 4, v5
        v_lshlrev_b32 v7, 11, v4
        v_lshl_add_u32 v7, v5, 3, v7""")
    def pre():
        k(f"""buffer_load_dwordx4 {vr(EPI,4)}, v6, s[24:27], s57 offen
        buffer_load_dwordx4 {vr(EPI+4,4)}, v6, s[24:27], s57 offen offset:64""")
        if name == "oproj":
            for p in range(1, 4):
                k(f"""s_add_u32 s58, s57, {p*6144*4}
                buffer_load_dwordx4 {vr(EPI+16+8*p,4)}, v6, s[24:27], s58 offen
                buffer_load_dwordx4 {vr(EPI+20+8*p,4)}, v6, s[24:27], s58 offen offset:64""")
            for m in range(4):
                k(f"s_add_u32 s58, s60, {m*32768}")
                k(f"buffer_load_dwordx2 {vr(EPI+8+4*m,2)}, v7, s[28:31], s58 offen")
                k(f"buffer_load_dwordx2 {vr(EPI+10+4*m,2)}, v7, s[28:31], s58 offen offset:32")
        else:
            for m in range(4):
                k(f"buffer_load_dwordx4 {vr(EPI+8+4*m,4)}, v3, s[20:23], s59 offen offset:{1024*m}")
    if name == 'w1': srd_ws(k, 20, 10, WS_U, SZ_U)
    G.compute(X, ACC, 8, 9, 10, 11, pre if name != 'w1' else None)
    stamp(k, 3)
    if BN == 64:
        k("s_waitcnt vmcnt(0)")
        if name == "oproj":
            for j in range(0, 8, 2):
                k(f"v_pk_add_f32 {vr(EPI+j,2)}, {vr(EPI+j,2)}, {vr(EPI+24+j,2)}\nv_pk_add_f32 {vr(EPI+32+j,2)}, {vr(EPI+32+j,2)}, {vr(EPI+40+j,2)}")
            for j in range(0, 8, 2):
                k(f"v_pk_add_f32 {vr(EPI+j,2)}, {vr(EPI+j,2)}, {vr(EPI+32+j,2)}")
            for j in range(0, 8, 2):
                k(f"v_cvt_pk_bf16_f32 v{EPI+j+1}, v{EPI+j}, v{EPI+j+1}\nv_lshlrev_b32 v{EPI+j}, 16, v{EPI+j+1}\nv_and_b32 v{EPI+j+1}, 0xffff0000, v{EPI+j+1}")
        else: k("s_nop 7")
        T = X
        for m in range(4):
            xr = EPI + 8 + 4*m
            for n in range(2):
                for h in range(2):
                    a = ACC + 4*(m*2+n) + 2*h
                    t = T + 8*m + 4*n + 2*h
                    k(f"v_lshlrev_b32 v{t}, 16, v{xr+2*n+h}\nv_and_b32 v{t+1}, 0xffff0000, v{xr+2*n+h}")
                    k(f"v_pk_fma_f32 {vr(t,2)}, {vr(a,2)}, {vr(EPI+4*n+2*h,2)}, {vr(t,2)}")
                    k(f"v_cvt_pk_bf16_f32 v{xr+2*n+h}, v{t}, v{t+1}")
            if name == "oproj":
                k(f"buffer_store_dwordx4 {vr(xr,4)}, v3, s[20:23], s59 offen offset:{1024*m} {X1ST}")
        if name == "oproj":
            S1, S2 = T + 32, T + 40
            for m in range(4):
                t = T + 8*m
                k(f"v_pk_add_f32 {vr(S1+2*m,2)}, {vr(t,2)}, {vr(t+2,2)}\nv_pk_mul_f32 {vr(S2+2*m,2)}, {vr(t,2)}, {vr(t,2)}")
                k(f"v_pk_add_f32 {vr(S1+2*m,2)}, {vr(S1+2*m,2)}, {vr(t+4,2)}\nv_pk_fma_f32 {vr(S2+2*m,2)}, {vr(t+2,2)}, {vr(t+2,2)}, {vr(S2+2*m,2)}")
                k(f"v_pk_add_f32 {vr(S1+2*m,2)}, {vr(S1+2*m,2)}, {vr(t+6,2)}\nv_pk_fma_f32 {vr(S2+2*m,2)}, {vr(t+4,2)}, {vr(t+4,2)}, {vr(S2+2*m,2)}")
                k(f"v_pk_fma_f32 {vr(S2+2*m,2)}, {vr(t+6,2)}, {vr(t+6,2)}, {vr(S2+2*m,2)}")
            for m in range(4):
                k(f"v_add_f32 v{S1+2*m}, v{S1+2*m}, v{S1+2*m+1}\nv_add_f32 v{S1+2*m+1}, v{S2+2*m}, v{S2+2*m+1}")
            srd_ws(k, 24, 10, WS_ST2, 2048*256)
            for j in range(2): k(f"v_permlane16_swap_b32 v{S1+j}, v{S1+2+j}\nv_permlane16_swap_b32 v{S1+4+j}, v{S1+6+j}")
            k(f"v_pk_add_f32 {vr(S1,2)}, {vr(S1,2)}, {vr(S1+2,2)}\nv_pk_add_f32 {vr(S1+4,2)}, {vr(S1+4,2)}, {vr(S1+6,2)}")
            k(f"""s_lshl_b32 s57, s40, 15
            s_lshl_b32 s58, s43, 14
            s_add_u32 s57, s57, s58
            s_lshl_b32 s58, s41, 4
            s_add_u32 s57, s57, s58
            s_lshl_b32 s58, s44, 3
            s_add_u32 s57, s57, s58
            v_lshlrev_b32 v7, 8, v2""")
            for j in range(2): k(f"v_permlane32_swap_b32 v{S1+j}, v{S1+4+j}")
            k(f"v_pk_add_f32 {vr(S1,2)}, {vr(S1,2)}, {vr(S1+4,2)}")
            k(f"buffer_store_dwordx2 {vr(S1,2)}, v7, s[24:27], s57 offen")
        if name == "w2":
            k(f"""v_and_b32 v7, 1, v5
            v_lshlrev_b32 v7, 5, v7
            v_lshrrev_b32 v8, 1, v5
            v_lshl_add_u32 v7, v8, 4, v7
            v_lshl_add_u32 v7, v4, 11, v7""")
            for m in range(4):
                xr = EPI + 8 + 4*m
                k(f"v_permlane16_swap_b32 v{xr}, v{xr+2}\nv_permlane16_swap_b32 v{xr+1}, v{xr+3}")
                k(f"s_add_u32 s58, s60, {m*32768}")
                k(f"buffer_store_dwordx4 {vr(xr,4)}, v7, s[28:31], s58 offen {OUTST}")
    else:
        k(f"""s_mul_i32 s48, s40, {112*8192}
        s_mul_i32 s47, s41, {7*8192}
        s_add_u32 s48, s48, s47
        s_lshl_b32 s47, s43, 12
        s_add_u32 s48, s48, s47
        s_add_u32 s50, s48, {6*8192}
        s_lshl_b32 s47, s44, 3
        s_add_u32 s50, s50, s47
        s_mul_i32 s47, s44, {3*8192}
        s_add_u32 s48, s48, s47
        s_mov_b32 s51, {hex(f2u(-LOG2E))}""")
        T = X
        def silu4(a, dst):
            for i in range(4): k(f"v_mul_f32 v{T+i}, s51, v{a+i}")
            for i in range(4): k(f"v_exp_f32 v{T+i}, v{T+i}")
            for i in range(4): k(f"v_add_f32 v{T+i}, 1.0, v{T+i}")
            for i in range(4): k(f"v_rcp_f32 v{T+i}, v{T+i}")
            for i in range(4): k(f"v_mul_f32 v{T+i}, v{T+i}, v{a+i}")
            k(f"v_cvt_pk_bf16_f32 v{dst}, v{T}, v{T+1}\nv_cvt_pk_bf16_f32 v{dst+1}, v{T+2}, v{T+3}")
        P = T + 8
        cnt = 0
        for p in range(4):
            if p < 3: k(f"s_add_u32 s47, s48, {p*8192}")
            for m in range(4):
                o = P + 4*(cnt % 8); cnt += 1
                silu4(ACC + 4*(m*NT + 2*p), o)
                if p < 3:
                    silu4(ACC + 4*(m*NT + 2*p + 1), o + 2)
                    k(f"buffer_store_dwordx4 {vr(o,4)}, v3, s[20:23], s47 offen offset:{1024*m} {UST}")
                else:
                    k(f"buffer_store_dwordx2 {vr(o,2)}, v3, s[20:23], s50 offen offset:{1024*m} {UST}")
    stamps_out(k, KIDX, 4)
    k(f"{L('end')}:\ns_endpgm")
    return k, (256, 512, G.LDS)
```

```python
import sys, math
from common import *

def tb_map(k, dst, sub=0, shift=0):
    k(f"s_and_b32 s{dst}, s2, 7\ns_lshl_b32 s{dst}, s{dst}, 4\ns_sub_u32 s3, s2, {sub}\ns_lshr_b32 s3, s3, {3+shift}\ns_add_u32 s{dst}, s{dst}, s3")

def gemv_part(k, pfx, RW, lds, mid=None):
    NI = RW // 8
    k(f"""v_lshrrev_b32 v4, 3, v2          ; r
    v_and_b32 v5, 7, v2              ; c8
    v_mul_u32_u24 v6, {NI*12288}, v4
    v_lshl_add_u32 v6, v5, 4, v6
    s_lshl_b32 s30, s29, 3
    s_add_u32 s30, s30, s42
    s_mul_i32 s31, s30, {RW*2}
    s_mul_i32 s30, s30, {RW*12288}
    s_lshl_b32 s21, s28, 7
    s_add_u32 s30, s30, s21
    v_lshlrev_b32 v7, 2, v2
    s_waitcnt lgkmcnt(0)""")
    srd_arg(k, 12, 4, 0, 2048)
    srd_arg(k, 16, 6, 0, 1024*12288)
    srd_ws(k, 24, 10, WS_MODP, 4*6144*4)
    k("buffer_load_dword v8, v7, s[12:15], s31 offen")
    for i in range(NI):
        k(f"s_add_u32 s22, s30, {i*12288}\nbuffer_load_dwordx4 v[{32+4*i}:{35+4*i}], v6, s[16:19], s22 offen")
    nmid = mid() if mid else 0
    stamp(k, 1)
    k(f"""s_waitcnt vmcnt({NI+nmid})
    v_and_b32 v9, 0xffff0000, v8
    v_lshlrev_b32 v8, 16, v8
    v_mul_f32 v10, {hex(f2u(-LOG2E))}, v8
    v_mul_f32 v11, {hex(f2u(-LOG2E))}, v9
    v_exp_f32 v10, v10
    v_exp_f32 v11, v11
    s_lshl_b32 s22, s42, 9
    v_add_f32 v10, 1.0, v10
    v_add_f32 v11, 1.0, v11
    v_rcp_f32 v10, v10
    v_rcp_f32 v11, v11
    s_add_u32 s22, s22, {lds}
    v_mul_f32 v8, v8, v10
    v_mul_f32 v9, v9, v11""")
    srd_ws(k, 12, 10, WS_SC, 2048)
    k(f"""v_cvt_pk_bf16_f32 v10, v8, v9
    s_cmp_eq_u32 s28, 0
    s_cselect_b32 s14, 2048, 0
    v_mov_b32 v11, 0x80000000
    v_cmp_gt_u32 vcc, {RW//2}, v2
    v_lshlrev_b32 v8, 16, v10
    v_and_b32 v9, 0xffff0000, v10
    v_cndmask_b32 v11, v11, v7, vcc
    buffer_store_dword v10, v11, s[12:15], s31 offen {WT}""")
    nmid += 1
    k(f"""v_lshl_add_u32 v10, v2, 3, s22
    ds_write_b64 v10, v[8:9]
    v_lshl_add_u32 v10, v4, {(NI*4).bit_length()-1}, s22
    s_waitcnt lgkmcnt(0)""")
    for i in range(NI//4): k(f"ds_read_b128 v[{12+4*i}:{15+4*i}], v10 offset:{16*i}")
    k("s_waitcnt lgkmcnt(0)")
    for i in range(NI):
        k(f"s_waitcnt vmcnt({NI-1-i+nmid})")
        for d in range(4):
            w = 32 + 4*i + d
            op = "v_mul_f32" if i == 0 else "v_fmac_f32"
            k(f"v_lshlrev_b32 v{28+2*(d%2)}, 16, v{w}\nv_and_b32 v{29+2*(d%2)}, 0xffff0000, v{w}")
            k(f"{op} v{20+2*d}, v{28+2*(d%2)}, v{12+i}\n{op} v{21+2*d}, v{29+2*(d%2)}, v{12+i}")
    stamp(k, 2)
    k("s_nop 1")
    for j in range(4): k(f"v_permlane32_swap_b32 v{20+j}, v{24+j}")
    for j in range(4): k(f"v_add_f32 v{20+j}, v{20+j}, v{24+j}")
    k("s_nop 1")
    for j in range(2): k(f"v_permlane16_swap_b32 v{20+j}, v{22+j}")
    for j in range(2): k(f"v_add_f32 v{20+j}, v{20+j}, v{22+j}")
    k("s_nop 1")
    for j in range(2): k(f"v_add_f32_dpp v{20+j}, v{20+j}, v{20+j} row_ror:8 row_mask:0xf bank_mask:0xf")
    k(f"""v_lshrrev_b32 v10, 4, v2
    v_lshlrev_b32 v10, 3, v10
    v_lshl_add_u32 v10, v5, 5, v10
    s_lshl_b32 s22, s42, 8
    s_add_u32 s22, s22, {lds+4096}
    v_add_u32 v10, s22, v10
    ds_write_b64 v10, v[20:21]
    s_waitcnt lgkmcnt(0)
    s_barrier
    s_cmp_lg_u32 s42, 0
    s_cbranch_scc1 L_{pfx}_gdone
    v_add_u32 v10, {lds+4096}, v7""")
    for p in range(8): k(f"ds_read_b32 v{12+p}, v10 offset:{256*p}")
    k(f"""s_mul_i32 s21, s29, {6144*4}
    s_lshl_b32 s22, s28, 8
    s_add_u32 s21, s21, s22
    s_waitcnt lgkmcnt(0)""")
    for p in range(1, 8): k(f"v_add_f32 v12, v12, v{12+p}")
    k(f"buffer_store_dword v12, v7, s[24:27], s21 offen {WT}\nL_{pfx}_gdone:")

def pack_begin(k, order, ptr, first):
    pack_addr(k, order, 2048, 2, 64, 65, 66, 47)
    srd_arg(k, 32, ptr, 0, 2*MB)
    k(f"""s_sub_u32 s45, s2, {first}
    s_lshl_b32 s45, s45, 2
    s_add_u32 s45, s45, s42
    s_lshl_b32 s46, s42, 12
    v_add_u32 v65, s46, v65
    s_lshr_b32 s47, s45, 4
    s_lshl_b32 s47, s47, 16
    s_and_b32 s48, s45, 15
    s_lshl_b32 s48, s48, 7
    s_add_u32 s47, s47, s48
    s_cmp_ge_u32 s42, 4
    s_cselect_b32 s47, 0x40000000, s47
    s_barrier""")
    pack_issue(k, 32, 2048, 64, 47, 46, 48)
def pack_end(k, order, wsoff):
    srd_ws(k, 16, 10, wsoff, 2*MB)
    k(f"""s_and_b32 s47, s45, 15
    s_lshl_b32 s47, s47, 5
    s_lshr_b32 s48, s45, 4
    s_add_u32 s47, s47, s48
    s_lshl_b32 s47, s47, 12
    s_cmp_ge_u32 s42, 4
    s_cselect_b32 s47, 0x40000000, s47
    s_waitcnt vmcnt(0)""")
    pack_read(k, order, 65, 32)
    k("s_waitcnt lgkmcnt(0)")
    for nt in range(4): k(f"buffer_store_dwordx4 {vr(32+4*nt,4)}, v3, s[16:19], s47 offen offset:{1024*nt} {WT}")

def k_front1():
    k = Kern("front1_kernel", 72)
    k(f"""s_cmp_ge_u32 s2, 256
    s_cbranch_scc1 L_f1_end""")
    stamp(k, 0)
    k(f"""v_lshrrev_b32 v1, 6, v0
    v_and_b32 v2, 63, v0
    v_readfirstlane_b32 s42, v1
    s_cmp_ge_u32 s2, 128
    s_cbranch_scc1 L_f1_stats
    s_load_dwordx2 s[4:5], s[0:1], {A_C}
    s_load_dwordx2 s[6:7], s[0:1], {A_WMOD}
    s_load_dwordx2 s[10:11], s[0:1], {A_WS}
    s_load_dwordx2 s[8:9], s[0:1], {A_WQ}
    s_and_b32 s28, s2, 31
    s_lshr_b32 s29, s2, 5
    v_lshlrev_b32 v3, 4, v2""")
    def mid():
        pack_begin(k, "nat", 8, 0)
        return 4
    gemv_part(k, "f1", 32, 32768, mid)
    pack_end(k, "nat", WS_WQP)
    stamps_out(k, 0, 3)
    k("s_endpgm")
    XP, XF, T = 8, 24, 56
    k(f"""L_f1_stats:
    s_load_dwordx2 s[4:5], s[0:1], {A_X}
    s_load_dwordx2 s[6:7], s[0:1], {A_WK}
    s_load_dwordx2 s[8:9], s[0:1], {A_WV}
    s_load_dwordx2 s[10:11], s[0:1], {A_WS}""")
    tb_map(k, 40, 128)
    k(f"""v_and_b32 v3, 15, v2
    v_lshrrev_b32 v4, 4, v2
    v_lshlrev_b32 v5, 11, v3
    v_lshl_add_u32 v5, v4, 4, v5
    s_lshl_b32 s43, s40, 15
    s_lshl_b32 s44, s42, 8
    s_add_u32 s43, s43, s44
    s_waitcnt lgkmcnt(0)""")
    srd_arg(k, 12, 4, 0, 4*MB)
    for i in range(4):
        k(f"buffer_load_dwordx4 v[{XP+4*i}:{XP+4*i+3}], v5, s[12:15], s43 offen offset:{64*i}")
    k(f"""s_and_b32 s44, s40, 8
    s_cmp_eq_u32 s44, 0
    s_cselect_b32 s16, s6, s8
    s_cselect_b32 s17, s7, s9
    s_and_b32 s17, s17, 0xffff
    s_cmp_eq_u32 s42, 0
    s_cselect_b32 s18, 65536, 0
    s_mov_b32 s19, 0x20000
    s_and_b32 s44, s40, 7
    s_lshl_b32 s44, s44, 13
    v_lshlrev_b32 v6, 7, v2
    buffer_load_dword v7, v6, s[16:19], s44 offen""")
    srd_ws(k, 24, 10, WS_ST1, 2048*8)
    stamp(k, 1)
    k("s_waitcnt vmcnt(1)")
    stamp(k, 2)
    s, t1, a, b = T, T+1, T+2, T+3
    for i in range(16):
        k(f"v_lshlrev_b32 v{XF+2*i}, 16, v{XP+i}\nv_and_b32 v{XF+2*i+1}, 0xffff0000, v{XP+i}")
    k(f"v_pk_add_f32 v[{s}:{s+1}], v[{XF}:{XF+1}], v[{XF+2}:{XF+3}]")
    for i in range(4, 32, 2): k(f"v_pk_add_f32 v[{s}:{s+1}], v[{s}:{s+1}], v[{XF+i}:{XF+i+1}]")
    k(f"v_add_f32 v{s}, v{s}, v{t1}")
    xlane_sum(k, s, t1)
    k(f"""v_lshlrev_b32 v{a}, 5, v3
    v_lshl_add_u32 v{b}, v1, 2, v{a}
    ds_write_b32 v{b}, v{s}
    s_waitcnt lgkmcnt(0)
    s_barrier
    ds_read_b128 v[{T+4}:{T+7}], v{a}
    ds_read_b128 v[{T+8}:{T+11}], v{a} offset:16
    s_waitcnt lgkmcnt(0)""")
    for i in range(5, 12): k(f"v_add_f32 v{T+4}, v{T+4}, v{T+i}")
    mean = T + 12
    k(f"v_mul_f32 v{mean}, {hex(f2u(-1/1024))}, v{T+4}")
    for i in range(0, 32, 2):
        k(f"v_pk_add_f32 v[{XF+i}:{XF+i+1}], v[{XF+i}:{XF+i+1}], v[{mean}:{mean+1}] op_sel_hi:[1,0]")
    k(f"v_pk_mul_f32 v[{s}:{s+1}], v[{XF}:{XF+1}], v[{XF}:{XF+1}]")
    for i in range(2, 32, 2): k(f"v_pk_fma_f32 v[{s}:{s+1}], v[{XF+i}:{XF+i+1}], v[{XF+i}:{XF+i+1}], v[{s}:{s+1}]")
    k(f"v_add_f32 v{s}, v{s}, v{t1}")
    xlane_sum(k, s, t1)
    k(f"""ds_write_b32 v{b}, v{s} offset:512
    s_waitcnt lgkmcnt(0)
    s_barrier
    s_cmp_lg_u32 s42, 0
    s_cbranch_scc1 L_f1_end
    ds_read_b128 v[{T+4}:{T+7}], v{a} offset:512
    ds_read_b128 v[{T+8}:{T+11}], v{a} offset:528
    s_waitcnt lgkmcnt(0)""")
    for i in range(5, 12): k(f"v_add_f32 v{T+4}, v{T+4}, v{T+i}")
    k(f"v_mul_f32 v{T+5}, {hex(f2u(1/1024))}, v{T+4}")
    ln_finish(k, T+5, mean, T+4)
    k(f"""v_lshlrev_b32 v{a}, 3, v3
    s_lshl_b32 s44, s40, 7
    buffer_store_dwordx2 v[{T+4}:{T+5}], v{a}, s[24:27], s44 offen {WT}""")
    stamps_out(k, 7, 3)
    k("L_f1_end:\ns_endpgm")
    return k, (256, 512, 32768 + 8192)

def ln_finish(k, var, nmean, off):
    round_bf16(k, var)
    k(f"v_add_f32 v{var}, {hex(f2u(1e-5))}, v{var}")
    round_bf16(k, var)
    k(f"v_sqrt_f32 v{var}, v{var}\ns_nop 0")
    round_bf16(k, var)
    k(f"v_rcp_f32 v{var}, v{var}")
    round_bf16(k, nmean)
    k(f"v_mul_f32 v{off}, v{nmean}, v{var}")

def ln_apply(k, xp, n, xf, st, scl, shf):
    for i in range(n):
        k(f"v_lshlrev_b32 v{xf+2*i}, 16, v{xp+i}\nv_and_b32 v{xf+2*i+1}, 0xffff0000, v{xp+i}")
    for i in range(n):
        k(f"v_pk_fma_f32 v[{xf+2*i}:{xf+2*i+1}], v[{xf+2*i}:{xf+2*i+1}], v[{st}:{st+1}], v[{st}:{st+1}] op_sel:[0,1,0] op_sel_hi:[1,1,0]")
    return lambda: [[k(f"v_pk_fma_f32 v[{xf+2*i}:{xf+2*i+1}], v[{xf+2*i}:{xf+2*i+1}], v[{scl+2*i}:{scl+2*i+1}], v[{shf+2*i}:{shf+2*i+1}]") for i in range(n)],
                    [k(f"v_cvt_pk_bf16_f32 v{xp+i}, v{xf+2*i}, v{xf+2*i+1}") for i in range(n)]]

def k_front2():
    k = Kern("front2_kernel", 168)
    XP, XF, SCL, SHF, ST = 8, 24, 56, 88, 120
    MODL = 131072
    k(f"""s_cmp_ge_u32 s2, 256
    s_cbranch_scc1 L_f2_end""")
    stamp(k, 0)
    k(f"""v_lshrrev_b32 v1, 6, v0
    v_and_b32 v2, 63, v0
    v_readfirstlane_b32 s42, v1
    s_cmp_lt_u32 s2, 128
    s_cbranch_scc1 L_f2_main
    s_load_dwordx2 s[8:9], s[0:1], {A_WO}
    s_load_dwordx2 s[10:11], s[0:1], {A_WS}
    v_lshlrev_b32 v3, 4, v2
    s_waitcnt lgkmcnt(0)""")
    pack_begin(k, "att", 8, 128)
    srd_ws(k, 20, 10, WS_WQP, 2*MB)
    k(f"""s_sub_u32 s49, s2, 128
    s_lshr_b32 s49, s49, 3
    s_lshl_b32 s49, s49, 2
    s_add_u32 s49, s49, s42
    s_sub_u32 s49, s49, 4
    s_lshl_b32 s49, s49, 15
    s_cmp_lt_u32 s42, 4
    s_cselect_b32 s49, 0x40000000, s49
    v_lshlrev_b32 v4, 7, v2""")
    if os.environ.get("WQPULL", "0") == "1":
        for i in range(4): k(f"buffer_load_dword v5, v4, s[20:23], s49 offen\ns_add_u32 s49, s49, 8192")
    pack_end(k, "att", WS_WOP)
    stamp(k, 1); stamp(k, 2)
    stamps_out(k, 8, 3)
    k(f"""s_endpgm
    L_f2_main:
    s_load_dwordx2 s[4:5], s[0:1], {A_X}
    s_load_dwordx2 s[6:7], s[0:1], {A_WK}
    s_load_dwordx2 s[8:9], s[0:1], {A_WV}
    s_load_dwordx2 s[10:11], s[0:1], {A_WS}""")
    tb_map(k, 40)
    k(f"""v_and_b32 v3, 15, v2             ; t
    v_lshrrev_b32 v4, 4, v2          ; g
    v_lshlrev_b32 v5, 11, v3
    v_lshl_add_u32 v5, v4, 4, v5
    v_lshlrev_b32 v6, 4, v0          ; tid*16
    v_lshlrev_b32 v7, 3, v3
    s_lshl_b32 s43, s40, 15
    s_lshl_b32 s44, s42, 8
    s_add_u32 s43, s43, s44
    s_lshl_b32 s44, s40, 7
    s_waitcnt lgkmcnt(0)""")
    srd_ws(k, 24, 10, WS_MODP, 4*6144*4)
    for p in range(4):
        k(f"s_mov_b32 s45, {p*6144*4}\nbuffer_load_dwordx4 {vr(SCL+4*p,4)}, v6, s[24:27], s45 offen")
    srd_arg(k, 12, 4, 0, 4*MB)
    srd_ws(k, 28, 10, WS_ST1, 2048*8)
    k("s_barrier")
    for i in range(4):
        k(f"buffer_load_dwordx4 v[{XP+4*i}:{XP+4*i+3}], v5, s[12:15], s43 offen offset:{64*i}")
    k(f"buffer_load_dwordx2 v[{ST}:{ST+1}], v7, s[28:31], s44 offen")
    srd_arg(k, 16, 6, 0, 65536)
    srd_arg(k, 20, 8, 0, 65536)
    k(f"""v_lshrrev_b32 v7, 2, v2
    v_and_b32 v136, 3, v2
    v_lshrrev_b32 v137, 5, v2
    v_lshlrev_b32 v137, 1, v137
    v_xor_b32 v136, v136, v137
    v_lshlrev_b32 v7, 6, v7
    v_lshl_add_u32 v7, v136, 4, v7
    s_lshl_b32 s46, s42, 13
    s_lshl_b32 s47, s42, 14
    s_add_u32 s48, s46, 4096
    """)
    def wdma(mat, h):
        srd = 16 + 4*mat
        k(f"s_add_u32 m0, s47, {mat*8192 + h*4096}\ns_nop 0")
        for i in range(4):
            k(f"buffer_load_dwordx4 v7, s[{srd}:{srd+3}], s{46 if h == 0 else 48} offen offset:{1024*i} lds")
    srd_ws(k, 28, 10, WS_H1, SZ_ACT)
    srd_ws(k, 32, 10, WS_KV, 262144)
    stamp(k, 1)
    k(f"""s_cmp_ge_u32 s42, 4
    s_cselect_b32 s45, 1.0, 0
    v_add_u32 v6, {MODL}, v6
    s_waitcnt vmcnt(5)""")
    stamp(k, 2)
    for p in range(1, 4):
        for h in range(2): k(f"v_pk_add_f32 {vr(SCL+2*h,2)}, {vr(SCL+2*h,2)}, {vr(SCL+4*p+2*h,2)}")
    for j in range(4): round_bf16(k, SCL+j)
    for j in range(4): k(f"v_add_f32 v{SCL+j}, s45, v{SCL+j}")
    for j in range(4): round_bf16(k, SCL+j)
    k(f"""ds_write_b128 v6, {vr(SCL,4)}
    s_lshl_b32 s45, s42, 9
    s_add_u32 s45, s45, {MODL}
    v_lshl_add_u32 v6, v4, 5, s45""")
    wdma(0, 0)
    k("s_waitcnt lgkmcnt(0)\ns_barrier")
    for i in range(4):
        for h in range(2):
            k(f"ds_read_b128 {vr(SHF+8*i+4*h,4)}, v6 offset:{128*i+16*h}")
            k(f"ds_read_b128 {vr(SCL+8*i+4*h,4)}, v6 offset:{4096+128*i+16*h}")
    wdma(1, 0)
    k("s_waitcnt vmcnt(8)")
    fin = ln_apply(k, XP, 16, XF, ST, SCL, SHF)
    wdma(0, 1)
    k("s_waitcnt lgkmcnt(0)")
    fin()
    wdma(1, 1)
    stamp(k, 3)
    k(f"""s_lshr_b32 s49, s40, 3
    s_lshl_b32 s49, s49, 18
    s_and_b32 s50, s40, 7
    s_lshl_b32 s50, s50, 10
    s_add_u32 s49, s49, s50
    s_lshl_b32 s50, s42, 15
    s_add_u32 s49, s49, s50
    v_lshlrev_b32 v136, 4, v2
    v_lshrrev_b32 v137, 2, v3
    v_lshl_add_u32 v137, v4, 3, v137
    v_lshlrev_b32 v137, 6, v137
    v_and_b32 v138, 3, v2
    v_lshl_add_u32 v137, v138, 3, v137
    v_and_b32 v138, 1, v4
    v_lshlrev_b32 v138, 5, v138
    v_add_u32 v137, s47, v137
    v_add_u32 v139, v137, v138
    v_xor_b32 v138, 32, v138
    v_add_u32 v140, v137, v138
    s_waitcnt vmcnt(0)""")
    stamp(k, 4)
    ACC = 144; WF = XF
    for i in range(4):
        for mat in range(2):
            for nt in range(2):
                b = WF + 16*i + 8*mat + 4*nt
                off = mat*8192 + i*2048
                k(f"ds_read_b64_tr_b16 v[{b}:{b+1}], v{139+nt} offset:{off}")
                k(f"ds_read_b64_tr_b16 v[{b+2}:{b+3}], v{139+nt} offset:{off+256}")
        k(f"s_add_u32 s50, s49, {8192*i}\nbuffer_store_dwordx4 v[{XP+4*i}:{XP+4*i+3}], v136, s[28:31], s50 offen {H1ST}")
    for i in range(4):
        if i < 3: k(f"s_waitcnt lgkmcnt({min(15, 8*(3-i))})")
        else: k("s_waitcnt lgkmcnt(0)")
        for mat in range(2):
            for nt in range(2):
                b = WF + 16*i + 8*mat + 4*nt
                c = ACC + 8*mat + 4*nt
                cin = "0" if i == 0 else vr(c, 4)
                if mat == 0: k(f"v_mfma_f32_16x16x32_bf16 {vr(c,4)}, {vr(b,4)}, {vr(XP+4*i,4)}, {cin}")
                else:        k(f"v_mfma_f32_16x16x32_bf16 {vr(c,4)}, {vr(XP+4*i,4)}, {vr(b,4)}, {cin}")
    k(f"v_add_u32 v137, s47, v136\ns_nop 6")
    for j in range(4): k(f"ds_write_b128 v137, {vr(ACC+4*j,4)} offset:{1024*j}")
    k(f"""s_waitcnt lgkmcnt(0)
    s_barrier
    s_cmp_ge_u32 s42, 2
    s_cbranch_scc1 L_f2_end""")
    stamp(k, 5)
    k(f"""s_lshl_b32 s51, s42, 11
    v_add_u32 v137, s51, v136
    v_add_u32 v138, 0x10000, v137""")
    for p in range(8):
        a = 137 if p < 4 else 138
        for nt in range(2):
            k(f"ds_read_b128 {vr(24+8*p+4*nt,4)}, v{a} offset:{(p%4)*16384+1024*nt}")
    k(f"""s_lshr_b32 s52, s40, 1
    s_lshl_b32 s52, s52, 12
    s_and_b32 s53, s40, 1
    v_and_b32 v137, 1, v4
    v_lshrrev_b32 v138, 1, v4
    v_lshlrev_b32 v138, 9, v138
    v_lshl_add_u32 v138, v3, 4, v138""")
    for p in range(1, 8):
        k(f"s_waitcnt lgkmcnt({2*(7-p)})")
        for j in range(0, 8, 2): k(f"v_pk_add_f32 {vr(24+j,2)}, {vr(24+j,2)}, {vr(24+8*p+j,2)}")
    for j in range(4): k(f"v_cvt_pk_bf16_f32 v{120+j}, v{24+2*j}, v{25+2*j}")
    k(f"""s_cmp_eq_u32 s42, 1
    s_cbranch_scc1 L_f2_v
    s_lshl_b32 s53, s53, 8
    s_add_u32 s52, s52, s53
    v_lshl_add_u32 v137, v137, 10, v138
    buffer_store_dwordx4 v[120:123], v137, s[32:35], s52 offen {WT}""")
    stamp(k, 6)
    stamps_out(k, 1, 7)
    k(f"""s_endpgm
    L_f2_v:
    s_lshl_b32 s53, s53, 10
    s_add_u32 s52, s52, s53
    v_lshl_add_u32 v137, v137, 3, v138
    buffer_store_dwordx2 v[120:121], v137, s[32:35], s52 offen offset:2048 {WT}
    buffer_store_dwordx2 v[122:123], v137, s[32:35], s52 offen offset:2304 {WT}
    L_f2_end:
    s_endpgm""")
    return k, (256, 512, 131072 + 8192)

H1ST = os.environ.get("H1ST", WT)
H2ST = os.environ.get("H2ST", WT)

def k_ln2():
    k = Kern("ln2_kernel", 88)
    XP, XF, SCL, SHF, PT = 8, 16, 32, 48, 64
    k(f"s_cmp_ge_u32 s2, 256\ns_cbranch_scc1 L_ln2_end")
    stamp(k, 0)
    k(f"s_load_dwordx2 s[10:11], s[0:1], {A_WS}")
    tb_map(k, 40, 0, 1)
    k(f"""v_lshrrev_b32 v1, 6, v0
    v_and_b32 v2, 63, v0
    v_readfirstlane_b32 s42, v1
    v_and_b32 v3, 15, v2
    v_lshrrev_b32 v4, 4, v2
    v_lshlrev_b32 v5, 4, v2
    v_lshlrev_b32 v6, 4, v4
    v_lshlrev_b32 v7, 8, v3
    v_lshl_add_u32 v7, v4, 6, v7     ; t*256 + g*64
    s_bfe_u32 s43, s2, 0x10003
    s_lshl_b32 s43, s43, 3
    s_add_u32 s43, s43, s42
    s_lshr_b32 s49, s40, 3
    s_lshl_b32 s49, s49, 18
    s_and_b32 s50, s40, 7
    s_lshl_b32 s50, s50, 10
    s_add_u32 s49, s49, s50
    s_lshl_b32 s50, s43, 14
    s_add_u32 s49, s49, s50
    s_add_u32 s50, s49, 8192
    s_lshl_b32 s44, s43, 8
    s_add_u32 s45, s44, {4096*4}
    s_add_u32 s44, s44, {3072*4}
    s_lshl_b32 s46, s40, 12
    s_waitcnt lgkmcnt(0)""")
    srd_ws(k, 20, 10, WS_ST2, 2048*256)
    for i in range(4): k(f"buffer_load_dwordx4 {vr(PT+4*i,4)}, v7, s[20:23], s46 offen offset:{16*i}")
    srd_ws(k, 28, 10, WS_X1, SZ_ACT)
    k(f"buffer_load_dwordx4 {vr(XP,4)}, v5, s[28:31], s49 offen\nbuffer_load_dwordx4 {vr(XP+4,4)}, v5, s[28:31], s50 offen")
    srd_ws(k, 24, 10, WS_MOD, 6144*4)
    for i in range(2):
        for h in range(2):
            k(f"buffer_load_dwordx4 {vr(SHF+8*i+4*h,4)}, v6, s[24:27], s44 offen offset:{128*i+64*h}")
            k(f"buffer_load_dwordx4 {vr(SCL+8*i+4*h,4)}, v6, s[24:27], s45 offen offset:{128*i+64*h}")
    srd_ws(k, 32, 10, WS_H2, SZ_ACT)
    stamp(k, 1)
    k("s_waitcnt vmcnt(10)")
    stamp(k, 2)
    for i in range(1, 8): k(f"v_pk_add_f32 {vr(PT,2)}, {vr(PT,2)}, {vr(PT+2*i,2)}")
    xlane_sum(k, PT, PT+2); xlane_sum(k, PT+1, PT+3)
    k(f"""v_mul_f32 v{PT+2}, {hex(f2u(-1/1024))}, v{PT}
    v_mul_f32 v{PT+1}, {hex(f2u(1/1024))}, v{PT+1}
    v_fma_f32 v{PT+1}, -v{PT+2}, v{PT+2}, v{PT+1}
    v_max_f32 v{PT+1}, 0, v{PT+1}""")
    ln_finish(k, PT+1, PT+2, PT)
    k("s_waitcnt vmcnt(8)")
    fin = ln_apply(k, XP, 8, XF, PT, SCL, SHF)
    k("s_waitcnt vmcnt(0)")
    fin()
    stamp(k, 3)
    k(f"buffer_store_dwordx4 {vr(XP,4)}, v5, s[32:35], s49 offen {H2ST}\nbuffer_store_dwordx4 {vr(XP+4,4)}, v5, s[32:35], s50 offen {H2ST}")
    stamps_out(k, 4, 4)
    k("L_ln2_end:\ns_endpgm")
    return k, (256, 512, 0)

from gen_gemm import k_gemm
from gen_attn import k_attn

def build(path):
    ks = [k_front1(), k_front2(), k_attn(os.environ.get("FORCEFB") == "1"), k_gemm("oproj"), k_ln2(), k_gemm("w1"), k_gemm("w2")]
    nd = int(os.environ.get("DUMMY", "0"))
    if nd:
        d = Kern("dummy_kernel", 8); d("s_endpgm")
        ks_extra = [(d, (256, 64, 0))] * nd
    else: ks_extra = []
    hdr = ["; adaLN + MQA attention + SiLU MLP block, gfx950. Generated by gen/gen.py (hand-written generator)."]
    for k, (g, b, lds) in ks + ks_extra:
        hdr.append(f"; @launch kernel={k.name} grid=({g},1,1) block=({b},1,1) lds={lds}")
    ks = ks + ks_extra[:1]
    out = "\n".join(hdr) + '\n.amdgcn_target "amdgcn-amd-amdhsa--gfx950"\n.text\n'
    bad = 0
    for k, _ in ks:
        errs, stats = check(k)
        print(f"{k.name}: maxv={stats[0]} maxs={stats[1]} ninstr={stats[3]}", file=sys.stderr)
        for e in errs: print("HAZARD", e, file=sys.stderr); bad += 1
        out += k.text()
    out += '.section .rodata,"a"\n'
    for k, _ in ks: out += k.desc()
    open(path, "w").write(out)
    return bad

if __name__ == "__main__":
    p = sys.argv[1] if len(sys.argv) > 1 else f"cdna_kernels/{NAME}.s"
    sys.exit(1 if build(p) else 0)
```

```python
from asmlib import Kern, vr, sr, check
NAME = "adaLN_cond__grouped_kv_mqa__dense_activation_silu__prompt"
A_X, A_WQ, A_WK, A_WV, A_WO, B_X, B_W1, B_W2, A_C, A_WMOD, A_OUT, A_DBG, A_WS = [8*i for i in range(13)]
MB = 1 << 20
WS_MOD = 0
WS_MODP = 65536
WS_SC = 196608
WS_ST1 = 262144
WS_ST2 = 524288
WS_H1 = 1*MB
WS_KV = 5*MB
WS_O = 6*MB
WS_X1 = 10*MB
WS_H2 = 14*MB
WS_U = 18*MB
WS_WQP = 32*MB
WS_WOP = 34*MB
WS_W1P = 36*MB
WS_W2P = 43*MB
SZ_ACT = 4*MB
SZ_U = 2048*3584*2
LOG2E = 1.4426950408889634
def f2u(x):
    import struct
    return struct.unpack("<I", struct.pack("<f", x))[0]

def srd_arg(k, d, tmp, argoff, size):
    k(f"s_mov_b32 s{d}, s{tmp}\ns_and_b32 s{d+1}, s{tmp+1}, 0xffff\ns_mov_b32 s{d+2}, {size}\ns_mov_b32 s{d+3}, 0x20000")
def srd_ws(k, d, ws, off, size):
    k(f"s_add_u32 s{d}, s{ws}, {off}\ns_addc_u32 s{d+1}, s{ws+1}, 0\ns_and_b32 s{d+1}, s{d+1}, 0xffff\ns_mov_b32 s{d+2}, {size}\ns_mov_b32 s{d+3}, 0x20000")

def xlane_sum(k, v, t, op="v_add_f32"):
    k(f"v_mov_b32 v{t}, v{v}\ns_nop 1\nv_permlane16_swap_b32 v{v}, v{t}\n{op} v{v}, v{v}, v{t}")
    k(f"v_mov_b32 v{t}, v{v}\ns_nop 1\nv_permlane32_swap_b32 v{v}, v{t}\n{op} v{v}, v{v}, v{t}")

def round_bf16(k, v):
    k(f"v_cvt_pk_bf16_f32 v{v}, v{v}, v{v}\nv_and_b32 v{v}, 0xffff0000, v{v}")


import os
TIMING = os.environ.get("TIMING", "0") != "0"
TINS = "s_memtime" if os.environ.get("TIMING") == "2" else "s_memrealtime"
WS_TIME = 56*MB
TS0 = 70
def stamp(k, i):
    if TIMING: k(f"{TINS} s[{TS0+2*i}:{TS0+2*i+1}]")
def stamps_out(k, kidx, n, wsreg=10, vtmp=0):
    if not TIMING: return
    k(f"""s_waitcnt vmcnt(0) lgkmcnt(0)
    {TINS} s[{TS0+2*n}:{TS0+2*n+1}]
    s_add_u32 s66, s{wsreg}, {WS_TIME + kidx*262144}
    s_addc_u32 s67, s{wsreg+1}, 0
    s_lshl_b32 s94, s2, 9
    s_lshl_b32 s95, s42, 6
    s_add_u32 s94, s94, s95
    v_mov_b32 v{vtmp}, s94
    s_waitcnt lgkmcnt(0)""")
    for i in range(n+1):
        k(f"v_mov_b32 v{vtmp+1}, s{TS0+2*i}\nglobal_store_dword v{vtmp}, v{vtmp+1}, s[66:67] offset:{4*i}")
    k("s_waitcnt vmcnt(0)")

PRE_AT = int(os.environ.get("PRE_AT", "4"))
WT = "sc0 sc1"
ORD = {"nat": (16, 8, 4), "split": (8, 4, 16), "att": (16, 4, 8)}

def pack_addr(k, order, pitch, vl, vsrc, vtr, vt, stmp):
    a, b, sel = ORD[order]
    k(f"""v_lshrrev_b32 v{vsrc}, 3, v{vl}
    s_mov_b32 s{stmp}, {pitch}
    v_mul_lo_u32 v{vsrc}, v{vsrc}, s{stmp}
    v_and_b32 v{vt}, 7, v{vl}
    v_lshl_add_u32 v{vsrc}, v{vt}, 4, v{vsrc}
    v_bfe_u32 v{vtr}, v{vl}, 2, 2
    v_bfe_u32 v{vt}, v{vl}, 4, 1
    v_lshl_add_u32 v{vtr}, v{vt}, {b.bit_length()-1}, v{vtr}
    v_lshrrev_b32 v{vt}, 5, v{vl}
    v_lshl_add_u32 v{vtr}, v{vt}, {a.bit_length()-1}, v{vtr}
    v_lshlrev_b32 v{vtr}, 7, v{vtr}
    v_and_b32 v{vt}, 3, v{vl}
    v_lshl_add_u32 v{vtr}, v{vt}, 3, v{vtr}""")

def pack_issue(k, srd, pitch, vsrc, s_src, s_lds, stmp):
    for i in range(4):
        k(f"s_add_u32 m0, s{s_lds}, {1024*i}\ns_add_u32 s{stmp}, s{s_src}, {8*i*pitch}")
        k(f"buffer_load_dwordx4 v{vsrc}, s[{srd}:{srd+3}], s{stmp} offen lds")

def pack_read(k, order, vaddr, F):
    sel = ORD[order][2]
    for nt in range(4):
        k(f"ds_read_b64_tr_b16 {vr(F+4*nt,2)}, v{vaddr} offset:{32*nt}")
        k(f"ds_read_b64_tr_b16 {vr(F+4*nt+2,2)}, v{vaddr} offset:{32*nt+128*sel}")

def wg_map(k, mode, rb, ct, tmp=39):
    lr = {"R2": 1, "R4": 2, "R8": 3, "R16": 4}[mode]
    k(f"""s_and_b32 s{rb}, s2, 7
    s_lshr_b32 s3, s2, 3
    s_and_b32 s{ct}, s{rb}, {(1 << (lr-1)) - 1}
    s_lshl_b32 s{ct}, s{ct}, {5-lr}
    s_lshr_b32 s{rb}, s{rb}, {lr-1}
    s_lshl_b32 s{rb}, s{rb}, {lr}
    s_and_b32 s{tmp}, s3, {(1 << lr) - 1}
    s_or_b32 s{rb}, s{rb}, s{tmp}
    s_lshr_b32 s{tmp}, s3, {lr}
    s_or_b32 s{ct}, s{ct}, s{tmp}""")

def interleave(mf, other, start=0, step=1):
    slots = [[] for _ in mf]
    for i, o in enumerate(other):
        slots[min(start + int(i*step), len(mf)-1)].append(o)
    out = []
    for m, s in zip(mf, slots):
        out.append(m); out += s
    return out

class Gemm:
    def __init__(self, k, name, KB, KS, NS, BN, base=0):
        self.k, self.name, self.KB, self.KS, self.NS, self.BN, self.base = k, name, KB, KS, NS, BN, base
        self.S = KB // KS
        self.ASZ = KS * 8192
        self.BSZ = KS * BN * 64
        self.STG = self.ASZ + self.BSZ
        self.LDS = self.STG * NS
        self.NT = BN // 32; self.MT = 4
        self.bper = self.BSZ // 4
        self.nb = (self.bper + 1023) // 1024
        self.d = 2*KS + self.nb
    def L(self, s): return f"L_{self.name}_{s}"
    def slot_adv(self):
        return [f"s_add_u32 s53, s53, {self.STG}", f"s_cmp_eq_u32 s53, {self.base+self.LDS}", f"s_cselect_b32 s53, {self.base}, s53"]
    def issue(self):
        k = self.k
        k("s_add_u32 m0, s53, s46\ns_add_u32 s54, s53, s49")
        for i in range(2*self.KS):
            k(f"buffer_load_dwordx4 v3, s[12:15], s45 offen offset:{1024*i} lds")
        k(f"s_mov_b32 m0, s54\ns_add_u32 s45, s45, {self.ASZ}")
        for i in range(self.nb):
            half = (i+1)*1024 > self.bper
            if half: k("s_mov_b32 exec_hi, 0")
            k(f"buffer_load_dwordx4 v3, s[16:19], s47 offen offset:{1024*i} lds")
            if half: k("s_mov_b32 exec_hi, -1")
        k(f"s_add_u32 s47, s47, {self.BSZ}")
        k("\n".join(self.slot_adv()))
    def loader(self, tail_hooks=None):
        k, S, NS, d = self.k, self.S, self.NS, self.d
        tail_hooks = tail_hooks or {}
        k(f"""s_sub_u32 s43, s42, 4
        s_mul_i32 s45, s40, {self.KB*8192}
        s_mul_i32 s46, s43, {2*self.KS*1024}
        s_add_u32 s45, s45, s46
        s_mul_i32 s47, s41, {self.KB*self.BN*64}
        s_mul_i32 s49, s43, {self.bper}
        s_add_u32 s47, s47, s49
        s_add_u32 s49, s49, {self.ASZ}
        s_mov_b32 s53, {self.base}""")
        issued = 0
        def iss(n):
            nonlocal issued
            for _ in range(n): self.issue(); issued += 1
        iss(2)
        stamp(k, 1)
        k(f"s_waitcnt vmcnt({(issued-1)*d})")
        stamp(k, 2)
        k("s_barrier")
        iss(min(2, NS-2))
        s = 0
        while issued < s + NS:
            k(f"s_waitcnt vmcnt({(issued-(s+2))*d})\ns_barrier")
            iss(min(2, s + NS + 1 - issued))
            s += 1
        assert issued == s + NS
        k(f"s_mov_b32 s56, {S-NS-s}\n{self.L('lloop')}:")
        k(f"s_waitcnt vmcnt({(NS-2)*d})\ns_barrier")
        self.issue()
        k(f"s_sub_u32 s56, s56, 1\ns_cmp_lg_u32 s56, 0\ns_cbranch_scc1 {self.L('lloop')}")
        extra = 0
        for i, s in enumerate(range(S-NS, S)):
            k(f"s_waitcnt vmcnt({max(0, S-2-s)*d + extra})\ns_barrier")
            if i in tail_hooks:
                fn, n = tail_hooks[i]; fn(); extra += n
    def compute(self, X, ACC, va, vb, vca, vcb, pre=None):
        k, KS, MT, NT = self.k, self.KS, self.MT, self.NT
        NF = KS * (MT + NT); Y = X + 4*NF
        k(f"""s_lshl_b32 s45, s43, 12
        v_add_u32 v{va}, s45, v3
        s_mul_i32 s46, s44, {NT*1024}
        s_add_u32 s46, s46, {self.ASZ}
        v_add_u32 v{vb}, s46, v3
        s_mov_b32 s53, {self.base}""")
        for i in range(4*MT*NT): k(f"v_mov_b32 v{ACC+i}, 0")
        upd = [f"v_add_u32 v{vca}, s53, v{va}", f"v_add_u32 v{vcb}, s53, v{vb}"] + self.slot_adv()
        def reads(F):
            r = []
            for ks in range(KS):
                f = F + 4*ks*(MT+NT)
                a = [f"ds_read_b128 {vr(f+4*m,4)}, v{vca} offset:{ks*8192+1024*m}" for m in range(MT)]
                b = [f"ds_read_b128 {vr(f+4*MT+4*n,4)}, v{vcb} offset:{ks*self.BN*64+1024*n}" for n in range(NT)]
                r += [b[0]] + a + b[1:]
            return r
        def mfmas(F):
            r = []
            for ks in range(KS):
                f = F + 4*ks*(MT+NT)
                for n in range(NT):
                    for m in range(MT):
                        a = ACC + 4*(m*NT + n)
                        r.append(f"v_mfma_f32_16x16x32_bf16 {vr(a,4)}, {vr(f+4*MT+4*n,4)}, {vr(f+4*m,4)}, {vr(a,4)}")
            return r
        k("\n".join(upd))
        stamp(k, 1)
        k("s_barrier")
        stamp(k, 2)
        k("\n".join(reads(X) + upd))
        k(f"s_mov_b32 s56, {self.S//2}\ns_waitcnt lgkmcnt(0)")
        k(f".p2align 6\n{self.L('cloop')}:")
        for (cu, nx) in ((X, Y), (Y, X)):
            k("s_barrier")
            mf = mfmas(cu); oth = reads(nx) + upd
            k("\n".join(interleave(mf, oth, 0, min(1.0, (len(mf)-1)/len(oth)))))
            k("s_waitcnt lgkmcnt(0)")
        if pre:
            k(f"s_cmp_lg_u32 s56, {PRE_AT}\ns_cbranch_scc1 {self.L('nopre')}")
            pre()
            k(f"{self.L('nopre')}:")
        k(f"s_sub_u32 s56, s56, 1\ns_cmp_lg_u32 s56, 0\ns_cbranch_scc1 {self.L('cloop')}")
        return X + 8*NF

CODEPF = os.environ.get("CODEPF", "1") == "1"
def code_pull(k, first, last, vl, vt, sp=68):
    if not CODEPF: return 0
    lab = k.label("pc")
    n = CODE_LINES.get((first, last), 2)
    k(f"""s_getpc_b64 s[{sp}:{sp+1}]
    {lab}:
    s_add_u32 s{sp}, s{sp}, {first}-{lab}
    s_addc_u32 s{sp+1}, s{sp+1}, 0
    v_lshlrev_b32 v{vt}, 7, v{vl}""")
    for i in range(n):
        k(f"v_min_u32 v{vt+1}, {last}-{first}-4, v{vt}\nglobal_load_dword v{vt+2}, v{vt+1}, s[{sp}:{sp+1}]")
        if i + 1 < n: k(f"v_add_u32 v{vt}, 8192, v{vt}")
    return n
CODE_LINES = {("front2_kernel", "oproj_kernel"): 3, ("attn_kernel", "oproj_kernel"): 2, ("oproj_kernel", "w1_kernel"): 1, ("ln2_kernel", "w2_kernel"): 2, ("w2_kernel", "L_code_end"): 1}
```

```python
from common import *

CFG = {
  "oproj": dict(A=WS_O, Asz=SZ_ACT, KB=32, W=WS_WOP, Wsz=2*MB, BN=64, KS=2, NS=6, map="R2"),
  "w1":    dict(A=WS_H2, Asz=SZ_ACT, KB=32, W=WS_W1P, Wsz=7*MB, BN=224, KS=1, NS=7, map="R8"),
  "w2":    dict(A=WS_U, Asz=SZ_U, KB=112, W=WS_W2P, Wsz=7*MB, BN=64, KS=2, NS=6, map="R4"),
}
for nm in CFG:
    if os.environ.get("MAP_" + nm): CFG[nm]["map"] = os.environ["MAP_" + nm]
UST = os.environ.get("UST", WT)
X1ST = os.environ.get("X1ST", WT)
OUTST = os.environ.get("OUTST", WT)

def k_gemm(name):
    c = CFG[name]
    BN = c["BN"]
    k = Kern(f"{name}_kernel", 216 if BN == 224 else 192)
    G = Gemm(k, name, c["KB"], c["KS"], c["NS"], BN)
    L = G.L
    NT = G.NT
    k(f"s_cmp_ge_u32 s2, 256\ns_cbranch_scc1 {L('end')}")
    stamp(k, 0)
    KIDX = {"oproj": 3, "w1": 5, "w2": 6}[name]
    k(f"s_load_dwordx2 s[10:11], s[0:1], {A_WS}")
    if name == "oproj": k(f"s_load_dwordx2 s[6:7], s[0:1], {A_X}")
    if name == "w2": k(f"s_load_dwordx2 s[6:7], s[0:1], {A_OUT}")
    wg_map(k, c["map"], 40, 41)
    k(f"""v_lshrrev_b32 v1, 6, v0
    v_and_b32 v2, 63, v0
    v_readfirstlane_b32 s42, v1
    v_lshlrev_b32 v3, 4, v2
    s_waitcnt lgkmcnt(0)""")
    srd_ws(k, 12, 10, c["A"], c["Asz"])
    srd_ws(k, 16, 10, c["W"], c["Wsz"])
    k(f"s_cmp_lt_u32 s42, 4\ns_cbranch_scc1 {L('compute')}")
    def cp():
        k(f"s_cmp_lg_u32 s42, 7\ns_cbranch_scc1 {L('nopull')}")
        code_pull(k, *{"oproj": ("ln2_kernel", "w2_kernel"), "w1": ("w2_kernel", "L_code_end")}[name], 2, 20)
        k(f"{L('nopull')}:")
    G.loader({G.NS-1: (cp, 0)} if name != "w2" else None)
    if name == "oproj":
        k(f"""s_cmp_lg_u32 s42, 4
        s_cbranch_scc1 {L('lend')}
        s_cmp_ge_u32 s2, 48
        s_cbranch_scc1 {L('lend')}""")
        srd_ws(k, 24, 10, 0, WS_MODP + 4*6144*4)
        k(f"s_lshl_b32 s57, s2, 8\ns_add_u32 s57, s57, {3072*4}\nv_lshlrev_b32 v4, 2, v2")
        for p in range(4): k(f"s_add_u32 s58, s57, {WS_MODP + p*6144*4}\nbuffer_load_dword v{8+p}, v4, s[24:27], s58 offen")
        k(f"""s_lshr_b32 s58, s2, 4
        s_cmp_eq_u32 s58, 1
        s_cselect_b32 s58, 1.0, 0
        s_waitcnt vmcnt(0)
        v_add_f32 v8, v8, v9
        v_add_f32 v10, v10, v11
        v_add_f32 v8, v8, v10""")
        round_bf16(k, 8)
        k("v_add_f32 v8, s58, v8")
        round_bf16(k, 8)
        k(f"buffer_store_dword v8, v4, s[24:27], s57 offen {WT}\n{L('lend')}:")
    stamp(k, 3)
    stamps_out(k, KIDX, 4)
    k("s_endpgm")
    k(f"{L('compute')}:")
    X = 12
    NF = G.KS * (G.MT + NT)
    ACC = X + 8*NF
    EPI = ACC + 16*NT
    k(f"""s_and_b32 s43, s42, 1            ; th
    s_lshr_b32 s44, s42, 1           ; nh
    v_and_b32 v4, 15, v2             ; t
    v_lshrrev_b32 v5, 4, v2          ; g""")
    if name in ("oproj", "w2"):
        srd_ws(k, 24, 10, WS_MODP if name == 'oproj' else WS_MOD, 4*6144*4)
        gate = 2048 if name == "oproj" else 5120
        srd_ws(k, 20, 10, WS_X1, SZ_ACT)
        srd_arg(k, 28, 6, 0, 4*MB)
        k(f"""s_lshl_b32 s57, s41, 8
        s_lshl_b32 s58, s44, 7
        s_add_u32 s57, s57, s58
        s_add_u32 s57, s57, {gate*4}
        s_lshl_b32 s59, s40, 18
        s_lshl_b32 s58, s41, 14
        s_add_u32 s59, s59, s58
        s_lshl_b32 s58, s44, 13
        s_add_u32 s59, s59, s58
        s_lshl_b32 s58, s43, 12
        s_add_u32 s59, s59, s58
        s_lshl_b32 s60, s40, 18
        s_lshl_b32 s58, s43, 17
        s_add_u32 s60, s60, s58
        s_lshl_b32 s58, s41, 7
        s_add_u32 s60, s60, s58
        s_lshl_b32 s58, s44, 6
        s_add_u32 s60, s60, s58
        v_lshlrev_b32 v6, 4, v5
        v_lshlrev_b32 v7, 11, v4
        v_lshl_add_u32 v7, v5, 3, v7""")
    def pre():
        k(f"""buffer_load_dwordx4 {vr(EPI,4)}, v6, s[24:27], s57 offen
        buffer_load_dwordx4 {vr(EPI+4,4)}, v6, s[24:27], s57 offen offset:64""")
        if name == "oproj":
            for p in range(1, 4):
                k(f"""s_add_u32 s58, s57, {p*6144*4}
                buffer_load_dwordx4 {vr(EPI+16+8*p,4)}, v6, s[24:27], s58 offen
                buffer_load_dwordx4 {vr(EPI+20+8*p,4)}, v6, s[24:27], s58 offen offset:64""")
            for m in range(4):
                k(f"s_add_u32 s58, s60, {m*32768}")
                k(f"buffer_load_dwordx2 {vr(EPI+8+4*m,2)}, v7, s[28:31], s58 offen")
                k(f"buffer_load_dwordx2 {vr(EPI+10+4*m,2)}, v7, s[28:31], s58 offen offset:32")
        else:
            for m in range(4):
                k(f"buffer_load_dwordx4 {vr(EPI+8+4*m,4)}, v3, s[20:23], s59 offen offset:{1024*m}")
    if name == 'w1': srd_ws(k, 20, 10, WS_U, SZ_U)
    G.compute(X, ACC, 8, 9, 10, 11, pre if name != 'w1' else None)
    stamp(k, 3)
    if BN == 64:
        k("s_waitcnt vmcnt(0)")
        if name == "oproj":
            for j in range(0, 8, 2):
                k(f"v_pk_add_f32 {vr(EPI+j,2)}, {vr(EPI+j,2)}, {vr(EPI+24+j,2)}\nv_pk_add_f32 {vr(EPI+32+j,2)}, {vr(EPI+32+j,2)}, {vr(EPI+40+j,2)}")
            for j in range(0, 8, 2):
                k(f"v_pk_add_f32 {vr(EPI+j,2)}, {vr(EPI+j,2)}, {vr(EPI+32+j,2)}")
            for j in range(0, 8, 2):
                k(f"v_cvt_pk_bf16_f32 v{EPI+j+1}, v{EPI+j}, v{EPI+j+1}\nv_lshlrev_b32 v{EPI+j}, 16, v{EPI+j+1}\nv_and_b32 v{EPI+j+1}, 0xffff0000, v{EPI+j+1}")
        else: k("s_nop 7")
        T = X
        for m in range(4):
            xr = EPI + 8 + 4*m
            for n in range(2):
                for h in range(2):
                    a = ACC + 4*(m*2+n) + 2*h
                    t = T + 8*m + 4*n + 2*h
                    k(f"v_lshlrev_b32 v{t}, 16, v{xr+2*n+h}\nv_and_b32 v{t+1}, 0xffff0000, v{xr+2*n+h}")
                    k(f"v_pk_fma_f32 {vr(t,2)}, {vr(a,2)}, {vr(EPI+4*n+2*h,2)}, {vr(t,2)}")
                    k(f"v_cvt_pk_bf16_f32 v{xr+2*n+h}, v{t}, v{t+1}")
            if name == "oproj":
                k(f"buffer_store_dwordx4 {vr(xr,4)}, v3, s[20:23], s59 offen offset:{1024*m} {X1ST}")
        if name == "oproj":
            S1, S2 = T + 32, T + 40
            for m in range(4):
                t = T + 8*m
                k(f"v_pk_add_f32 {vr(S1+2*m,2)}, {vr(t,2)}, {vr(t+2,2)}\nv_pk_mul_f32 {vr(S2+2*m,2)}, {vr(t,2)}, {vr(t,2)}")
                k(f"v_pk_add_f32 {vr(S1+2*m,2)}, {vr(S1+2*m,2)}, {vr(t+4,2)}\nv_pk_fma_f32 {vr(S2+2*m,2)}, {vr(t+2,2)}, {vr(t+2,2)}, {vr(S2+2*m,2)}")
                k(f"v_pk_add_f32 {vr(S1+2*m,2)}, {vr(S1+2*m,2)}, {vr(t+6,2)}\nv_pk_fma_f32 {vr(S2+2*m,2)}, {vr(t+4,2)}, {vr(t+4,2)}, {vr(S2+2*m,2)}")
                k(f"v_pk_fma_f32 {vr(S2+2*m,2)}, {vr(t+6,2)}, {vr(t+6,2)}, {vr(S2+2*m,2)}")
            for m in range(4):
                k(f"v_add_f32 v{S1+2*m}, v{S1+2*m}, v{S1+2*m+1}\nv_add_f32 v{S1+2*m+1}, v{S2+2*m}, v{S2+2*m+1}")
            srd_ws(k, 24, 10, WS_ST2, 2048*256)
            for j in range(2): k(f"v_permlane16_swap_b32 v{S1+j}, v{S1+2+j}\nv_permlane16_swap_b32 v{S1+4+j}, v{S1+6+j}")
            k(f"v_pk_add_f32 {vr(S1,2)}, {vr(S1,2)}, {vr(S1+2,2)}\nv_pk_add_f32 {vr(S1+4,2)}, {vr(S1+4,2)}, {vr(S1+6,2)}")
            k(f"""s_lshl_b32 s57, s40, 15
            s_lshl_b32 s58, s43, 14
            s_add_u32 s57, s57, s58
            s_lshl_b32 s58, s41, 4
            s_add_u32 s57, s57, s58
            s_lshl_b32 s58, s44, 3
            s_add_u32 s57, s57, s58
            v_lshlrev_b32 v7, 8, v2""")
            for j in range(2): k(f"v_permlane32_swap_b32 v{S1+j}, v{S1+4+j}")
            k(f"v_pk_add_f32 {vr(S1,2)}, {vr(S1,2)}, {vr(S1+4,2)}")
            k(f"buffer_store_dwordx2 {vr(S1,2)}, v7, s[24:27], s57 offen")
        if name == "w2":
            k(f"""v_and_b32 v7, 1, v5
            v_lshlrev_b32 v7, 5, v7
            v_lshrrev_b32 v8, 1, v5
            v_lshl_add_u32 v7, v8, 4, v7
            v_lshl_add_u32 v7, v4, 11, v7""")
            for m in range(4):
                xr = EPI + 8 + 4*m
                k(f"v_permlane16_swap_b32 v{xr}, v{xr+2}\nv_permlane16_swap_b32 v{xr+1}, v{xr+3}")
                k(f"s_add_u32 s58, s60, {m*32768}")
                k(f"buffer_store_dwordx4 {vr(xr,4)}, v7, s[28:31], s58 offen {OUTST}")
    else:
        k(f"""s_mul_i32 s48, s40, {112*8192}
        s_mul_i32 s47, s41, {7*8192}
        s_add_u32 s48, s48, s47
        s_lshl_b32 s47, s43, 12
        s_add_u32 s48, s48, s47
        s_add_u32 s50, s48, {6*8192}
        s_lshl_b32 s47, s44, 3
        s_add_u32 s50, s50, s47
        s_mul_i32 s47, s44, {3*8192}
        s_add_u32 s48, s48, s47
        s_mov_b32 s51, {hex(f2u(-LOG2E))}""")
        T = X
        def silu4(a, dst):
            for i in range(4): k(f"v_mul_f32 v{T+i}, s51, v{a+i}")
            for i in range(4): k(f"v_exp_f32 v{T+i}, v{T+i}")
            for i in range(4): k(f"v_add_f32 v{T+i}, 1.0, v{T+i}")
            for i in range(4): k(f"v_rcp_f32 v{T+i}, v{T+i}")
            for i in range(4): k(f"v_mul_f32 v{T+i}, v{T+i}, v{a+i}")
            k(f"v_cvt_pk_bf16_f32 v{dst}, v{T}, v{T+1}\nv_cvt_pk_bf16_f32 v{dst+1}, v{T+2}, v{T+3}")
        P = T + 8
        cnt = 0
        for p in range(4):
            if p < 3: k(f"s_add_u32 s47, s48, {p*8192}")
            for m in range(4):
                o = P + 4*(cnt % 8); cnt += 1
                silu4(ACC + 4*(m*NT + 2*p), o)
                if p < 3:
                    silu4(ACC + 4*(m*NT + 2*p + 1), o + 2)
                    k(f"buffer_store_dwordx4 {vr(o,4)}, v3, s[20:23], s47 offen offset:{1024*m} {UST}")
                else:
                    k(f"buffer_store_dwordx2 {vr(o,2)}, v3, s[20:23], s50 offen offset:{1024*m} {UST}")
    stamps_out(k, KIDX, 4)
    k(f"{L('end')}:\ns_endpgm")
    return k, (256, 512, G.LDS)
```

```python
import sys, math
from common import *

def tb_map(k, dst, sub=0, shift=0):
    k(f"s_and_b32 s{dst}, s2, 7\ns_lshl_b32 s{dst}, s{dst}, 4\ns_sub_u32 s3, s2, {sub}\ns_lshr_b32 s3, s3, {3+shift}\ns_add_u32 s{dst}, s{dst}, s3")

def gemv_part(k, pfx, RW, lds, mid=None):
    NI = RW // 8
    k(f"""v_lshrrev_b32 v4, 3, v2          ; r
    v_and_b32 v5, 7, v2              ; c8
    v_mul_u32_u24 v6, {NI*12288}, v4
    v_lshl_add_u32 v6, v5, 4, v6
    s_lshl_b32 s30, s29, 3
    s_add_u32 s30, s30, s42
    s_mul_i32 s31, s30, {RW*2}
    s_mul_i32 s30, s30, {RW*12288}
    s_lshl_b32 s21, s28, 7
    s_add_u32 s30, s30, s21
    v_lshlrev_b32 v7, 2, v2
    s_waitcnt lgkmcnt(0)""")
    srd_arg(k, 12, 4, 0, 2048)
    srd_arg(k, 16, 6, 0, 1024*12288)
    srd_ws(k, 24, 10, WS_MODP, 4*6144*4)
    k("buffer_load_dword v8, v7, s[12:15], s31 offen")
    for i in range(NI):
        k(f"s_add_u32 s22, s30, {i*12288}\nbuffer_load_dwordx4 v[{32+4*i}:{35+4*i}], v6, s[16:19], s22 offen")
    nmid = mid() if mid else 0
    stamp(k, 1)
    k(f"""s_waitcnt vmcnt({NI+nmid})
    v_and_b32 v9, 0xffff0000, v8
    v_lshlrev_b32 v8, 16, v8
    v_mul_f32 v10, {hex(f2u(-LOG2E))}, v8
    v_mul_f32 v11, {hex(f2u(-LOG2E))}, v9
    v_exp_f32 v10, v10
    v_exp_f32 v11, v11
    s_lshl_b32 s22, s42, 9
    v_add_f32 v10, 1.0, v10
    v_add_f32 v11, 1.0, v11
    v_rcp_f32 v10, v10
    v_rcp_f32 v11, v11
    s_add_u32 s22, s22, {lds}
    v_mul_f32 v8, v8, v10
    v_mul_f32 v9, v9, v11""")
    srd_ws(k, 12, 10, WS_SC, 2048)
    k(f"""v_cvt_pk_bf16_f32 v10, v8, v9
    s_cmp_eq_u32 s28, 0
    s_cselect_b32 s14, 2048, 0
    v_mov_b32 v11, 0x80000000
    v_cmp_gt_u32 vcc, {RW//2}, v2
    v_lshlrev_b32 v8, 16, v10
    v_and_b32 v9, 0xffff0000, v10
    v_cndmask_b32 v11, v11, v7, vcc
    buffer_store_dword v10, v11, s[12:15], s31 offen {WT}""")
    nmid += 1
    k(f"""v_lshl_add_u32 v10, v2, 3, s22
    ds_write_b64 v10, v[8:9]
    v_lshl_add_u32 v10, v4, {(NI*4).bit_length()-1}, s22
    s_waitcnt lgkmcnt(0)""")
    for i in range(NI//4): k(f"ds_read_b128 v[{12+4*i}:{15+4*i}], v10 offset:{16*i}")
    k("s_waitcnt lgkmcnt(0)")
    for i in range(NI):
        k(f"s_waitcnt vmcnt({NI-1-i+nmid})")
        for d in range(4):
            w = 32 + 4*i + d
            op = "v_mul_f32" if i == 0 else "v_fmac_f32"
            k(f"v_lshlrev_b32 v{28+2*(d%2)}, 16, v{w}\nv_and_b32 v{29+2*(d%2)}, 0xffff0000, v{w}")
            k(f"{op} v{20+2*d}, v{28+2*(d%2)}, v{12+i}\n{op} v{21+2*d}, v{29+2*(d%2)}, v{12+i}")
    stamp(k, 2)
    k("s_nop 1")
    for j in range(4): k(f"v_permlane32_swap_b32 v{20+j}, v{24+j}")
    for j in range(4): k(f"v_add_f32 v{20+j}, v{20+j}, v{24+j}")
    k("s_nop 1")
    for j in range(2): k(f"v_permlane16_swap_b32 v{20+j}, v{22+j}")
    for j in range(2): k(f"v_add_f32 v{20+j}, v{20+j}, v{22+j}")
    k("s_nop 1")
    for j in range(2): k(f"v_add_f32_dpp v{20+j}, v{20+j}, v{20+j} row_ror:8 row_mask:0xf bank_mask:0xf")
    k(f"""v_lshrrev_b32 v10, 4, v2
    v_lshlrev_b32 v10, 3, v10
    v_lshl_add_u32 v10, v5, 5, v10
    s_lshl_b32 s22, s42, 8
    s_add_u32 s22, s22, {lds+4096}
    v_add_u32 v10, s22, v10
    ds_write_b64 v10, v[20:21]
    s_waitcnt lgkmcnt(0)
    s_barrier
    s_cmp_lg_u32 s42, 0
    s_cbranch_scc1 L_{pfx}_gdone
    v_add_u32 v10, {lds+4096}, v7""")
    for p in range(8): k(f"ds_read_b32 v{12+p}, v10 offset:{256*p}")
    k(f"""s_mul_i32 s21, s29, {6144*4}
    s_lshl_b32 s22, s28, 8
    s_add_u32 s21, s21, s22
    s_waitcnt lgkmcnt(0)""")
    for p in range(1, 8): k(f"v_add_f32 v12, v12, v{12+p}")
    k(f"buffer_store_dword v12, v7, s[24:27], s21 offen {WT}\nL_{pfx}_gdone:")

def pack_begin(k, order, ptr, first):
    pack_addr(k, order, 2048, 2, 64, 65, 66, 47)
    srd_arg(k, 32, ptr, 0, 2*MB)
    k(f"""s_sub_u32 s45, s2, {first}
    s_lshl_b32 s45, s45, 2
    s_add_u32 s45, s45, s42
    s_lshl_b32 s46, s42, 12
    v_add_u32 v65, s46, v65
    s_lshr_b32 s47, s45, 4
    s_lshl_b32 s47, s47, 16
    s_and_b32 s48, s45, 15
    s_lshl_b32 s48, s48, 7
    s_add_u32 s47, s47, s48
    s_cmp_ge_u32 s42, 4
    s_cselect_b32 s47, 0x40000000, s47
    s_barrier""")
    pack_issue(k, 32, 2048, 64, 47, 46, 48)
def pack_end(k, order, wsoff):
    srd_ws(k, 16, 10, wsoff, 2*MB)
    k(f"""s_and_b32 s47, s45, 15
    s_lshl_b32 s47, s47, 5
    s_lshr_b32 s48, s45, 4
    s_add_u32 s47, s47, s48
    s_lshl_b32 s47, s47, 12
    s_cmp_ge_u32 s42, 4
    s_cselect_b32 s47, 0x40000000, s47
    s_waitcnt vmcnt(0)""")
    pack_read(k, order, 65, 32)
    k("s_waitcnt lgkmcnt(0)")
    for nt in range(4): k(f"buffer_store_dwordx4 {vr(32+4*nt,4)}, v3, s[16:19], s47 offen offset:{1024*nt} {WT}")

def k_front1():
    k = Kern("front1_kernel", 80)
    k(f"""s_cmp_ge_u32 s2, 256
    s_cbranch_scc1 L_f1_end""")
    stamp(k, 0)
    k(f"""v_lshrrev_b32 v1, 6, v0
    v_and_b32 v2, 63, v0
    v_readfirstlane_b32 s42, v1
    s_cmp_ge_u32 s2, 128
    s_cbranch_scc1 L_f1_stats
    s_load_dwordx2 s[4:5], s[0:1], {A_C}
    s_load_dwordx2 s[6:7], s[0:1], {A_WMOD}
    s_load_dwordx2 s[10:11], s[0:1], {A_WS}
    s_load_dwordx2 s[8:9], s[0:1], {A_WQ}
    s_and_b32 s28, s2, 31
    s_lshr_b32 s29, s2, 5
    v_lshlrev_b32 v3, 4, v2""")
    def mid():
        pack_begin(k, "nat", 8, 0)
        return 4
    gemv_part(k, "f1", 32, 32768, mid)
    pack_end(k, "nat", WS_WQP)
    stamps_out(k, 0, 3)
    k("s_endpgm")
    XP, XF, T = 8, 24, 56
    k(f"""L_f1_stats:
    s_load_dwordx2 s[4:5], s[0:1], {A_X}
    s_load_dwordx2 s[6:7], s[0:1], {A_WK}
    s_load_dwordx2 s[8:9], s[0:1], {A_WV}
    s_load_dwordx2 s[10:11], s[0:1], {A_WS}""")
    tb_map(k, 40, 128)
    k(f"""v_and_b32 v3, 15, v2
    v_lshrrev_b32 v4, 4, v2
    v_lshlrev_b32 v5, 11, v3
    v_lshl_add_u32 v5, v4, 4, v5
    s_lshl_b32 s43, s40, 15
    s_lshl_b32 s44, s42, 8
    s_add_u32 s43, s43, s44
    s_waitcnt lgkmcnt(0)""")
    srd_arg(k, 12, 4, 0, 4*MB)
    for i in range(4):
        k(f"buffer_load_dwordx4 v[{XP+4*i}:{XP+4*i+3}], v5, s[12:15], s43 offen offset:{64*i}")
    k(f"""s_and_b32 s44, s40, 8
    s_cmp_eq_u32 s44, 0
    s_cselect_b32 s16, s6, s8
    s_cselect_b32 s17, s7, s9
    s_and_b32 s17, s17, 0xffff
    s_cmp_eq_u32 s42, 0
    s_cselect_b32 s18, 65536, 0
    s_mov_b32 s19, 0x20000
    s_and_b32 s44, s40, 7
    s_lshl_b32 s44, s44, 13
    v_lshlrev_b32 v6, 7, v2
    buffer_load_dword v7, v6, s[16:19], s44 offen""")
    srd_ws(k, 24, 10, WS_ST1, 2048*8)
    stamp(k, 1)
    k("s_waitcnt vmcnt(1)\ns_cmp_lg_u32 s42, 7\ns_cbranch_scc1 L_f1_nopull")
    code_pull(k, "front2_kernel", "oproj_kernel", 2, 70)
    k("L_f1_nopull:")
    stamp(k, 2)
    s, t1, a, b = T, T+1, T+2, T+3
    for i in range(16):
        k(f"v_lshlrev_b32 v{XF+2*i}, 16, v{XP+i}\nv_and_b32 v{XF+2*i+1}, 0xffff0000, v{XP+i}")
    k(f"v_pk_add_f32 v[{s}:{s+1}], v[{XF}:{XF+1}], v[{XF+2}:{XF+3}]")
    for i in range(4, 32, 2): k(f"v_pk_add_f32 v[{s}:{s+1}], v[{s}:{s+1}], v[{XF+i}:{XF+i+1}]")
    k(f"v_add_f32 v{s}, v{s}, v{t1}")
    xlane_sum(k, s, t1)
    k(f"""v_lshlrev_b32 v{a}, 5, v3
    v_lshl_add_u32 v{b}, v1, 2, v{a}
    ds_write_b32 v{b}, v{s}
    s_waitcnt lgkmcnt(0)
    s_barrier
    ds_read_b128 v[{T+4}:{T+7}], v{a}
    ds_read_b128 v[{T+8}:{T+11}], v{a} offset:16
    s_waitcnt lgkmcnt(0)""")
    for i in range(5, 12): k(f"v_add_f32 v{T+4}, v{T+4}, v{T+i}")
    mean = T + 12
    k(f"v_mul_f32 v{mean}, {hex(f2u(-1/1024))}, v{T+4}")
    for i in range(0, 32, 2):
        k(f"v_pk_add_f32 v[{XF+i}:{XF+i+1}], v[{XF+i}:{XF+i+1}], v[{mean}:{mean+1}] op_sel_hi:[1,0]")
    k(f"v_pk_mul_f32 v[{s}:{s+1}], v[{XF}:{XF+1}], v[{XF}:{XF+1}]")
    for i in range(2, 32, 2): k(f"v_pk_fma_f32 v[{s}:{s+1}], v[{XF+i}:{XF+i+1}], v[{XF+i}:{XF+i+1}], v[{s}:{s+1}]")
    k(f"v_add_f32 v{s}, v{s}, v{t1}")
    xlane_sum(k, s, t1)
    k(f"""ds_write_b32 v{b}, v{s} offset:512
    s_waitcnt lgkmcnt(0)
    s_barrier
    s_cmp_lg_u32 s42, 0
    s_cbranch_scc1 L_f1_end
    ds_read_b128 v[{T+4}:{T+7}], v{a} offset:512
    ds_read_b128 v[{T+8}:{T+11}], v{a} offset:528
    s_waitcnt lgkmcnt(0)""")
    for i in range(5, 12): k(f"v_add_f32 v{T+4}, v{T+4}, v{T+i}")
    k(f"v_mul_f32 v{T+5}, {hex(f2u(1/1024))}, v{T+4}")
    ln_finish(k, T+5, mean, T+4)
    k(f"""v_lshlrev_b32 v{a}, 3, v3
    s_lshl_b32 s44, s40, 7
    buffer_store_dwordx2 v[{T+4}:{T+5}], v{a}, s[24:27], s44 offen {WT}""")
    stamps_out(k, 7, 3)
    k("L_f1_end:\ns_endpgm")
    return k, (256, 512, 32768 + 8192)

def ln_finish(k, var, nmean, off):
    round_bf16(k, var)
    k(f"v_add_f32 v{var}, {hex(f2u(1e-5))}, v{var}")
    round_bf16(k, var)
    k(f"v_sqrt_f32 v{var}, v{var}\ns_nop 0")
    round_bf16(k, var)
    k(f"v_rcp_f32 v{var}, v{var}")
    round_bf16(k, nmean)
    k(f"v_mul_f32 v{off}, v{nmean}, v{var}")

def ln_apply(k, xp, n, xf, st, scl, shf):
    for i in range(n):
        k(f"v_lshlrev_b32 v{xf+2*i}, 16, v{xp+i}\nv_and_b32 v{xf+2*i+1}, 0xffff0000, v{xp+i}")
    for i in range(n):
        k(f"v_pk_fma_f32 v[{xf+2*i}:{xf+2*i+1}], v[{xf+2*i}:{xf+2*i+1}], v[{st}:{st+1}], v[{st}:{st+1}] op_sel:[0,1,0] op_sel_hi:[1,1,0]")
    return lambda: [[k(f"v_pk_fma_f32 v[{xf+2*i}:{xf+2*i+1}], v[{xf+2*i}:{xf+2*i+1}], v[{scl+2*i}:{scl+2*i+1}], v[{shf+2*i}:{shf+2*i+1}]") for i in range(n)],
                    [k(f"v_cvt_pk_bf16_f32 v{xp+i}, v{xf+2*i}, v{xf+2*i+1}") for i in range(n)]]

def k_front2():
    k = Kern("front2_kernel", 168)
    XP, XF, SCL, SHF, ST = 8, 24, 56, 88, 120
    MODL = 131072
    k(f"""s_cmp_ge_u32 s2, 256
    s_cbranch_scc1 L_f2_end""")
    stamp(k, 0)
    k(f"""v_lshrrev_b32 v1, 6, v0
    v_and_b32 v2, 63, v0
    v_readfirstlane_b32 s42, v1
    s_cmp_lt_u32 s2, 128
    s_cbranch_scc1 L_f2_main
    s_load_dwordx2 s[8:9], s[0:1], {A_WO}
    s_load_dwordx2 s[10:11], s[0:1], {A_WS}
    v_lshlrev_b32 v3, 4, v2
    s_waitcnt lgkmcnt(0)""")
    pack_begin(k, "att", 8, 128)
    srd_ws(k, 20, 10, WS_WQP, 2*MB)
    k(f"""s_sub_u32 s49, s2, 128
    s_lshr_b32 s49, s49, 3
    s_lshl_b32 s49, s49, 2
    s_add_u32 s49, s49, s42
    s_sub_u32 s49, s49, 4
    s_lshl_b32 s49, s49, 15
    s_cmp_lt_u32 s42, 4
    s_cselect_b32 s49, 0x40000000, s49
    v_lshlrev_b32 v4, 7, v2""")
    if os.environ.get("WQPULL", "0") == "1":
        for i in range(4): k(f"buffer_load_dword v5, v4, s[20:23], s49 offen\ns_add_u32 s49, s49, 8192")
    k("s_cmp_lg_u32 s42, 7\ns_cbranch_scc1 L_f2_nopull")
    code_pull(k, "attn_kernel", "oproj_kernel", 2, 70)
    k("L_f2_nopull:")
    pack_end(k, "att", WS_WOP)
    stamp(k, 1); stamp(k, 2)
    stamps_out(k, 8, 3)
    k(f"""s_endpgm
    L_f2_main:
    s_load_dwordx2 s[4:5], s[0:1], {A_X}
    s_load_dwordx2 s[6:7], s[0:1], {A_WK}
    s_load_dwordx2 s[8:9], s[0:1], {A_WV}
    s_load_dwordx2 s[10:11], s[0:1], {A_WS}""")
    tb_map(k, 40)
    k(f"""v_and_b32 v3, 15, v2             ; t
    v_lshrrev_b32 v4, 4, v2          ; g
    v_lshlrev_b32 v5, 11, v3
    v_lshl_add_u32 v5, v4, 4, v5
    v_lshlrev_b32 v6, 4, v0          ; tid*16
    v_lshlrev_b32 v7, 3, v3
    s_lshl_b32 s43, s40, 15
    s_lshl_b32 s44, s42, 8
    s_add_u32 s43, s43, s44
    s_lshl_b32 s44, s40, 7
    s_waitcnt lgkmcnt(0)""")
    srd_ws(k, 24, 10, WS_MODP, 4*6144*4)
    for p in range(4):
        k(f"s_mov_b32 s45, {p*6144*4}\nbuffer_load_dwordx4 {vr(SCL+4*p,4)}, v6, s[24:27], s45 offen")
    srd_arg(k, 12, 4, 0, 4*MB)
    srd_ws(k, 28, 10, WS_ST1, 2048*8)
    k("s_barrier")
    for i in range(4):
        k(f"buffer_load_dwordx4 v[{XP+4*i}:{XP+4*i+3}], v5, s[12:15], s43 offen offset:{64*i}")
    k(f"buffer_load_dwordx2 v[{ST}:{ST+1}], v7, s[28:31], s44 offen")
    srd_arg(k, 16, 6, 0, 65536)
    srd_arg(k, 20, 8, 0, 65536)
    k(f"""v_lshrrev_b32 v7, 2, v2
    v_and_b32 v136, 3, v2
    v_lshrrev_b32 v137, 5, v2
    v_lshlrev_b32 v137, 1, v137
    v_xor_b32 v136, v136, v137
    v_lshlrev_b32 v7, 6, v7
    v_lshl_add_u32 v7, v136, 4, v7
    s_lshl_b32 s46, s42, 13
    s_lshl_b32 s47, s42, 14
    s_add_u32 s48, s46, 4096
    """)
    def wdma(mat, h):
        srd = 16 + 4*mat
        k(f"s_add_u32 m0, s47, {mat*8192 + h*4096}\ns_nop 0")
        for i in range(4):
            k(f"buffer_load_dwordx4 v7, s[{srd}:{srd+3}], s{46 if h == 0 else 48} offen offset:{1024*i} lds")
    srd_ws(k, 28, 10, WS_H1, SZ_ACT)
    srd_ws(k, 32, 10, WS_KV, 262144)
    stamp(k, 1)
    k(f"""s_cmp_ge_u32 s42, 4
    s_cselect_b32 s45, 1.0, 0
    v_add_u32 v6, {MODL}, v6
    s_waitcnt vmcnt(5)""")
    stamp(k, 2)
    for p in range(1, 4):
        for h in range(2): k(f"v_pk_add_f32 {vr(SCL+2*h,2)}, {vr(SCL+2*h,2)}, {vr(SCL+4*p+2*h,2)}")
    for j in range(4): round_bf16(k, SCL+j)
    for j in range(4): k(f"v_add_f32 v{SCL+j}, s45, v{SCL+j}")
    for j in range(4): round_bf16(k, SCL+j)
    k(f"""ds_write_b128 v6, {vr(SCL,4)}
    s_lshl_b32 s45, s42, 9
    s_add_u32 s45, s45, {MODL}
    v_lshl_add_u32 v6, v4, 5, s45""")
    wdma(0, 0)
    k("s_waitcnt lgkmcnt(0)\ns_barrier")
    for i in range(4):
        for h in range(2):
            k(f"ds_read_b128 {vr(SHF+8*i+4*h,4)}, v6 offset:{128*i+16*h}")
            k(f"ds_read_b128 {vr(SCL+8*i+4*h,4)}, v6 offset:{4096+128*i+16*h}")
    wdma(1, 0)
    k("s_waitcnt vmcnt(8)")
    fin = ln_apply(k, XP, 16, XF, ST, SCL, SHF)
    wdma(0, 1)
    k("s_waitcnt lgkmcnt(0)")
    fin()
    wdma(1, 1)
    stamp(k, 3)
    k(f"""s_lshr_b32 s49, s40, 3
    s_lshl_b32 s49, s49, 18
    s_and_b32 s50, s40, 7
    s_lshl_b32 s50, s50, 10
    s_add_u32 s49, s49, s50
    s_lshl_b32 s50, s42, 15
    s_add_u32 s49, s49, s50
    v_lshlrev_b32 v136, 4, v2
    v_lshrrev_b32 v137, 2, v3
    v_lshl_add_u32 v137, v4, 3, v137
    v_lshlrev_b32 v137, 6, v137
    v_and_b32 v138, 3, v2
    v_lshl_add_u32 v137, v138, 3, v137
    v_and_b32 v138, 1, v4
    v_lshlrev_b32 v138, 5, v138
    v_add_u32 v137, s47, v137
    v_add_u32 v139, v137, v138
    v_xor_b32 v138, 32, v138
    v_add_u32 v140, v137, v138
    s_waitcnt vmcnt(0)""")
    stamp(k, 4)
    ACC = 144; WF = XF
    for i in range(4):
        for mat in range(2):
            for nt in range(2):
                b = WF + 16*i + 8*mat + 4*nt
                off = mat*8192 + i*2048
                k(f"ds_read_b64_tr_b16 v[{b}:{b+1}], v{139+nt} offset:{off}")
                k(f"ds_read_b64_tr_b16 v[{b+2}:{b+3}], v{139+nt} offset:{off+256}")
        k(f"s_add_u32 s50, s49, {8192*i}\nbuffer_store_dwordx4 v[{XP+4*i}:{XP+4*i+3}], v136, s[28:31], s50 offen {H1ST}")
    for i in range(4):
        if i < 3: k(f"s_waitcnt lgkmcnt({min(15, 8*(3-i))})")
        else: k("s_waitcnt lgkmcnt(0)")
        for mat in range(2):
            for nt in range(2):
                b = WF + 16*i + 8*mat + 4*nt
                c = ACC + 8*mat + 4*nt
                cin = "0" if i == 0 else vr(c, 4)
                if mat == 0: k(f"v_mfma_f32_16x16x32_bf16 {vr(c,4)}, {vr(b,4)}, {vr(XP+4*i,4)}, {cin}")
                else:        k(f"v_mfma_f32_16x16x32_bf16 {vr(c,4)}, {vr(XP+4*i,4)}, {vr(b,4)}, {cin}")
    k(f"v_add_u32 v137, s47, v136\ns_nop 6")
    for j in range(4): k(f"ds_write_b128 v137, {vr(ACC+4*j,4)} offset:{1024*j}")
    k(f"""s_waitcnt lgkmcnt(0)
    s_barrier
    s_cmp_ge_u32 s42, 2
    s_cbranch_scc1 L_f2_end""")
    stamp(k, 5)
    k(f"""s_lshl_b32 s51, s42, 11
    v_add_u32 v137, s51, v136
    v_add_u32 v138, 0x10000, v137""")
    for p in range(8):
        a = 137 if p < 4 else 138
        for nt in range(2):
            k(f"ds_read_b128 {vr(24+8*p+4*nt,4)}, v{a} offset:{(p%4)*16384+1024*nt}")
    k(f"""s_lshr_b32 s52, s40, 1
    s_lshl_b32 s52, s52, 12
    s_and_b32 s53, s40, 1
    v_and_b32 v137, 1, v4
    v_lshrrev_b32 v138, 1, v4
    v_lshlrev_b32 v138, 9, v138
    v_lshl_add_u32 v138, v3, 4, v138""")
    for p in range(1, 8):
        k(f"s_waitcnt lgkmcnt({2*(7-p)})")
        for j in range(0, 8, 2): k(f"v_pk_add_f32 {vr(24+j,2)}, {vr(24+j,2)}, {vr(24+8*p+j,2)}")
    for j in range(4): k(f"v_cvt_pk_bf16_f32 v{120+j}, v{24+2*j}, v{25+2*j}")
    k(f"""s_cmp_eq_u32 s42, 1
    s_cbranch_scc1 L_f2_v
    s_lshl_b32 s53, s53, 8
    s_add_u32 s52, s52, s53
    v_lshl_add_u32 v137, v137, 10, v138
    buffer_store_dwordx4 v[120:123], v137, s[32:35], s52 offen {WT}""")
    stamp(k, 6)
    stamps_out(k, 1, 7)
    k(f"""s_endpgm
    L_f2_v:
    s_lshl_b32 s53, s53, 10
    s_add_u32 s52, s52, s53
    v_lshl_add_u32 v137, v137, 3, v138
    buffer_store_dwordx2 v[120:121], v137, s[32:35], s52 offen offset:2048 {WT}
    buffer_store_dwordx2 v[122:123], v137, s[32:35], s52 offen offset:2304 {WT}
    L_f2_end:
    s_endpgm""")
    return k, (256, 512, 131072 + 8192)

H1ST = os.environ.get("H1ST", WT)
H2ST = os.environ.get("H2ST", WT)

def k_ln2():
    k = Kern("ln2_kernel", 88)
    XP, XF, SCL, SHF, PT = 8, 16, 32, 48, 64
    k(f"s_cmp_ge_u32 s2, 256\ns_cbranch_scc1 L_ln2_end")
    stamp(k, 0)
    k(f"s_load_dwordx2 s[10:11], s[0:1], {A_WS}")
    tb_map(k, 40, 0, 1)
    k(f"""v_lshrrev_b32 v1, 6, v0
    v_and_b32 v2, 63, v0
    v_readfirstlane_b32 s42, v1
    v_and_b32 v3, 15, v2
    v_lshrrev_b32 v4, 4, v2
    v_lshlrev_b32 v5, 4, v2
    v_lshlrev_b32 v6, 4, v4
    v_lshlrev_b32 v7, 8, v3
    v_lshl_add_u32 v7, v4, 6, v7     ; t*256 + g*64
    s_bfe_u32 s43, s2, 0x10003
    s_lshl_b32 s43, s43, 3
    s_add_u32 s43, s43, s42
    s_lshr_b32 s49, s40, 3
    s_lshl_b32 s49, s49, 18
    s_and_b32 s50, s40, 7
    s_lshl_b32 s50, s50, 10
    s_add_u32 s49, s49, s50
    s_lshl_b32 s50, s43, 14
    s_add_u32 s49, s49, s50
    s_add_u32 s50, s49, 8192
    s_lshl_b32 s44, s43, 8
    s_add_u32 s45, s44, {4096*4}
    s_add_u32 s44, s44, {3072*4}
    s_lshl_b32 s46, s40, 12
    s_waitcnt lgkmcnt(0)""")
    srd_ws(k, 20, 10, WS_ST2, 2048*256)
    for i in range(4): k(f"buffer_load_dwordx4 {vr(PT+4*i,4)}, v7, s[20:23], s46 offen offset:{16*i}")
    srd_ws(k, 28, 10, WS_X1, SZ_ACT)
    k(f"buffer_load_dwordx4 {vr(XP,4)}, v5, s[28:31], s49 offen\nbuffer_load_dwordx4 {vr(XP+4,4)}, v5, s[28:31], s50 offen")
    srd_ws(k, 24, 10, WS_MOD, 6144*4)
    for i in range(2):
        for h in range(2):
            k(f"buffer_load_dwordx4 {vr(SHF+8*i+4*h,4)}, v6, s[24:27], s44 offen offset:{128*i+64*h}")
            k(f"buffer_load_dwordx4 {vr(SCL+8*i+4*h,4)}, v6, s[24:27], s45 offen offset:{128*i+64*h}")
    srd_ws(k, 32, 10, WS_H2, SZ_ACT)
    stamp(k, 1)
    k("s_waitcnt vmcnt(10)")
    stamp(k, 2)
    for i in range(1, 8): k(f"v_pk_add_f32 {vr(PT,2)}, {vr(PT,2)}, {vr(PT+2*i,2)}")
    xlane_sum(k, PT, PT+2); xlane_sum(k, PT+1, PT+3)
    k(f"""v_mul_f32 v{PT+2}, {hex(f2u(-1/1024))}, v{PT}
    v_mul_f32 v{PT+1}, {hex(f2u(1/1024))}, v{PT+1}
    v_fma_f32 v{PT+1}, -v{PT+2}, v{PT+2}, v{PT+1}
    v_max_f32 v{PT+1}, 0, v{PT+1}""")
    ln_finish(k, PT+1, PT+2, PT)
    k("s_waitcnt vmcnt(8)")
    fin = ln_apply(k, XP, 8, XF, PT, SCL, SHF)
    k("s_waitcnt vmcnt(0)")
    fin()
    stamp(k, 3)
    k(f"buffer_store_dwordx4 {vr(XP,4)}, v5, s[32:35], s49 offen {H2ST}\nbuffer_store_dwordx4 {vr(XP+4,4)}, v5, s[32:35], s50 offen {H2ST}")
    stamps_out(k, 4, 4)
    k("L_ln2_end:\ns_endpgm")
    return k, (256, 512, 0)

from gen_gemm import k_gemm
from gen_attn import k_attn

def build(path):
    ks = [k_front1(), k_front2(), k_attn(os.environ.get("FORCEFB") == "1"), k_gemm("oproj"), k_ln2(), k_gemm("w1"), k_gemm("w2")]
    nd = int(os.environ.get("DUMMY", "0"))
    if nd:
        d = Kern("dummy_kernel", 8); d("s_endpgm")
        ks_extra = [(d, (256, 64, 0))] * nd
    else: ks_extra = []
    hdr = ["; adaLN + MQA attention + SiLU MLP block, gfx950. Generated by gen/gen.py (hand-written generator)."]
    for k, (g, b, lds) in ks + ks_extra:
        hdr.append(f"; @launch kernel={k.name} grid=({g},1,1) block=({b},1,1) lds={lds}")
    ks = ks + ks_extra[:1]
    out = "\n".join(hdr) + '\n.amdgcn_target "amdgcn-amd-amdhsa--gfx950"\n.text\n'
    bad = 0
    for k, _ in ks:
        errs, stats = check(k)
        print(f"{k.name}: maxv={stats[0]} maxs={stats[1]} ninstr={stats[3]}", file=sys.stderr)
        for e in errs: print("HAZARD", e, file=sys.stderr); bad += 1
        out += k.text()
    out += 'L_code_end:\n.section .rodata,"a"\n'
    for k, _ in ks: out += k.desc()
    open(path, "w").write(out)
    return bad

if __name__ == "__main__":
    p = sys.argv[1] if len(sys.argv) > 1 else f"cdna_kernels/{NAME}.s"
    sys.exit(1 if build(p) else 0)
```

```python
from asmlib import Kern, vr, sr, check
NAME = "adaLN_cond__grouped_kv_mqa__dense_activation_silu__prompt"
A_X, A_WQ, A_WK, A_WV, A_WO, B_X, B_W1, B_W2, A_C, A_WMOD, A_OUT, A_DBG, A_WS = [8*i for i in range(13)]
MB = 1 << 20
WS_MOD = 0
WS_MODP = 65536
WS_SC = 196608
WS_ST1 = 262144
WS_ST2 = 524288
WS_H1 = 1*MB
WS_KV = 5*MB
WS_O = 6*MB
WS_X1 = 10*MB
WS_H2 = 14*MB
WS_U = 18*MB
WS_WQP = 32*MB
WS_WOP = 34*MB
WS_W1P = 36*MB
WS_W2P = 43*MB
SZ_ACT = 4*MB
SZ_U = 2048*3584*2
LOG2E = 1.4426950408889634
def f2u(x):
    import struct
    return struct.unpack("<I", struct.pack("<f", x))[0]

def srd_arg(k, d, tmp, argoff, size):
    k(f"s_mov_b32 s{d}, s{tmp}\ns_and_b32 s{d+1}, s{tmp+1}, 0xffff\ns_mov_b32 s{d+2}, {size}\ns_mov_b32 s{d+3}, 0x20000")
def srd_ws(k, d, ws, off, size):
    k(f"s_add_u32 s{d}, s{ws}, {off}\ns_addc_u32 s{d+1}, s{ws+1}, 0\ns_and_b32 s{d+1}, s{d+1}, 0xffff\ns_mov_b32 s{d+2}, {size}\ns_mov_b32 s{d+3}, 0x20000")

def xlane_sum(k, v, t, op="v_add_f32"):
    k(f"v_mov_b32 v{t}, v{v}\ns_nop 1\nv_permlane16_swap_b32 v{v}, v{t}\n{op} v{v}, v{v}, v{t}")
    k(f"v_mov_b32 v{t}, v{v}\ns_nop 1\nv_permlane32_swap_b32 v{v}, v{t}\n{op} v{v}, v{v}, v{t}")

def round_bf16(k, v):
    k(f"v_cvt_pk_bf16_f32 v{v}, v{v}, v{v}\nv_and_b32 v{v}, 0xffff0000, v{v}")


import os
TIMING = os.environ.get("TIMING", "0") != "0"
TINS = "s_memtime" if os.environ.get("TIMING") == "2" else "s_memrealtime"
WS_TIME = 56*MB
TS0 = 70
def stamp(k, i):
    if TIMING: k(f"{TINS} s[{TS0+2*i}:{TS0+2*i+1}]")
def stamps_out(k, kidx, n, wsreg=10, vtmp=0):
    if not TIMING: return
    k(f"""s_waitcnt vmcnt(0) lgkmcnt(0)
    {TINS} s[{TS0+2*n}:{TS0+2*n+1}]
    s_add_u32 s66, s{wsreg}, {WS_TIME + kidx*262144}
    s_addc_u32 s67, s{wsreg+1}, 0
    s_lshl_b32 s94, s2, 9
    s_lshl_b32 s95, s42, 6
    s_add_u32 s94, s94, s95
    v_mov_b32 v{vtmp}, s94
    s_waitcnt lgkmcnt(0)""")
    for i in range(n+1):
        k(f"v_mov_b32 v{vtmp+1}, s{TS0+2*i}\nglobal_store_dword v{vtmp}, v{vtmp+1}, s[66:67] offset:{4*i}")
    k("s_waitcnt vmcnt(0)")

PRE_AT = int(os.environ.get("PRE_AT", "4"))
WT = "sc0 sc1"
ORD = {"nat": (16, 8, 4), "split": (8, 4, 16), "att": (16, 4, 8)}

def pack_addr(k, order, pitch, vl, vsrc, vtr, vt, stmp):
    a, b, sel = ORD[order]
    k(f"""v_lshrrev_b32 v{vsrc}, 3, v{vl}
    s_mov_b32 s{stmp}, {pitch}
    v_mul_lo_u32 v{vsrc}, v{vsrc}, s{stmp}
    v_and_b32 v{vt}, 7, v{vl}
    v_lshl_add_u32 v{vsrc}, v{vt}, 4, v{vsrc}
    v_bfe_u32 v{vtr}, v{vl}, 2, 2
    v_bfe_u32 v{vt}, v{vl}, 4, 1
    v_lshl_add_u32 v{vtr}, v{vt}, {b.bit_length()-1}, v{vtr}
    v_lshrrev_b32 v{vt}, 5, v{vl}
    v_lshl_add_u32 v{vtr}, v{vt}, {a.bit_length()-1}, v{vtr}
    v_lshlrev_b32 v{vtr}, 7, v{vtr}
    v_and_b32 v{vt}, 3, v{vl}
    v_lshl_add_u32 v{vtr}, v{vt}, 3, v{vtr}""")

def pack_issue(k, srd, pitch, vsrc, s_src, s_lds, stmp):
    for i in range(4):
        k(f"s_add_u32 m0, s{s_lds}, {1024*i}\ns_add_u32 s{stmp}, s{s_src}, {8*i*pitch}")
        k(f"buffer_load_dwordx4 v{vsrc}, s[{srd}:{srd+3}], s{stmp} offen lds")

def pack_read(k, order, vaddr, F):
    sel = ORD[order][2]
    for nt in range(4):
        k(f"ds_read_b64_tr_b16 {vr(F+4*nt,2)}, v{vaddr} offset:{32*nt}")
        k(f"ds_read_b64_tr_b16 {vr(F+4*nt+2,2)}, v{vaddr} offset:{32*nt+128*sel}")

def wg_map(k, mode, rb, ct, tmp=39):
    lr = {"R2": 1, "R4": 2, "R8": 3, "R16": 4}[mode]
    if os.environ.get("SCRAMBLE") == "1":
        k("s_lshr_b32 s3, s2, 3\ns_and_b32 s3, s3, 7\ns_xor_b32 s2, s2, s3\ns_lshr_b32 s3, s2, 6\ns_xor_b32 s2, s2, s3")
    k(f"""s_and_b32 s{rb}, s2, 7
    s_lshr_b32 s3, s2, 3
    s_and_b32 s{ct}, s{rb}, {(1 << (lr-1)) - 1}
    s_lshl_b32 s{ct}, s{ct}, {5-lr}
    s_lshr_b32 s{rb}, s{rb}, {lr-1}
    s_lshl_b32 s{rb}, s{rb}, {lr}
    s_and_b32 s{tmp}, s3, {(1 << lr) - 1}
    s_or_b32 s{rb}, s{rb}, s{tmp}
    s_lshr_b32 s{tmp}, s3, {lr}
    s_or_b32 s{ct}, s{ct}, s{tmp}""")

def interleave(mf, other, start=0, step=1):
    slots = [[] for _ in mf]
    for i, o in enumerate(other):
        slots[min(start + int(i*step), len(mf)-1)].append(o)
    out = []
    for m, s in zip(mf, slots):
        out.append(m); out += s
    return out

class Gemm:
    def __init__(self, k, name, KB, KS, NS, BN, base=0):
        self.k, self.name, self.KB, self.KS, self.NS, self.BN, self.base = k, name, KB, KS, NS, BN, base
        self.S = KB // KS
        self.ASZ = KS * 8192
        self.BSZ = KS * BN * 64
        self.STG = self.ASZ + self.BSZ
        self.LDS = self.STG * NS
        self.NT = BN // 32; self.MT = 4
        self.bper = self.BSZ // 4
        self.nb = (self.bper + 1023) // 1024
        self.d = 2*KS + self.nb
    def L(self, s): return f"L_{self.name}_{s}"
    def slot_adv(self):
        return [f"s_add_u32 s53, s53, {self.STG}", f"s_cmp_eq_u32 s53, {self.base+self.LDS}", f"s_cselect_b32 s53, {self.base}, s53"]
    def issue(self):
        k = self.k
        k("s_add_u32 m0, s53, s46\ns_add_u32 s54, s53, s49")
        for i in range(2*self.KS):
            k(f"buffer_load_dwordx4 v3, s[12:15], s45 offen offset:{1024*i} lds")
        k(f"s_mov_b32 m0, s54\ns_add_u32 s45, s45, {self.ASZ}")
        for i in range(self.nb):
            half = (i+1)*1024 > self.bper
            if half: k("s_mov_b32 exec_hi, 0")
            k(f"buffer_load_dwordx4 v3, s[16:19], s47 offen offset:{1024*i} lds")
            if half: k("s_mov_b32 exec_hi, -1")
        k(f"s_add_u32 s47, s47, {self.BSZ}")
        k("\n".join(self.slot_adv()))
    def loader(self, tail_hooks=None):
        k, S, NS, d = self.k, self.S, self.NS, self.d
        tail_hooks = tail_hooks or {}
        k(f"""s_sub_u32 s43, s42, 4
        s_mul_i32 s45, s40, {self.KB*8192}
        s_mul_i32 s46, s43, {2*self.KS*1024}
        s_add_u32 s45, s45, s46
        s_mul_i32 s47, s41, {self.KB*self.BN*64}
        s_mul_i32 s49, s43, {self.bper}
        s_add_u32 s47, s47, s49
        s_add_u32 s49, s49, {self.ASZ}
        s_mov_b32 s53, {self.base}""")
        issued = 0
        def iss(n):
            nonlocal issued
            for _ in range(n): self.issue(); issued += 1
        iss(2)
        stamp(k, 1)
        k(f"s_waitcnt vmcnt({(issued-1)*d})")
        stamp(k, 2)
        k("s_barrier")
        iss(min(2, NS-2))
        s = 0
        while issued < s + NS:
            k(f"s_waitcnt vmcnt({(issued-(s+2))*d})\ns_barrier")
            iss(min(2, s + NS + 1 - issued))
            s += 1
        assert issued == s + NS
        k(f"s_mov_b32 s56, {S-NS-s}\n{self.L('lloop')}:")
        k(f"s_waitcnt vmcnt({(NS-2)*d})\ns_barrier")
        self.issue()
        k(f"s_sub_u32 s56, s56, 1\ns_cmp_lg_u32 s56, 0\ns_cbranch_scc1 {self.L('lloop')}")
        extra = 0
        for i, s in enumerate(range(S-NS, S)):
            k(f"s_waitcnt vmcnt({max(0, S-2-s)*d + extra})\ns_barrier")
            if i in tail_hooks:
                fn, n = tail_hooks[i]; fn(); extra += n
    def compute(self, X, ACC, va, vb, vca, vcb, pre=None):
        k, KS, MT, NT = self.k, self.KS, self.MT, self.NT
        NF = KS * (MT + NT); Y = X + 4*NF
        k(f"""s_lshl_b32 s45, s43, 12
        v_add_u32 v{va}, s45, v3
        s_mul_i32 s46, s44, {NT*1024}
        s_add_u32 s46, s46, {self.ASZ}
        v_add_u32 v{vb}, s46, v3
        s_mov_b32 s53, {self.base}""")
        for i in range(4*MT*NT): k(f"v_mov_b32 v{ACC+i}, 0")
        upd = [f"v_add_u32 v{vca}, s53, v{va}", f"v_add_u32 v{vcb}, s53, v{vb}"] + self.slot_adv()
        def reads(F):
            r = []
            for ks in range(KS):
                f = F + 4*ks*(MT+NT)
                a = [f"ds_read_b128 {vr(f+4*m,4)}, v{vca} offset:{ks*8192+1024*m}" for m in range(MT)]
                b = [f"ds_read_b128 {vr(f+4*MT+4*n,4)}, v{vcb} offset:{ks*self.BN*64+1024*n}" for n in range(NT)]
                r += [b[0]] + a + b[1:]
            return r
        def mfmas(F):
            r = []
            for ks in range(KS):
                f = F + 4*ks*(MT+NT)
                for n in range(NT):
                    for m in range(MT):
                        a = ACC + 4*(m*NT + n)
                        r.append(f"v_mfma_f32_16x16x32_bf16 {vr(a,4)}, {vr(f+4*MT+4*n,4)}, {vr(f+4*m,4)}, {vr(a,4)}")
            return r
        k("\n".join(upd))
        stamp(k, 1)
        k("s_barrier")
        stamp(k, 2)
        k("\n".join(reads(X) + upd))
        k(f"s_mov_b32 s56, {self.S//2}\ns_waitcnt lgkmcnt(0)")
        k(f".p2align 6\n{self.L('cloop')}:")
        for (cu, nx) in ((X, Y), (Y, X)):
            k("s_barrier")
            mf = mfmas(cu); oth = reads(nx) + upd
            k("\n".join(interleave(mf, oth, 0, min(1.0, (len(mf)-1)/len(oth)))))
            k("s_waitcnt lgkmcnt(0)")
        if pre:
            k(f"s_cmp_lg_u32 s56, {PRE_AT}\ns_cbranch_scc1 {self.L('nopre')}")
            pre()
            k(f"{self.L('nopre')}:")
        k(f"s_sub_u32 s56, s56, 1\ns_cmp_lg_u32 s56, 0\ns_cbranch_scc1 {self.L('cloop')}")
        return X + 8*NF

CODEPF = os.environ.get("CODEPF", "1") == "1"
def code_pull(k, first, last, vl, vt, sp=68):
    if not CODEPF: return 0
    lab = k.label("pc")
    n = CODE_LINES.get((first, last), 2)
    k(f"""s_getpc_b64 s[{sp}:{sp+1}]
    {lab}:
    s_add_u32 s{sp}, s{sp}, {first}-{lab}
    s_addc_u32 s{sp+1}, s{sp+1}, 0
    v_lshlrev_b32 v{vt}, 7, v{vl}""")
    for i in range(n):
        k(f"v_min_u32 v{vt+1}, {last}-{first}-4, v{vt}\nglobal_load_dword v{vt+2}, v{vt+1}, s[{sp}:{sp+1}]")
        if i + 1 < n: k(f"v_add_u32 v{vt}, 8192, v{vt}")
    return n
CODE_LINES = {("front2_kernel", "oproj_kernel"): 3, ("attn_kernel", "oproj_kernel"): 2, ("oproj_kernel", "w1_kernel"): 1, ("w1_kernel", "w2_kernel"): 1, ("w2_kernel", "L_code_end"): 1}

def ln_finish(k, var, nmean, off):
    round_bf16(k, var)
    k(f"v_add_f32 v{var}, {hex(f2u(1e-5))}, v{var}")
    round_bf16(k, var)
    k(f"v_sqrt_f32 v{var}, v{var}\ns_nop 0")
    round_bf16(k, var)
    k(f"v_rcp_f32 v{var}, v{var}")
    round_bf16(k, nmean)
    k(f"v_mul_f32 v{off}, v{nmean}, v{var}")
```

```python
from common import *
import math

OST = os.environ.get('OST', WT)
def k_attn(force_fallback=False):
    k = Kern("attn_kernel", 168)
    L = lambda s: f"L_attn_{s}"
    QB = 65536; SCR = 128*1024; XCH = SCR; CMB = 0; FLAG = 36*1024
    SA, SB, OA, OB, MA, MB_ = 16, 32, 48, 64, 80, 96
    QA, QBr, KF, V0, V1, LA, LB, ONE = 112, 120, 128, 136, 140, 144, 148, 152
    IDX, VC, VN = 156, 157, 158
    k(f"s_cmp_ge_u32 s2, 256\ns_cbranch_scc1 {L('end')}")
    stamp(k, 0)
    k(f"""s_load_dwordx2 s[10:11], s[0:1], {A_WS}
    s_load_dwordx2 s[8:9], s[0:1], {B_W1}
    s_load_dwordx2 s[6:7], s[0:1], {B_W2}
    s_load_dwordx2 s[4:5], s[0:1], {A_WMOD}
    s_load_dwordx2 s[64:65], s[0:1], {A_X}""")
    wg_map(k, "R2", 40, 41)
    k(f"""v_lshrrev_b32 v1, 6, v0
    v_and_b32 v2, 63, v0
    v_readfirstlane_b32 s42, v1
    v_lshlrev_b32 v3, 4, v2
    s_waitcnt lgkmcnt(0)""")
    srd_ws(k, 12, 10, WS_H1, SZ_ACT)
    srd_ws(k, 16, 10, WS_WQP, 2*MB)
    srd_ws(k, 20, 10, WS_KV, 262144)
    G = Gemm(k, "attnq", 32, 2, 4, 64, base=QB)
    def kv4(lds, goff):
        k(f"s_add_u32 m0, s58, {lds}\ns_add_u32 s59, s57, {goff}")
        for i in range(4): k(f"buffer_load_dwordx4 v3, s[20:23], s59 offen offset:{1024*i} lds")
    def zero_init():
        for i in range(16): k(f"v_mov_b32 v{OA+i}, 0\nv_mov_b32 v{OB+i}, 0\nv_mov_b32 v{SB+i}, 0")
        for i in range(4): k(f"v_mov_b32 v{LA+i}, 0\nv_mov_b32 v{LB+i}, 0\nv_mov_b32 v{V1+i}, 0")
    k(f"s_cmp_lt_u32 s42, 4\ns_cbranch_scc1 {L('qcomp')}\ns_cmp_eq_u32 s42, 8\ns_cbranch_scc1 {L('service')}")
    k("s_and_b32 s57, s42, 3\ns_lshl_b32 s57, s57, 13\ns_mov_b32 s58, s57")
    def kvh(h):
        def f():
            kv4(32768*h, 131072*h); kv4(32768*h + 4096, 131072*h + 4096)
        return (f, 8)
    G.loader({0: kvh(0), 1: kvh(1)})
    k(f"""s_branch {L('join')}
    {L('qcomp')}:
    s_and_b32 s43, s42, 1
    s_lshr_b32 s44, s42, 1""")
    QACC = 112
    G.compute(16, QACC, 8, 9, 10, 11)
    k(f"""s_mov_b32 s50, {hex(f2u(LOG2E / math.sqrt(32.0)))}
    s_lshl_b32 s51, s42, 12
    s_add_u32 s51, s51, {XCH}
    v_add_u32 v11, s51, v3
    s_nop 4""")
    for i in range(0, 32, 2): k(f"v_pk_mul_f32 {vr(QACC+i,2)}, {vr(QACC+i,2)}, s[50:51] op_sel_hi:[1,0]")
    for i in range(16): k(f"v_cvt_pk_bf16_f32 v{SA+i}, v{QACC+2*i}, v{QACC+2*i+1}")
    k("s_nop 1")
    for p in range(2):
        for i in range(4): k(f"v_permlane16_swap_b32 v{SA+8*p+i}, v{SA+8*p+4+i}")
    for i in range(4): k(f"ds_write_b128 v11, {vr(SA+4*i,4)} offset:{1024*i}")
    k(f"{L('join')}:\ns_setprio 2")
    stamp(k, 3)
    srd_ws(k, 24, 10, WS_O, SZ_ACT)
    zero_init()
    k(f"""s_and_b32 s43, s42, 3
    s_lshr_b32 s44, s42, 2
    s_lshl_b32 s57, s44, 17
    s_lshl_b32 s58, s43, 13
    s_add_u32 s57, s57, s58
    s_lshl_b32 s58, s42, 13
    s_lshl_b32 s50, s43, 11
    s_add_u32 s50, s50, {XCH}
    v_add_u32 v11, s50, v3
    v_mov_b32 v{IDX}, 0xdddddddd
    v_and_b32 v12, 7, v2
    v_mov_b32 v13, 0x3f803f80
    v_cmp_eq_u32 vcc, 0, v12
    s_nop 1
    v_cndmask_b32 v{ONE}, 0, v13, vcc
    v_cndmask_b32 v{ONE+1}, 0, v13, vcc
    v_cmp_eq_u32 vcc, 4, v12
    s_nop 1
    v_cndmask_b32 v{ONE+2}, 0, v13, vcc
    v_cndmask_b32 v{ONE+3}, 0, v13, vcc
    s_lshl_b32 s50, s44, 15
    v_add_u32 v14, s50, v3
    s_mov_b32 s60, 0
    s_waitcnt vmcnt(0) lgkmcnt(0)
    s_barrier
    ds_read_b128 {vr(QA,4)}, v11
    ds_read_b128 {vr(QA+4,4)}, v11 offset:1024
    ds_read_b128 {vr(QBr,4)}, v11 offset:8192
    ds_read_b128 {vr(QBr+4,4)}, v11 offset:9216
    ds_read_b128 {vr(KF,4)}, v3
    ds_read_b128 {vr(KF+4,4)}, v3 offset:1024""")
    k(f"""s_waitcnt lgkmcnt(0)
    s_barrier
    v_mfma_f32_32x32x16_bf16 {vr(SA,16)}, {vr(KF,4)}, {vr(QA,4)}, 0
    v_mfma_f32_32x32x16_bf16 {vr(MB_,16)}, {vr(KF,4)}, {vr(QBr,4)}, 0
    v_mfma_f32_32x32x16_bf16 {vr(SA,16)}, {vr(KF+4,4)}, {vr(QA+4,4)}, {vr(SA,16)}
    v_mfma_f32_32x32x16_bf16 {vr(MB_,16)}, {vr(KF+4,4)}, {vr(QBr+4,4)}, {vr(MB_,16)}
    s_nop 10""")
    def rowmax(S, dst, first):
        if first:
            k(f"v_max3_f32 v{dst}, v{S}, v{S+1}, v{S+2}")
            for i in range(3, 15, 2): k(f"v_max3_f32 v{dst}, v{dst}, v{S+i}, v{S+i+1}")
            k(f"v_max_f32 v{dst}, v{dst}, v{S+15}")
        else:
            for i in range(0, 16, 2): k(f"v_max3_f32 v{dst}, v{dst}, v{S+i}, v{S+i+1}")
    rowmax(SA, 12, True); rowmax(MB_, 13, True)
    if force_fallback:
        k("v_add_f32 v12, 0xc3000000, v12\nv_add_f32 v13, 0xc3000000, v13")
    k(f"""{L('setmax')}:
    v_mov_b32 v{VC}, v14
    v_add_u32 v{VN}, 0x10000, v14
    v_mov_b32 v15, v12
    v_mov_b32 v11, v13
    ds_read_b128 {vr(KF,4)}, v{VC}
    ds_read_b128 {vr(KF+4,4)}, v{VC} offset:1024
    ds_read_b128 {vr(V0,4)}, v{VC} offset:2048
    v_permlane32_swap_b32 v12, v15
    v_permlane32_swap_b32 v13, v11
    v_max_f32 v12, v12, v15
    v_max_f32 v13, v13, v11""")
    for i in range(16): k(f"v_sub_f32 v{MA+i}, 0, v12")
    k(f"""s_mov_b32 s56, 0                 ; stage
    s_mov_b32 s61, 0                 ; slot(s)
    s_mov_b32 s63, {2*32768}
    s_waitcnt lgkmcnt(0)
    v_mfma_f32_32x32x16_bf16 {vr(SA,16)}, {vr(KF,4)}, {vr(QA,4)}, {vr(MA,16)}
    v_mfma_f32_32x32x16_bf16 {vr(SA,16)}, {vr(KF+4,4)}, {vr(QA+4,4)}, {vr(SA,16)}""")
    for i in range(16): k(f"v_sub_f32 v{MB_+i}, 0, v13")
    stamp(k, 4)
    if TIMING: k("s_waitcnt lgkmcnt(0)")
    k(f".p2align 6\n{L('loop')}:")
    def pv(O, V, S): return f"v_smfmac_f32_32x32x32_bf16 {vr(O,16)}, {vr(V,4)}, {vr(S,8)}, v{IDX}"
    def sm(Lr, S): return f"v_smfmac_f32_16x16x64_bf16 {vr(Lr,4)}, {vr(ONE,4)}, {vr(S,8)}, v{IDX}"
    NTL = 8
    PRIO = {2: 1, 4: 0} if os.environ.get('PRIO', '1') == '1' else {}
    def phase(X, OX, LX, Y, OY, LY, QY, MY, isA, j):
        e = [f"v_exp_f32 v{X+i}, v{X+i}" for i in range(16)]
        last = j == NTL - 1
        nx = (VC, (j+1)*4096) if not last else (VN, 0)
        o = e[0:2] + [pv(OY, V1, Y+8)]
        if isA: o.append(f"ds_read_b128 {vr(V1,4)}, v{VC} offset:{j*4096+3072}")
        o += e[2:5] + [sm(LY, Y+8)]
        o.append("s_waitcnt lgkmcnt(1)" if isA else "s_waitcnt lgkmcnt(0)")
        o += e[5:6] + [f"v_mfma_f32_32x32x16_bf16 {vr(Y,16)}, {vr(KF,4)}, {vr(QY,4)}, {vr(MY,16)}"]
        if isA and not last: o.append(f"ds_read_b128 {vr(KF,4)}, v{nx[0]} offset:{nx[1]}")
        o += e[6:9] + [f"v_mfma_f32_32x32x16_bf16 {vr(Y,16)}, {vr(KF+4,4)}, {vr(QY+4,4)}, {vr(Y,16)}"]
        if isA and last:
            o += [f"s_cmp_eq_u32 s56, 3", f"s_cbranch_scc1 {L('nobar')}", "s_waitcnt vmcnt(0) lgkmcnt(0)", "s_barrier", "s_setprio 2", f"{L('nobar')}:",
                  f"ds_read_b128 {vr(KF,4)}, v{nx[0]} offset:{nx[1]}"]
        if isA: o += [f"ds_read_b128 {vr(KF+4,4)}, v{nx[0]} offset:{nx[1]+1024}"]
        else: o.append("s_nop 0")
        o += e[9:12] + [pv(OX, V0, X)]
        if not isA: o.append(f"ds_read_b128 {vr(V0,4)}, v{nx[0]} offset:{nx[1]+2048}")
        elif j in PRIO: o.append(f"s_setprio {PRIO[j]}")
        else: o.append("s_nop 0")
        o += e[12:15] + [sm(LX, X)]
        if isA: o.append("s_waitcnt lgkmcnt(2)")
        else: o.append("s_nop 0")
        o += e[15:16]
        k("\n".join(o))
    for j in range(NTL):
        phase(SA, OA, LA, SB, OB, LB, QBr, MB_, True, j)
        phase(SB, OB, LB, SA, OA, LA, QA, MA, False, j)
    k(f"""s_cmp_eq_u32 s56, 3
    s_cbranch_scc1 {L('done')}
    s_cmp_eq_u32 s60, 0
    s_cbranch_scc1 {L('hooke_ret')}
    s_cmp_ge_u32 s56, 2
    s_cbranch_scc1 {L('hooke_ret')}
    s_add_u32 s62, s61, 4096
    s_add_u32 s47, s63, 4096""")
    kv4("s61", "s63"); kv4("s62", "s47")
    k(f"""{L('hooke_ret')}:
    s_add_u32 s63, s63, 32768
    v_mov_b32 v{VC}, v{VN}
    v_add_u32 v{VN}, s61, v14
    s_xor_b32 s61, s61, 0x10000
    s_add_u32 s56, s56, 1
    s_branch {L('loop')}""")
    k(f"{L('service')}:\ns_setprio 3")
    srd_arg(k, 32, 8, 0, 1024*7168)
    srd_arg(k, 36, 6, 0, 3584*2048)
    srd_arg(k, 4, 4, 0, 1024*12288)
    srd_arg(k, 64, 64, 0, 4*MB)
    srd_ws(k, 12, 10, WS_W1P, 7*MB)
    srd_ws(k, 16, 10, WS_W2P, 7*MB)
    srd_ws(k, 28, 10, 0, WS_WOP + 2*MB)
    pack_addr(k, "split", 2048, 2, 4, 5, 6, 47)
    k(f"""v_add_u32 v5, {SCR}, v5
    v_lshrrev_b32 v7, 3, v2
    v_mul_u32_u24 v7, 7168, v7
    v_and_b32 v6, 7, v2
    v_lshl_add_u32 v7, v6, 4, v7
    s_mul_i32 s45, s2, 7
    s_mov_b32 s56, {G.S + 2}
    {L('sbar')}:
    s_barrier
    s_sub_u32 s56, s56, 1
    s_cmp_lg_u32 s56, 0
    s_cbranch_scc1 {L('sbar')}""")
    def kvstage(st):
        k(f"s_mov_b32 s58, {65536*(st%2)}\ns_mov_b32 s57, {32768*st}\ns_mov_b32 s56, 8\n{L('skv%d' % st)}:")
        kv4(0, 0); kv4(32768, 131072)
        k(f"s_add_u32 s58, s58, 4096\ns_add_u32 s57, s57, 4096\ns_sub_u32 s56, s56, 1\ns_cmp_lg_u32 s56, 0\ns_cbranch_scc1 {L('skv%d' % st)}")
    def loop7(name, body):
        k(f"s_mov_b32 s56, 0\n{L(name)}:\ns_add_u32 s52, s45, s56\ns_lshl_b32 s53, s56, 12")
        body()
        k(f"s_add_u32 s56, s56, 1\ns_cmp_lt_u32 s56, 7\ns_cbranch_scc1 {L(name)}")
    def w2_in():
        k(f"""s_lshr_b32 s47, s52, 4
        s_lshl_b32 s47, s47, 16
        s_and_b32 s48, s52, 15
        s_lshl_b32 s48, s48, 7
        s_add_u32 s47, s47, s48
        s_add_u32 s46, s53, {SCR}""")
        pack_issue(k, 36, 2048, 4, 47, 46, 48)
    def w2_out():
        k("v_add_u32 v10, s53, v5")
        pack_read(k, "split", 10, 16)
        k(f"""s_and_b32 s47, s52, 15
        s_mul_i32 s47, s47, 112
        s_lshr_b32 s48, s52, 4
        s_add_u32 s47, s47, s48
        s_lshl_b32 s47, s47, 12
        s_waitcnt lgkmcnt(0)""")
        for nt in range(4): k(f"buffer_store_dwordx4 {vr(16+4*nt,4)}, v3, s[16:19], s47 offen offset:{1024*nt} {WT}")
    def w1_in():
        k(f"""s_and_b32 s47, s52, 31
        s_mul_i32 s47, s47, {32*7168}
        s_lshr_b32 s48, s52, 5
        s_lshl_b32 s48, s48, 7
        s_add_u32 s47, s47, s48
        s_add_u32 s46, s53, {SCR}""")
        pack_issue(k, 32, 7168, 7, 47, 46, 48)
    def w1_out():
        k("v_add_u32 v10, s53, v5")
        pack_read(k, "split", 10, 16)
        k(f"""s_and_b32 s47, s52, 31
        s_mul_i32 s47, s47, {14*1024}
        s_lshr_b32 s48, s52, 5
        s_lshl_b32 s48, s48, 2
        s_waitcnt lgkmcnt(0)""")
        for nt in range(4):
            k(f"""s_add_u32 s49, s48, {nt}
            s_mul_i32 s50, s49, 4682
            s_lshr_b32 s50, s50, 16
            s_mul_i32 s51, s50, 14
            s_sub_u32 s49, s49, s51
            s_cmp_ge_u32 s49, 6
            s_addc_u32 s51, s49, 0
            s_cmp_eq_u32 s49, 12
            s_cselect_b32 s51, 6, s51
            s_min_u32 s51, s51, 13
            s_mul_i32 s50, s50, {32*14*1024}
            s_lshl_b32 s51, s51, 10
            s_add_u32 s50, s50, s51
            s_add_u32 s50, s50, s47
            buffer_store_dwordx4 {vr(16+4*nt,4)}, v3, s[12:15], s50 offen {WT}""")
    k(f"""v_lshrrev_b32 v11, 3, v2
    v_mul_u32_u24 v11, 12288, v11
    v_lshl_add_u32 v11, v6, 4, v11
    v_lshlrev_b32 v8, 7, v2
    v_lshrrev_b32 v13, 4, v2
    v_lshlrev_b32 v15, 3, v13
    s_and_b32 s54, s2, 63
    s_lshr_b32 s55, s2, 6            ; k quarter""")
    k("s_barrier")
    kvstage(1)
    k(f"""s_lshl_b32 s47, s54, 7
    s_add_u32 s47, s47, 4096
    s_mul_i32 s48, s55, {256*12288}
    s_add_u32 s47, s47, s48
    s_mov_b32 s46, {SCR}
    s_mov_b32 s56, 32
    {L('sgi')}:
    s_mov_b32 m0, s46
    s_add_u32 s46, s46, 1024
    buffer_load_dwordx4 v11, s[4:7], s47 offen lds
    s_add_u32 s47, s47, {8*12288}
    s_sub_u32 s56, s56, 1
    s_cmp_lg_u32 s56, 0
    s_cbranch_scc1 {L('sgi')}""")
    k(f"s_lshl_b32 s47, s55, 9\ns_add_u32 s47, s47, {WS_SC}")
    for i in range(8):
        k(f"buffer_load_dwordx2 {vr(32+4*i,2)}, v15, s[28:31], s47 offen offset:{64*i}")
        k(f"buffer_load_dwordx2 {vr(34+4*i,2)}, v15, s[28:31], s47 offen offset:{64*i+32}")
    for j in range(4): k(f"v_mov_b32 v{84+j}, -1")
    k(f"""s_lshl_b32 s47, s2, 11
    s_add_u32 s47, s47, {WS_ST2}
    buffer_store_dwordx4 v[84:87], v3, s[28:31], s47 offen {WT}
    buffer_store_dwordx4 v[84:87], v3, s[28:31], s47 offen offset:1024 {WT}
    s_waitcnt vmcnt(50)""")
    stamp(k, 1)
    k("s_barrier")
    stamp(k, 2)
    k("s_waitcnt vmcnt(0)")
    kvstage(2)
    for c in range(8):
        k(f"v_add_u32 v10, {4096*c}, v5")
        pack_read(k, "split", 10, 16)
        k("s_waitcnt lgkmcnt(0)")
        for nt in range(4):
            k(f"v_mfma_f32_16x16x32_bf16 {vr(64+4*nt,4)}, {vr(16+4*nt,4)}, {vr(32+4*c,4)}, {'0' if c == 0 else vr(64+4*nt,4)}")
    k(f"""s_mul_i32 s47, s55, {6144*4}
    s_lshl_b32 s48, s54, 8
    s_add_u32 s47, s47, s48
    s_add_u32 s47, s47, {WS_MODP + 8192}
    v_lshlrev_b32 v15, 1, v15
    s_nop 3""")
    for nt in range(4): k(f"buffer_store_dwordx4 {vr(64+4*nt,4)}, v15, s[28:31], s47 offen offset:{64*nt} {WT}")
    loop7("sw2i", w2_in)
    k("s_waitcnt vmcnt(32)")
    stamp(k, 3)
    k("s_barrier")
    stamp(k, 4)
    k("s_waitcnt vmcnt(0)")
    kvstage(3)
    loop7("sw2o", w2_out)
    loop7("sw1i", w1_in)
    k("s_waitcnt vmcnt(56)")
    stamp(k, 5)
    k("s_barrier")
    stamp(k, 6)
    k(f"""s_lshr_b32 s50, s2, 3
    s_lshl_b32 s51, s50, 16
    s_add_u32 s51, s51, {WS_WOP}
    s_lshl_b32 s50, s50, 14
    s_and_b32 s49, s2, 7
    s_lshl_b32 s49, s49, 19
    s_add_u32 s50, s50, s49
    s_waitcnt vmcnt(0)""")
    for i in range(2): k(f"buffer_load_dword v14, v8, s[64:67], s50 offen\ns_add_u32 s50, s50, 8192")
    for i in range(8): k(f"buffer_load_dword v14, v8, s[28:31], s51 offen\ns_add_u32 s51, s51, 8192")
    code_pull(k, "oproj_kernel", "w1_kernel", 2, 80)
    loop7("sw1o", w1_out)
    if TIMING:
        stamp(k, 7)
        k("s_mov_b32 s42, 0")
        stamps_out(k, 9, 8)
    k("s_endpgm")
    k(f"{L('done')}:")
    stamp(k, 5)
    k(f"""s_nop 0
    {pv(OB, V1, SB+8)}
    {sm(LB, SB+8)}
    s_mul_i32 s50, s42, 4352
    v_add_u32 v11, s50, v3
    v_lshlrev_b32 v15, 2, v2
    v_add_u32 v15, s50, v15
    s_xor_b32 s51, s42, 4
    s_mul_i32 s51, s51, 4352
    s_lshl_b32 s52, s42, 2
    v_mov_b32 v13, s52
    v_max3_f32 v12, |v{OA}|, |v{OA+1}|, |v{OA+2}|""")
    for i in range(3, 15, 2): k(f"v_max3_f32 v12, v12, |v{OA+i}|, |v{OA+i+1}|")
    k(f"v_max3_f32 v12, v12, |v{OA+15}|, |v{OB}|")
    for i in range(1, 15, 2): k(f"v_max3_f32 v12, v12, |v{OB+i}|, |v{OB+i+1}|")
    k(f"""v_max_f32 v12, v12, |v{OB+15}|
    s_mov_b32 s52, {hex(f2u(2.0**126))}
    s_mov_b32 s53, {hex(f2u(2.0**79))}
    v_cmp_nlt_f32 s[54:55], v12, s52
    v_cmp_nlt_f32 s[48:49], v{LA}, s53
    v_cmp_nlt_f32 vcc, v{LB}, s53
    s_or_b64 s[54:55], s[54:55], vcc
    s_or_b64 s[54:55], s[54:55], s[48:49]
    s_cselect_b32 s52, 1, 0
    v_mov_b32 v12, s52
    ds_write_b32 v13, v12 offset:{FLAG}
    s_cmp_eq_u32 s44, 0
    s_cbranch_scc1 {L('sendB')}""")
    for i in range(4): k(f"ds_write_b128 v11, {vr(OA+4*i,4)} offset:{1024*i}")
    k(f"ds_write_b32 v15, v{LA} offset:4096")
    for i in range(0, 16, 2): k(f"v_mov_b64 {vr(OA+i,2)}, {vr(OB+i,2)}")
    k(f"v_mov_b32 v{LA}, v{LB}\ns_branch {L('sent')}\n{L('sendB')}:")
    for i in range(4): k(f"ds_write_b128 v11, {vr(OB+4*i,4)} offset:{1024*i}")
    k(f"ds_write_b32 v15, v{LB} offset:4096")
    k(f"""{L('sent')}:
    v_add_u32 v11, s51, v3
    v_lshlrev_b32 v15, 2, v2
    v_and_b32 v13, 28, v15
    v_add_u32 v15, s51, v15
    s_waitcnt lgkmcnt(0)
    s_barrier
    ds_read_b32 v13, v13 offset:{FLAG}
    ds_read_b32 v{LB}, v15 offset:4096""")
    for i in range(4): k(f"ds_read_b128 {vr(OB+4*i,4)}, v11 offset:{1024*i}")
    k(f"""v_bfe_u32 v11, v2, 4, 1
    v_lshlrev_b32 v11, 10, v11
    v_lshrrev_b32 v15, 5, v2
    v_lshl_add_u32 v11, v15, 8, v11
    v_and_b32 v15, 15, v2
    v_lshl_add_u32 v11, v15, 4, v11
    s_lshl_b32 s50, s40, 18
    s_lshl_b32 s51, s41, 14
    s_add_u32 s50, s50, s51
    s_lshl_b32 s51, s44, 13
    s_add_u32 s50, s50, s51
    s_lshl_b32 s51, s43, 11
    s_add_u32 s50, s50, s51
    s_waitcnt lgkmcnt(4)
    v_cmp_lt_u32 vcc, s60, v13
    v_add_f32 v{LA}, v{LA}, v{LB}
    v_rcp_f32 v{LA}, v{LA}
    s_cmp_lg_u64 vcc, 0
    s_cbranch_scc1 {L('fallback')}""")
    for i in range(4):
        k(f"s_waitcnt lgkmcnt({3-i})")
        for h in range(2): k(f"v_pk_add_f32 {vr(OA+4*i+2*h,2)}, {vr(OA+4*i+2*h,2)}, {vr(OB+4*i+2*h,2)}")
        for h in range(2): k(f"v_pk_mul_f32 {vr(OA+4*i+2*h,2)}, {vr(OA+4*i+2*h,2)}, {vr(LA,2)} op_sel_hi:[1,0]")
        k("s_nop 0")
        for h in range(2): k(f"v_cvt_pk_bf16_f32 v{SA+2*i+h}, v{OA+4*i+2*h}, v{OA+4*i+2*h+1}")
        if i % 2 == 1: k(f"buffer_store_dwordx4 {vr(SA+2*i-2,4)}, v11, s[24:27], s50 offen offset:{256*(i-1)} {OST}")
    stamps_out(k, 2, 6)
    k(f"""s_endpgm
    {L('fallback')}:
    s_mov_b32 s60, 1
    v_mov_b32 v12, 0xff800000
    v_mov_b32 v13, 0xff800000
    s_mov_b32 s50, 0
    s_waitcnt lgkmcnt(0)
    s_barrier
    {L('floop')}:
    buffer_load_dwordx4 {vr(KF,4)}, v3, s[20:23], s50 offen
    buffer_load_dwordx4 {vr(KF+4,4)}, v3, s[20:23], s50 offen offset:1024
    s_waitcnt vmcnt(0)
    v_mfma_f32_32x32x16_bf16 {vr(SA,16)}, {vr(KF,4)}, {vr(QA,4)}, 0
    v_mfma_f32_32x32x16_bf16 {vr(SB,16)}, {vr(KF,4)}, {vr(QBr,4)}, 0
    v_mfma_f32_32x32x16_bf16 {vr(SA,16)}, {vr(KF+4,4)}, {vr(QA+4,4)}, {vr(SA,16)}
    v_mfma_f32_32x32x16_bf16 {vr(SB,16)}, {vr(KF+4,4)}, {vr(QBr+4,4)}, {vr(SB,16)}
    s_nop 11""")
    rowmax(SA, 12, False); rowmax(SB, 13, False)
    k(f"""s_add_u32 s50, s50, 4096
    s_cmp_lt_u32 s50, 262144
    s_cbranch_scc1 {L('floop')}""")
    for st in range(2):
        kv4(65536*st, 32768*st); kv4(65536*st + 4096, 32768*st + 4096)
    zero_init()
    k(f"""s_waitcnt vmcnt(0)
    s_barrier
    s_branch {L('setmax')}
    {L('end')}:
    s_endpgm""")
    return k, (256, 576, 163840)
```

```python
from common import *

CFG = {
  "oproj": dict(A=WS_O, Asz=SZ_ACT, KB=32, W=WS_WOP, Wsz=2*MB, BN=64, KS=2, NS=6, map="R2"),
  "w1":    dict(A=WS_H2, Asz=SZ_ACT, KB=32, W=WS_W1P, Wsz=7*MB, BN=224, KS=1, NS=7, map="R8"),
  "w2":    dict(A=WS_U, Asz=SZ_U, KB=112, W=WS_W2P, Wsz=7*MB, BN=64, KS=2, NS=6, map="R4"),
}
for nm in CFG:
    if os.environ.get("MAP_" + nm): CFG[nm]["map"] = os.environ["MAP_" + nm]
UST = os.environ.get("UST", WT)
X1ST = os.environ.get("X1ST", WT)
H2ST = os.environ.get("H2ST", WT)
OUTST = os.environ.get("OUTST", WT)
SPIN_MAX = 1 << 22

def k_gemm(name):
    c = CFG[name]
    BN = c["BN"]
    k = Kern(f"{name}_kernel", 216 if BN == 224 else 184)
    G = Gemm(k, name, c["KB"], c["KS"], c["NS"], BN)
    L = G.L
    NT = G.NT
    MODL = G.LDS; STL = G.LDS + 1024
    k(f"s_cmp_ge_u32 s2, 256\ns_cbranch_scc1 {L('end')}")
    stamp(k, 0)
    KIDX = {"oproj": 3, "w1": 5, "w2": 6}[name]
    k(f"s_load_dwordx2 s[10:11], s[0:1], {A_WS}")
    if name == "oproj": k(f"s_load_dwordx2 s[6:7], s[0:1], {A_X}")
    if name == "w2": k(f"s_load_dwordx2 s[6:7], s[0:1], {A_OUT}")
    wg_map(k, c["map"], 40, 41)
    k(f"""v_lshrrev_b32 v1, 6, v0
    v_and_b32 v2, 63, v0
    v_readfirstlane_b32 s42, v1
    v_lshlrev_b32 v3, 4, v2
    s_waitcnt lgkmcnt(0)""")
    srd_ws(k, 12, 10, c["A"], c["Asz"])
    srd_ws(k, 16, 10, c["W"], c["Wsz"])
    k(f"s_cmp_lt_u32 s42, 4\ns_cbranch_scc1 {L('compute')}")
    def cp():
        k(f"s_cmp_lg_u32 s42, 7\ns_cbranch_scc1 {L('nopull')}")
        code_pull(k, *{"oproj": ("w1_kernel", "w2_kernel"), "w1": ("w2_kernel", "L_code_end")}[name], 2, 60)
        k(f"{L('nopull')}:")
    def mod_ld():
        srd_ws(k, 24, 10, WS_MODP, 4*6144*4)
        k(f"""s_lshl_b32 s57, s43, 12
        s_lshl_b32 s58, s41, 8
        s_add_u32 s57, s57, s58
        v_lshlrev_b32 v4, 2, v2""")
        for p in range(4): k(f"s_add_u32 s58, s57, {8192 + p*6144*4}\nbuffer_load_dword v{8+p}, v4, s[24:27], s58 offen")
    def mod_fin():
        k(f"""s_cmp_eq_u32 s43, 2
        s_cselect_b32 s58, 1.0, 0
        s_lshl_b32 s57, s43, 8
        s_add_u32 s57, s57, {MODL}
        v_add_u32 v4, s57, v4
        s_waitcnt vmcnt(0)
        v_add_f32 v8, v8, v9
        v_add_f32 v10, v10, v11
        v_add_f32 v8, v8, v10""")
        round_bf16(k, 8)
        k("v_add_f32 v8, s58, v8")
        round_bf16(k, 8)
        k("ds_write_b32 v4, v8\ns_waitcnt lgkmcnt(0)")
    hooks = {}
    if name != "w1": hooks[0] = (mod_ld, 4); hooks[G.NS-2] = (mod_fin, 0)
    if name == "oproj": hooks[0] = (lambda: (mod_ld(), cp()), 4)
    if name == "w1": hooks[G.NS-1] = (cp, 0)
    G.loader(hooks)
    stamp(k, 3)
    if name == "oproj":
        srd_ws(k, 24, 10, WS_ST2, 2048*256)
        k(f"""s_lshl_b32 s57, s40, 15
        s_lshl_b32 s58, s43, 8
        s_add_u32 s57, s57, s58
        v_and_b32 v4, 15, v2
        v_lshrrev_b32 v5, 4, v2
        v_lshlrev_b32 v6, 10, v5
        v_lshl_add_u32 v6, v4, 4, v6
        s_mov_b32 s59, {SPIN_MAX}
        {L('poll')}:""")
        for i in range(8): k(f"s_add_u32 s58, s57, {4096*i}\nbuffer_load_dwordx4 {vr(8+4*i,4)}, v6, s[24:27], s58 offen sc1")
        k("s_waitcnt vmcnt(0)\nv_max3_u32 v7, v8, v9, v10")
        for i in range(11, 39, 2): k(f"v_max3_u32 v7, v7, v{i}, v{i+1}")
        k(f"""v_max_u32 v7, v7, v39
        v_cmp_eq_u32 vcc, -1, v7
        s_sub_u32 s59, s59, 1
        s_cbranch_scc1 {L('polled')}
        s_cmp_lg_u64 vcc, 0
        s_cbranch_scc1 {L('poll')}
        {L('polled')}:""")
        for i in range(1, 8):
            k(f"v_pk_add_f32 v[8:9], v[8:9], {vr(8+4*i,2)}\nv_pk_add_f32 v[10:11], v[10:11], {vr(10+4*i,2)}")
        k(f"""s_lshl_b32 s58, s43, 8
        s_add_u32 s58, s58, {STL}
        v_permlane16_swap_b32 v8, v10
        v_permlane16_swap_b32 v9, v11
        v_pk_add_f32 v[8:9], v[8:9], v[10:11]
        v_and_b32 v5, 1, v5
        v_lshlrev_b32 v5, 3, v5
        v_mov_b64 v[10:11], v[8:9]
        v_lshl_add_u32 v5, v4, 4, v5
        v_add_u32 v5, s58, v5
        v_permlane32_swap_b32 v8, v10
        v_permlane32_swap_b32 v9, v11
        v_pk_add_f32 v[8:9], v[8:9], v[10:11]
        v_mul_f32 v10, {hex(f2u(-1/1024))}, v8
        v_mul_f32 v9, {hex(f2u(1/1024))}, v9
        v_fma_f32 v9, -v10, v10, v9
        v_max_f32 v9, 0, v9""")
        ln_finish(k, 9, 10, 8)
        k("ds_write_b64 v5, v[8:9]\ns_waitcnt lgkmcnt(0)")
        stamp(k, 4)
        k("s_barrier")
    stamps_out(k, KIDX, 5 if name == "oproj" else 4)
    k("s_endpgm")
    k(f"{L('compute')}:")
    X = 12
    NF = G.KS * (G.MT + NT)
    ACC = X + 8*NF
    EPI = ACC + 16*NT
    k(f"""s_and_b32 s43, s42, 1            ; th
    s_lshr_b32 s44, s42, 1           ; nh
    v_and_b32 v4, 15, v2             ; t
    v_lshrrev_b32 v5, 4, v2          ; g""")
    if name in ("oproj", "w2"):
        srd_ws(k, 20, 10, WS_X1, 2*SZ_ACT)
        srd_arg(k, 28, 6, 0, 4*MB)
        k(f"""s_lshl_b32 s59, s40, 18
        s_lshl_b32 s58, s41, 14
        s_add_u32 s59, s59, s58
        s_lshl_b32 s58, s44, 13
        s_add_u32 s59, s59, s58
        s_lshl_b32 s58, s43, 12
        s_add_u32 s59, s59, s58
        s_lshl_b32 s60, s40, 18
        s_lshl_b32 s58, s43, 17
        s_add_u32 s60, s60, s58
        s_lshl_b32 s58, s41, 7
        s_add_u32 s60, s60, s58
        s_lshl_b32 s58, s44, 6
        s_add_u32 s60, s60, s58
        s_lshl_b32 s58, s44, 7
        s_add_u32 s58, s58, {MODL}
        v_lshl_add_u32 v6, v5, 4, s58
        v_lshlrev_b32 v7, 11, v4
        v_lshl_add_u32 v7, v5, 3, v7""")
    def pre():
        if name == "oproj":
            for m in range(4):
                k(f"s_add_u32 s58, s60, {m*32768}")
                k(f"buffer_load_dwordx2 {vr(EPI+8+4*m,2)}, v7, s[28:31], s58 offen")
                k(f"buffer_load_dwordx2 {vr(EPI+10+4*m,2)}, v7, s[28:31], s58 offen offset:32")
        else:
            for m in range(4):
                k(f"buffer_load_dwordx4 {vr(EPI+8+4*m,4)}, v3, s[20:23], s59 offen offset:{1024*m}")
    if name == 'w1': srd_ws(k, 20, 10, WS_U, SZ_U)
    G.compute(X, ACC, 8, 9, 10, 11, pre if name != 'w1' else None)
    stamp(k, 3)
    if BN == 64:
        ga = 0 if name == "oproj" else 768
        k(f"ds_read_b128 {vr(EPI,4)}, v6 offset:{ga}\nds_read_b128 {vr(EPI+4,4)}, v6 offset:{ga+64}")
        if name == "oproj":
            for j in range(2):
                k(f"ds_read_b128 {vr(EPI+24+4*j,4)}, v6 offset:{256+64*j}\nds_read_b128 {vr(EPI+32+4*j,4)}, v6 offset:{512+64*j}")
        T = X
        k("s_waitcnt vmcnt(0)")
        for m in range(4):
            for j in range(4):
                t = T + 8*m + 2*j
                k(f"v_lshlrev_b32 v{t}, 16, v{EPI+8+4*m+j}\nv_and_b32 v{t+1}, 0xffff0000, v{EPI+8+4*m+j}")
        k("s_waitcnt lgkmcnt(0)")
        for m in range(4):
            for j in range(4):
                t = T + 8*m + 2*j
                k(f"v_pk_fma_f32 {vr(t,2)}, {vr(ACC+8*m+2*j,2)}, {vr(EPI+2*j,2)}, {vr(t,2)}")
        def pack(m):
            for j in range(4): k(f"v_cvt_pk_bf16_f32 v{EPI+8+4*m+j}, v{T+8*m+2*j}, v{T+8*m+2*j+1}")
        if name == "oproj":
            S1, S2 = T + 32, T + 40
            for m in range(4):
                t = T + 8*m
                k(f"v_pk_add_f32 {vr(S1+2*m,2)}, {vr(t,2)}, {vr(t+2,2)}\nv_pk_mul_f32 {vr(S2+2*m,2)}, {vr(t,2)}, {vr(t,2)}")
            for m in range(4):
                t = T + 8*m
                k(f"v_pk_add_f32 {vr(S1+2*m,2)}, {vr(S1+2*m,2)}, {vr(t+4,2)}\nv_pk_fma_f32 {vr(S2+2*m,2)}, {vr(t+2,2)}, {vr(t+2,2)}, {vr(S2+2*m,2)}")
            for m in range(4):
                t = T + 8*m
                k(f"v_pk_add_f32 {vr(S1+2*m,2)}, {vr(S1+2*m,2)}, {vr(t+6,2)}\nv_pk_fma_f32 {vr(S2+2*m,2)}, {vr(t+4,2)}, {vr(t+4,2)}, {vr(S2+2*m,2)}")
            for m in range(4):
                t = T + 8*m
                k(f"v_pk_fma_f32 {vr(S2+2*m,2)}, {vr(t+6,2)}, {vr(t+6,2)}, {vr(S2+2*m,2)}")
            for m in range(4):
                k(f"v_add_f32 v{S1+2*m}, v{S1+2*m}, v{S1+2*m+1}\nv_add_f32 v{S1+2*m+1}, v{S2+2*m}, v{S2+2*m+1}")
            srd_ws(k, 24, 10, WS_ST2, 2048*256)
            for j in range(2): k(f"v_permlane16_swap_b32 v{S1+j}, v{S1+2+j}\nv_permlane16_swap_b32 v{S1+4+j}, v{S1+6+j}")
            k(f"v_pk_add_f32 {vr(S1,2)}, {vr(S1,2)}, {vr(S1+2,2)}\nv_pk_add_f32 {vr(S1+4,2)}, {vr(S1+4,2)}, {vr(S1+6,2)}")
            k(f"""s_lshl_b32 s57, s40, 15
            s_lshl_b32 s58, s41, 11
            s_add_u32 s57, s57, s58
            s_lshl_b32 s58, s42, 9
            s_add_u32 s57, s57, s58
            v_lshlrev_b32 v7, 3, v2""")
            for j in range(2): k(f"v_permlane32_swap_b32 v{S1+j}, v{S1+4+j}")
            k(f"""v_pk_add_f32 {vr(S1,2)}, {vr(S1,2)}, {vr(S1+4,2)}
            v_min_u32 v{S1}, -2, v{S1}
            v_min_u32 v{S1+1}, -2, v{S1+1}
            buffer_store_dwordx2 {vr(S1,2)}, v7, s[24:27], s57 offen {WT}""")
            for m in range(4):
                pack(m)
                k(f"buffer_store_dwordx4 {vr(EPI+8+4*m,4)}, v3, s[20:23], s59 offen offset:{1024*m} {X1ST}")
            k(f"""s_lshl_b32 s58, s43, 9
            s_add_u32 s58, s58, {STL}
            v_lshl_add_u32 v7, v4, 3, s58
            s_add_u32 s59, s59, {SZ_ACT}""")
            stamp(k, 4)
            k("s_barrier")
            for m in range(4): k(f"ds_read_b64 {vr(S1+2*m,2)}, v7 offset:{128*m}")
            for m in range(4):
                k(f"s_waitcnt lgkmcnt({3-m})")
                for j in range(4):
                    t = T + 8*m + 2*j
                    k(f"v_pk_fma_f32 {vr(t,2)}, {vr(t,2)}, {vr(S1+2*m,2)}, {vr(S1+2*m,2)} op_sel:[0,1,0] op_sel_hi:[1,1,0]")
                for j in range(4):
                    t = T + 8*m + 2*j
                    k(f"v_pk_fma_f32 {vr(t,2)}, {vr(t,2)}, {vr(EPI+32+2*j,2)}, {vr(EPI+24+2*j,2)}")
                for j in range(4): k(f"v_cvt_pk_bf16_f32 v{ACC+4*m+j}, v{T+8*m+2*j}, v{T+8*m+2*j+1}")
                k(f"buffer_store_dwordx4 {vr(ACC+4*m,4)}, v3, s[20:23], s59 offen offset:{1024*m} {H2ST}")
        else:
            k(f"""v_and_b32 v7, 1, v5
            v_lshlrev_b32 v7, 5, v7
            v_lshrrev_b32 v8, 1, v5
            v_lshl_add_u32 v7, v8, 4, v7
            v_lshl_add_u32 v7, v4, 11, v7""")
            for m in range(4):
                xr = EPI + 8 + 4*m
                pack(m)
                k(f"s_add_u32 s58, s60, {m*32768}\ns_nop 0")
                k(f"v_permlane16_swap_b32 v{xr}, v{xr+2}\nv_permlane16_swap_b32 v{xr+1}, v{xr+3}")
                k(f"buffer_store_dwordx4 {vr(xr,4)}, v7, s[28:31], s58 offen {OUTST}")
    else:
        k(f"""s_mul_i32 s48, s40, {112*8192}
        s_mul_i32 s47, s41, {7*8192}
        s_add_u32 s48, s48, s47
        s_lshl_b32 s47, s43, 12
        s_add_u32 s48, s48, s47
        s_add_u32 s50, s48, {6*8192}
        s_lshl_b32 s47, s44, 3
        s_add_u32 s50, s50, s47
        s_mul_i32 s47, s44, {3*8192}
        s_add_u32 s48, s48, s47
        s_mov_b32 s52, {hex(f2u(-LOG2E))}""")
        T = X
        def silu(a, n, dst):
            for i in range(0, n, 2): k(f"v_pk_mul_f32 {vr(T+i,2)}, {vr(a+i,2)}, s[52:53] op_sel_hi:[1,0]")
            for i in range(n): k(f"v_exp_f32 v{T+i}, v{T+i}")
            for i in range(0, n, 2): k(f"v_pk_add_f32 {vr(T+i,2)}, {vr(T+i,2)}, 1.0 op_sel_hi:[1,0]")
            for i in range(n): k(f"v_rcp_f32 v{T+i}, v{T+i}")
            for i in range(0, n, 2): k(f"v_pk_mul_f32 {vr(T+i,2)}, {vr(T+i,2)}, {vr(a+i,2)}")
            for i in range(0, n, 2): k(f"v_cvt_pk_bf16_f32 v{dst+i//2}, v{T+i}, v{T+i+1}")
        P = T + 8
        cnt = 0
        for p in range(4):
            if p < 3: k(f"s_add_u32 s47, s48, {p*8192}")
            for m in range(4):
                o = P + 4*(cnt % 8); cnt += 1
                if p < 3:
                    silu(ACC + 4*(m*NT + 2*p), 8, o)
                    k(f"buffer_store_dwordx4 {vr(o,4)}, v3, s[20:23], s47 offen offset:{1024*m} {UST}")
                else:
                    silu(ACC + 4*(m*NT + 2*p), 4, o)
                    k(f"buffer_store_dwordx2 {vr(o,2)}, v3, s[20:23], s50 offen offset:{1024*m} {UST}")
    stamps_out(k, KIDX, 5 if name == "oproj" else 4)
    k(f"{L('end')}:\ns_endpgm")
    return k, (256, 512, G.LDS + (2048 if BN == 64 else 0))
```

```python
import sys, math
from common import *

PACKEARLY = os.environ.get("PACKEARLY", "0") == "1"
def tb_map(k, dst, sub=0, shift=0):
    k(f"s_and_b32 s{dst}, s2, 7\ns_lshl_b32 s{dst}, s{dst}, 4\ns_sub_u32 s3, s2, {sub}\ns_lshr_b32 s3, s3, {3+shift}\ns_add_u32 s{dst}, s{dst}, s3")

def gemv_part(k, pfx, RW, lds, mid=None, publish=None):
    NI = RW // 8
    k(f"""v_lshrrev_b32 v4, 3, v2          ; r
    v_and_b32 v5, 7, v2              ; c8
    v_mul_u32_u24 v6, {NI*12288}, v4
    v_lshl_add_u32 v6, v5, 4, v6
    s_lshl_b32 s30, s29, 3
    s_add_u32 s30, s30, s42
    s_mul_i32 s31, s30, {RW*2}
    s_mul_i32 s30, s30, {RW*12288}
    s_lshl_b32 s21, s28, 7
    s_add_u32 s30, s30, s21
    v_lshlrev_b32 v7, 2, v2
    s_waitcnt lgkmcnt(0)""")
    srd_arg(k, 12, 4, 0, 2048)
    srd_arg(k, 16, 6, 0, 1024*12288)
    srd_ws(k, 24, 10, WS_MODP, 4*6144*4)
    k("buffer_load_dword v8, v7, s[12:15], s31 offen")
    for i in range(NI):
        k(f"s_add_u32 s22, s30, {i*12288}\nbuffer_load_dwordx4 v[{32+4*i}:{35+4*i}], v6, s[16:19], s22 offen")
    nmid = mid() if mid else 0
    stamp(k, 1)
    k(f"""s_waitcnt vmcnt({NI+nmid})
    v_and_b32 v9, 0xffff0000, v8
    v_lshlrev_b32 v8, 16, v8
    v_mul_f32 v10, {hex(f2u(-LOG2E))}, v8
    v_mul_f32 v11, {hex(f2u(-LOG2E))}, v9
    v_exp_f32 v10, v10
    v_exp_f32 v11, v11
    s_lshl_b32 s22, s42, 9
    v_add_f32 v10, 1.0, v10
    v_add_f32 v11, 1.0, v11
    v_rcp_f32 v10, v10
    v_rcp_f32 v11, v11
    s_add_u32 s22, s22, {lds}
    v_mul_f32 v8, v8, v10
    v_mul_f32 v9, v9, v11""")
    srd_ws(k, 12, 10, WS_SC, 2048)
    k(f"""v_cvt_pk_bf16_f32 v10, v8, v9
    s_cmp_eq_u32 s28, 0
    s_cselect_b32 s14, 2048, 0
    v_mov_b32 v11, 0x80000000
    v_cmp_gt_u32 vcc, {RW//2}, v2
    v_lshlrev_b32 v8, 16, v10
    v_and_b32 v9, 0xffff0000, v10
    v_cndmask_b32 v11, v11, v7, vcc
    buffer_store_dword v10, v11, s[12:15], s31 offen {WT}""")
    nmid += 1
    k(f"""v_lshl_add_u32 v10, v2, 3, s22
    ds_write_b64 v10, v[8:9]
    v_lshl_add_u32 v10, v4, {(NI*4).bit_length()-1}, s22
    s_waitcnt lgkmcnt(0)""")
    for i in range(NI//4): k(f"ds_read_b128 v[{12+4*i}:{15+4*i}], v10 offset:{16*i}")
    k("s_waitcnt lgkmcnt(0)")
    for i in range(NI):
        k(f"s_waitcnt vmcnt({NI-1-i+nmid})")
        for d in range(4):
            w = 32 + 4*i + d
            op = "v_mul_f32" if i == 0 else "v_fmac_f32"
            k(f"v_lshlrev_b32 v{28+2*(d%2)}, 16, v{w}\nv_and_b32 v{29+2*(d%2)}, 0xffff0000, v{w}")
            k(f"{op} v{20+2*d}, v{28+2*(d%2)}, v{12+i}\n{op} v{21+2*d}, v{29+2*(d%2)}, v{12+i}")
    stamp(k, 2)
    k("s_nop 1")
    for j in range(4): k(f"v_permlane32_swap_b32 v{20+j}, v{24+j}")
    for j in range(4): k(f"v_add_f32 v{20+j}, v{20+j}, v{24+j}")
    k("s_nop 1")
    for j in range(2): k(f"v_permlane16_swap_b32 v{20+j}, v{22+j}")
    for j in range(2): k(f"v_add_f32 v{20+j}, v{20+j}, v{22+j}")
    k("s_nop 1")
    for j in range(2): k(f"v_add_f32_dpp v{20+j}, v{20+j}, v{20+j} row_ror:8 row_mask:0xf bank_mask:0xf")
    k(f"""v_lshrrev_b32 v10, 4, v2
    v_lshlrev_b32 v10, 3, v10
    v_lshl_add_u32 v10, v5, 5, v10
    s_lshl_b32 s22, s42, 8
    s_add_u32 s22, s22, {lds+4096}
    v_add_u32 v10, s22, v10
    ds_write_b64 v10, v[20:21]
    s_cmp_lg_u32 s42, 0
    s_cbranch_scc1 L_{pfx}_nowait""")
    publish()
    k(f"""L_{pfx}_nowait:
    s_waitcnt lgkmcnt(0)
    s_barrier
    s_cmp_lg_u32 s42, 0
    s_cbranch_scc1 L_{pfx}_gdone
    v_add_u32 v10, {lds+4096}, v7""")
    for p in range(8): k(f"ds_read_b32 v{12+p}, v10 offset:{256*p}")
    k(f"""s_mul_i32 s21, s29, {6144*4}
    s_lshl_b32 s22, s28, 8
    s_add_u32 s21, s21, s22
    s_waitcnt lgkmcnt(0)""")
    for p in range(1, 8): k(f"v_add_f32 v12, v12, v{12+p}")
    k(f"v_min_u32 v12, -2, v12\nbuffer_store_dword v12, v7, s[24:27], s21 offen {WT}")
    k(f"L_{pfx}_gdone:")

def k_front():
    k = Kern("front_kernel", 216)
    k("s_cmp_ge_u32 s2, 256\ns_cbranch_scc1 L_f_end")
    stamp(k, 0)
    k(f"""v_lshrrev_b32 v1, 6, v0
    v_and_b32 v2, 63, v0
    v_readfirstlane_b32 s42, v1
    s_load_dwordx2 s[10:11], s[0:1], {A_WS}
    s_load_dwordx2 s[56:57], s[0:1], {A_DBG}
    s_cmp_ge_u32 s2, 128
    s_cbranch_scc1 L_f_ln
    s_load_dwordx2 s[4:5], s[0:1], {A_C}
    s_load_dwordx2 s[6:7], s[0:1], {A_WMOD}
    s_load_dwordx2 s[8:9], s[0:1], {A_WQ}
    s_load_dwordx2 s[36:37], s[0:1], {A_WO}
    s_and_b32 s28, s2, 31
    s_lshr_b32 s29, s2, 5
    v_lshlrev_b32 v3, 4, v2""")
    def wait_init(tag, srd, v):
        srd_arg(k, srd, 56, 0, 256)
        k(f"""v_and_b32 v{v}, 7, v2
        v_lshlrev_b32 v{v}, 2, v{v}
        s_mov_b32 s51, {1 << 22}
        L_f_wi{tag}:
        buffer_load_dword v{v+1}, v{v}, s[{srd}:{srd+3}], 0 offen sc1
        s_waitcnt vmcnt(0)
        v_cmp_eq_u32 vcc, 0, v{v+1}
        s_sub_u32 s51, s51, 1
        s_cbranch_scc1 L_f_wd{tag}
        s_cmp_lg_u64 vcc, 0
        s_cbranch_scc1 L_f_wi{tag}
        L_f_wd{tag}:""")
    def post():
        pack_addr(k, "nat", 2048, 2, 64, 65, 66, 47)
        k("""v_bfe_u32 v66, v2, 4, 1
        v_lshlrev_b32 v66, 9, v66
        v_sub_u32 v66, v65, v66
        s_cmp_lt_u32 s42, 4
        s_cselect_b64 vcc, -1, 0
        s_cselect_b32 s32, s8, s36
        s_cselect_b32 s33, s9, s37
        s_and_b32 s33, s33, 0xffff
        s_mov_b32 s34, 0x200000
        s_mov_b32 s35, 0x20000
        v_cndmask_b32 v65, v66, v65, vcc
        s_lshl_b32 s45, s2, 2
        s_and_b32 s46, s42, 3
        s_add_u32 s45, s45, s46
        s_lshl_b32 s46, s42, 12
        v_add_u32 v65, s46, v65
        s_lshr_b32 s47, s45, 4
        s_lshl_b32 s47, s47, 16
        s_and_b32 s48, s45, 15
        s_lshl_b32 s48, s48, 7
        s_add_u32 s47, s47, s48""")
        if PACKEARLY:
            k("s_barrier")
            pack_issue(k, 32, 2048, 64, 47, 46, 48)
            return 4
        return 0
    gemv_part(k, "f1", 32, 32768, post, lambda: wait_init("g", 12, 28))
    stamp(k, 3)
    if not PACKEARLY: pack_issue(k, 32, 2048, 64, 47, 46, 48)
    srd_ws(k, 16, 10, WS_WQP, 4*MB)
    k("s_cmp_lg_u32 s42, 7\ns_cbranch_scc1 L_f_nopull")
    code_pull(k, "attn_kernel", "back_kernel", 2, 70)
    k(f"""L_f_nopull:
    s_and_b32 s47, s45, 15
    s_lshl_b32 s47, s47, 5
    s_lshr_b32 s48, s45, 4
    s_add_u32 s47, s47, s48
    s_lshl_b32 s47, s47, 12
    s_cmp_lt_u32 s42, 4
    s_waitcnt vmcnt(0)
    s_cbranch_scc0 L_f_pko""")
    pack_read(k, "nat", 65, 32)
    k(f"s_branch L_f_pkst\nL_f_pko:\ns_add_u32 s47, s47, {2*MB}")
    pack_read(k, "att", 65, 32)
    k("L_f_pkst:\ns_waitcnt lgkmcnt(0)")
    for nt in range(4): k(f"buffer_store_dwordx4 {vr(32+4*nt,4)}, v3, s[16:19], s47 offen offset:{1024*nt} {WT}")
    stamps_out(k, 0, 4)
    k("s_endpgm")
    XP, XF, SCL, SHF, T, WF, ACC = 8, 24, 56, 88, 120, 144, 120
    MODL = 131072; STATL = MODL + 8192
    k(f"""L_f_ln:
    s_load_dwordx2 s[4:5], s[0:1], {A_X}
    s_load_dwordx2 s[6:7], s[0:1], {A_WK}
    s_load_dwordx2 s[8:9], s[0:1], {A_WV}""")
    tb_map(k, 40, 128)
    k(f"""v_and_b32 v3, 15, v2             ; t
    v_lshrrev_b32 v4, 4, v2          ; g
    v_lshlrev_b32 v5, 11, v3
    v_lshl_add_u32 v5, v4, 4, v5
    s_lshl_b32 s43, s40, 15
    s_lshl_b32 s44, s42, 8
    s_add_u32 s43, s43, s44
    v_lshrrev_b32 v7, 2, v2
    v_and_b32 v136, 3, v2
    v_lshrrev_b32 v137, 5, v2
    v_lshlrev_b32 v137, 1, v137
    v_xor_b32 v136, v136, v137
    v_lshlrev_b32 v7, 6, v7
    v_lshl_add_u32 v7, v136, 4, v7
    s_lshl_b32 s46, s42, 13
    s_lshl_b32 s47, s42, 14
    s_add_u32 s48, s46, 4096
    s_waitcnt lgkmcnt(0)""")
    srd_arg(k, 12, 4, 0, 4*MB)
    srd_arg(k, 16, 6, 0, 65536)
    srd_arg(k, 20, 8, 0, 65536)
    srd_ws(k, 24, 10, WS_MODP, 4*6144*4)
    srd_arg(k, 36, 56, 0, 256)
    k(f"""v_lshlrev_b32 v6, 4, v0
    s_cmp_ge_u32 s2, 136
    s_cbranch_scc1 L_f_noinit
    s_cmp_eq_u32 s42, 0
    s_cbranch_scc1 L_f_init
    s_barrier
    s_branch L_f_noinit
    L_f_init:
    s_and_b32 s55, s2, 7
    s_lshl_b32 s45, s55, 10""")
    for j in range(4): k(f"v_mov_b32 v{XF+j}, -1")
    for p in range(4): k(f"buffer_store_dwordx4 {vr(XF,4)}, v6, s[24:27], s45 offen {WT}\ns_add_u32 s45, s45, {6144*4}")
    k(f"""s_lshl_b32 s55, s55, 2
    v_mov_b32 v{XF+4}, s55
    s_waitcnt vmcnt(0)
    buffer_store_dword v{XF}, v{XF+4}, s[36:39], 0 offen {WT}
    s_barrier
    L_f_noinit:""")
    stamp(k, 1)
    k(f"""
    s_and_b32 s45, s40, 15
    s_lshl_b32 s45, s45, 12
    s_cmp_lt_u32 s42, 2
    s_cselect_b32 s45, s45, 0x40000000
    v_lshlrev_b32 v141, 6, v2
    s_cmp_eq_u32 s42, 0
    s_cbranch_scc1 L_f_pk
    buffer_load_dword v142, v141, s[20:23], s45 offen
    s_branch L_f_pd
    L_f_pk:
    buffer_load_dword v142, v141, s[16:19], s45 offen
    L_f_pd:""")
    for i in range(4):
        k(f"buffer_load_dwordx4 v[{XP+4*i}:{XP+4*i+3}], v5, s[12:15], s43 offen offset:{64*i}")
    k("s_waitcnt vmcnt(0)")
    def wdma(mat, h):
        srd = 16 + 4*mat
        k(f"s_add_u32 m0, s47, {mat*8192 + h*4096}\ns_nop 0")
        for i in range(4):
            k(f"buffer_load_dwordx4 v7, s[{srd}:{srd+3}], s{46 if h == 0 else 48} offen offset:{1024*i} lds")
    srd_ws(k, 28, 10, WS_H1, SZ_ACT)
    srd_ws(k, 32, 10, WS_KV, 262144)
    stamp(k, 2)
    wdma(0, 0)
    s_, t1, a, b = T, T+1, T+2, T+3
    for i in range(16):
        k(f"v_lshlrev_b32 v{XF+2*i}, 16, v{XP+i}\nv_and_b32 v{XF+2*i+1}, 0xffff0000, v{XP+i}")
    k(f"v_pk_add_f32 v[{s_}:{s_+1}], v[{XF}:{XF+1}], v[{XF+2}:{XF+3}]")
    for i in range(4, 32, 2): k(f"v_pk_add_f32 v[{s_}:{s_+1}], v[{s_}:{s_+1}], v[{XF+i}:{XF+i+1}]")
    k(f"v_add_f32 v{s_}, v{s_}, v{t1}")
    xlane_sum(k, s_, t1)
    k(f"""v_lshlrev_b32 v{a}, 5, v3
    v_add_u32 v{a}, {STATL}, v{a}
    v_lshl_add_u32 v{b}, v1, 2, v{a}
    ds_write_b32 v{b}, v{s_}""")
    wdma(1, 0)
    k(f"""s_waitcnt lgkmcnt(0)
    s_barrier
    ds_read_b128 v[{T+4}:{T+7}], v{a}
    ds_read_b128 v[{T+8}:{T+11}], v{a} offset:16""")
    wdma(0, 1)
    k("s_waitcnt lgkmcnt(0)")
    for i in range(5, 12): k(f"v_add_f32 v{T+4}, v{T+4}, v{T+i}")
    mean = T + 12
    k(f"v_mul_f32 v{mean}, {hex(f2u(-1/1024))}, v{T+4}")
    for i in range(0, 32, 2):
        k(f"v_pk_add_f32 v[{SCL+i}:{SCL+i+1}], v[{XF+i}:{XF+i+1}], v[{mean}:{mean+1}] op_sel_hi:[1,0]")
    k(f"v_pk_mul_f32 v[{s_}:{s_+1}], v[{SCL}:{SCL+1}], v[{SCL}:{SCL+1}]")
    for i in range(2, 32, 2): k(f"v_pk_fma_f32 v[{s_}:{s_+1}], v[{SCL+i}:{SCL+i+1}], v[{SCL+i}:{SCL+i+1}], v[{s_}:{s_+1}]")
    k(f"v_add_f32 v{s_}, v{s_}, v{t1}")
    xlane_sum(k, s_, t1)
    k(f"ds_write_b32 v{b}, v{s_} offset:512")
    wdma(1, 1)
    k("s_cmp_lg_u32 s42, 0\ns_cbranch_scc1 L_f_wdl")
    wait_init("l", 36, 141)
    k(f"""s_waitcnt lgkmcnt(0)
    s_barrier
    ds_read_b128 v[{T+4}:{T+7}], v{a} offset:512
    ds_read_b128 v[{T+8}:{T+11}], v{a} offset:528
    s_lshr_b32 s49, s40, 3
    s_lshl_b32 s49, s49, 18
    s_and_b32 s50, s40, 7
    s_lshl_b32 s50, s50, 10
    s_add_u32 s49, s49, s50
    s_lshl_b32 s50, s42, 15
    s_add_u32 s49, s49, s50
    v_lshlrev_b32 v136, 4, v2
    v_lshrrev_b32 v137, 2, v3
    v_lshl_add_u32 v137, v4, 3, v137
    v_lshlrev_b32 v137, 6, v137
    v_and_b32 v138, 3, v2
    v_lshl_add_u32 v137, v138, 3, v137
    v_and_b32 v138, 1, v4
    v_lshlrev_b32 v138, 5, v138
    v_add_u32 v137, s47, v137
    v_add_u32 v139, v137, v138
    v_xor_b32 v138, 32, v138
    v_add_u32 v140, v137, v138
    s_waitcnt lgkmcnt(0)""")
    for i in range(5, 12): k(f"v_add_f32 v{T+4}, v{T+4}, v{T+i}")
    k(f"v_mul_f32 v{T+5}, {hex(f2u(1/1024))}, v{T+4}")
    ln_finish(k, T+5, mean, T+4)
    for i in range(0, 32, 2):
        k(f"v_pk_fma_f32 v[{XF+i}:{XF+i+1}], v[{XF+i}:{XF+i+1}], v[{T+4}:{T+5}], v[{T+4}:{T+5}] op_sel:[0,1,0] op_sel_hi:[1,1,0]")
    k("s_waitcnt vmcnt(0)")
    for i in range(4):
        for mat in range(2):
            for nt in range(2):
                bb = WF + 16*i + 8*mat + 4*nt
                off = mat*8192 + i*2048
                k(f"ds_read_b64_tr_b16 v[{bb}:{bb+1}], v{139+nt} offset:{off}")
                k(f"ds_read_b64_tr_b16 v[{bb+2}:{bb+3}], v{139+nt} offset:{off+256}")
    stamp(k, 3)
    k(f"s_mov_b32 s51, {1 << 22}\nL_f_poll:")
    for p in range(4):
        k(f"s_mov_b32 s45, {p*6144*4}\nbuffer_load_dwordx4 {vr(SCL+4*p,4)}, v6, s[24:27], s45 offen sc1")
    k(f"s_waitcnt vmcnt(0)\nv_max3_u32 v141, v{SCL}, v{SCL+1}, v{SCL+2}")
    for i in range(3, 15, 2): k(f"v_max3_u32 v141, v141, v{SCL+i}, v{SCL+i+1}")
    k(f"""v_max_u32 v141, v141, v{SCL+15}
    v_cmp_eq_u32 vcc, -1, v141
    s_sub_u32 s51, s51, 1
    s_cbranch_scc1 L_f_ready
    s_cmp_lg_u64 vcc, 0
    s_cbranch_scc1 L_f_poll
    L_f_ready:""")
    stamp(k, 4)
    k(f"""s_cmp_ge_u32 s42, 4
    s_cselect_b32 s45, 1.0, 0
    v_add_u32 v6, {MODL}, v6""")
    for h in range(2): k(f"v_pk_add_f32 {vr(SCL+2*h,2)}, {vr(SCL+2*h,2)}, {vr(SCL+4+2*h,2)}\nv_pk_add_f32 {vr(SCL+8+2*h,2)}, {vr(SCL+8+2*h,2)}, {vr(SCL+12+2*h,2)}")
    for h in range(2): k(f"v_pk_add_f32 {vr(SCL+2*h,2)}, {vr(SCL+2*h,2)}, {vr(SCL+8+2*h,2)}")
    for j in range(4): round_bf16(k, SCL+j)
    for j in range(4): k(f"v_add_f32 v{SCL+j}, s45, v{SCL+j}")
    for j in range(4): round_bf16(k, SCL+j)
    k(f"""ds_write_b128 v6, {vr(SCL,4)}
    s_lshl_b32 s45, s42, 9
    s_add_u32 s45, s45, {MODL}
    v_lshl_add_u32 v6, v4, 5, s45
    s_waitcnt lgkmcnt(0)
    s_barrier""")
    for i in range(4):
        for h in range(2):
            k(f"ds_read_b128 {vr(SHF+8*i+4*h,4)}, v6 offset:{128*i+16*h}")
            k(f"ds_read_b128 {vr(SCL+8*i+4*h,4)}, v6 offset:{4096+128*i+16*h}")
    for i in range(4):
        k(f"s_waitcnt lgkmcnt({12-4*i})")
        for j in range(0, 8, 2): k(f"v_pk_fma_f32 {vr(XF+8*i+j,2)}, {vr(XF+8*i+j,2)}, {vr(SCL+8*i+j,2)}, {vr(SHF+8*i+j,2)}")
        for j in range(4): k(f"v_cvt_pk_bf16_f32 v{XP+4*i+j}, v{XF+8*i+2*j}, v{XF+8*i+2*j+1}")
        k("s_nop 1")
        for mat in range(2):
            for nt in range(2):
                bb = WF + 16*i + 8*mat + 4*nt
                c = ACC + 8*mat + 4*nt
                cin = "0" if i == 0 else vr(c, 4)
                if mat == 0: k(f"v_mfma_f32_16x16x32_bf16 {vr(c,4)}, {vr(bb,4)}, {vr(XP+4*i,4)}, {cin}")
                else:        k(f"v_mfma_f32_16x16x32_bf16 {vr(c,4)}, {vr(XP+4*i,4)}, {vr(bb,4)}, {cin}")
    k("v_add_u32 v137, s47, v136")
    for i in range(4):
        k(f"s_add_u32 s50, s49, {8192*i}\nbuffer_store_dwordx4 v[{XP+4*i}:{XP+4*i+3}], v136, s[28:31], s50 offen {H1ST}")
    for j in range(4): k(f"ds_write_b128 v137, {vr(ACC+4*j,4)} offset:{1024*j}")
    k(f"""s_waitcnt lgkmcnt(0)
    s_barrier
    s_cmp_ge_u32 s42, 2
    s_cbranch_scc1 L_f_end""")
    stamp(k, 5)
    k(f"""s_lshl_b32 s51, s42, 11
    v_add_u32 v137, s51, v136
    v_add_u32 v138, 0x10000, v137""")
    for p in range(8):
        aa = 137 if p < 4 else 138
        for nt in range(2):
            k(f"ds_read_b128 {vr(24+8*p+4*nt,4)}, v{aa} offset:{(p%4)*16384+1024*nt}")
    k(f"""s_lshr_b32 s52, s40, 1
    s_lshl_b32 s52, s52, 12
    s_and_b32 s53, s40, 1
    v_and_b32 v137, 1, v4
    v_lshrrev_b32 v138, 1, v4
    v_lshlrev_b32 v138, 9, v138
    v_lshl_add_u32 v138, v3, 4, v138""")
    for p in range(1, 8):
        k(f"s_waitcnt lgkmcnt({2*(7-p)})")
        for j in range(0, 8, 2): k(f"v_pk_add_f32 {vr(24+j,2)}, {vr(24+j,2)}, {vr(24+8*p+j,2)}")
    for j in range(4): k(f"v_cvt_pk_bf16_f32 v{120+j}, v{24+2*j}, v{25+2*j}")
    k(f"""s_cmp_eq_u32 s42, 1
    s_cbranch_scc1 L_f_v
    s_lshl_b32 s53, s53, 8
    s_add_u32 s52, s52, s53
    v_lshl_add_u32 v137, v137, 10, v138
    buffer_store_dwordx4 v[120:123], v137, s[32:35], s52 offen {WT}""")
    stamp(k, 6)
    stamps_out(k, 1, 7)
    k(f"""s_endpgm
    L_f_v:
    s_lshl_b32 s53, s53, 10
    s_add_u32 s52, s52, s53
    v_lshl_add_u32 v137, v137, 3, v138
    buffer_store_dwordx2 v[120:121], v137, s[32:35], s52 offen offset:2048 {WT}
    buffer_store_dwordx2 v[122:123], v137, s[32:35], s52 offen offset:2304 {WT}
    L_f_end:
    s_endpgm""")
    return k, (256, 512, 131072 + 8192 + 1024)

H1ST = os.environ.get("H1ST", WT)
H2ST = os.environ.get("H2ST", WT)

from gen_back import k_back
from gen_attn import k_attn

def build(path):
    ks = [k_front(), k_attn(os.environ.get("FORCEFB") == "1"), k_back()]
    nd = int(os.environ.get("DUMMY", "0"))
    if nd:
        d = Kern("dummy_kernel", 8); d("s_endpgm")
        ks_extra = [(d, (256, 64, 0))] * nd
    else: ks_extra = []
    hdr = ["; adaLN + MQA attention + SiLU MLP block, gfx950. Generated by gen/gen.py (hand-written generator)."]
    for k, (g, b, lds) in ks + ks_extra:
        hdr.append(f"; @launch kernel={k.name} grid=({g},1,1) block=({b},1,1) lds={lds}")
    ks = ks + ks_extra[:1]
    out = "\n".join(hdr) + '\n.amdgcn_target "amdgcn-amd-amdhsa--gfx950"\n.text\n'
    bad = 0
    for k, _ in ks:
        errs, stats = check(k)
        print(f"{k.name}: maxv={stats[0]} maxs={stats[1]} ninstr={stats[3]}", file=sys.stderr)
        for e in errs: print("HAZARD", e, file=sys.stderr); bad += 1
        out += k.text()
    out += 'L_code_end:\n.section .rodata,"a"\n'
    for k, _ in ks: out += k.desc()
    open(path, "w").write(out)
    return bad

if __name__ == "__main__":
    p = sys.argv[1] if len(sys.argv) > 1 else f"cdna_kernels/{NAME}.s"
    sys.exit(1 if build(p) else 0)
```

```python
from asmlib import Kern, vr, sr, check
NAME = "adaLN_cond__grouped_kv_mqa__dense_activation_silu__prompt"
A_X, A_WQ, A_WK, A_WV, A_WO, B_X, B_W1, B_W2, A_C, A_WMOD, A_OUT, A_DBG, A_WS = [8*i for i in range(13)]
MB = 1 << 20
WS_MOD = 0
WS_MODP = 65536
WS_SC = 196608
WS_ST1 = 262144
WS_ST2 = 524288
WS_H1 = 1*MB
WS_KV = 5*MB
WS_O = 6*MB
WS_X1 = 10*MB
WS_H2 = 14*MB
WS_U = 18*MB
WS_WQP = 32*MB
WS_WOP = 34*MB
WS_W1P = 36*MB
WS_W2P = 43*MB
SZ_ACT = 4*MB
SZ_U = 2048*3584*2
LOG2E = 1.4426950408889634
def f2u(x):
    import struct
    return struct.unpack("<I", struct.pack("<f", x))[0]

def srd_arg(k, d, tmp, argoff, size):
    k(f"s_mov_b32 s{d}, s{tmp}\ns_and_b32 s{d+1}, s{tmp+1}, 0xffff\ns_mov_b32 s{d+2}, {size}\ns_mov_b32 s{d+3}, 0x20000")
def srd_ws(k, d, ws, off, size):
    k(f"s_add_u32 s{d}, s{ws}, {off}\ns_addc_u32 s{d+1}, s{ws+1}, 0\ns_and_b32 s{d+1}, s{d+1}, 0xffff\ns_mov_b32 s{d+2}, {size}\ns_mov_b32 s{d+3}, 0x20000")

def xlane_sum(k, v, t, op="v_add_f32"):
    k(f"v_mov_b32 v{t}, v{v}\ns_nop 1\nv_permlane16_swap_b32 v{v}, v{t}\n{op} v{v}, v{v}, v{t}")
    k(f"v_mov_b32 v{t}, v{v}\ns_nop 1\nv_permlane32_swap_b32 v{v}, v{t}\n{op} v{v}, v{v}, v{t}")

def round_bf16(k, v):
    k(f"v_cvt_pk_bf16_f32 v{v}, v{v}, v{v}\nv_and_b32 v{v}, 0xffff0000, v{v}")


import os
TIMING = os.environ.get("TIMING", "0") != "0"
TINS = "s_memtime" if os.environ.get("TIMING") == "2" else "s_memrealtime"
WS_FLG = 5*MB + 524288
WS_XB = 50*MB
WS_TIME = 60*MB
TS0 = 70
def stamp(k, i):
    if TIMING: k(f"{TINS} s[{TS0+2*i}:{TS0+2*i+1}]")
def stamps_out(k, kidx, n, wsreg=10, vtmp=0):
    if not TIMING: return
    k(f"""s_waitcnt vmcnt(0) lgkmcnt(0)
    {TINS} s[{TS0+2*n}:{TS0+2*n+1}]
    s_add_u32 s66, s{wsreg}, {WS_TIME + kidx*262144}
    s_addc_u32 s67, s{wsreg+1}, 0
    s_lshl_b32 s94, s2, 9
    s_lshl_b32 s95, s42, 6
    s_add_u32 s94, s94, s95
    v_mov_b32 v{vtmp}, s94
    s_waitcnt lgkmcnt(0)""")
    for i in range(n+1):
        k(f"v_mov_b32 v{vtmp+1}, s{TS0+2*i}\nglobal_store_dword v{vtmp}, v{vtmp+1}, s[66:67] offset:{4*i}")
    k("s_waitcnt vmcnt(0)")

PRE_AT = int(os.environ.get("PRE_AT", "4"))
WT = os.environ.get("WT", "sc0 sc1")
ORD = {"nat": (16, 8, 4), "split": (8, 4, 16), "att": (16, 4, 8)}

def pack_addr(k, order, pitch, vl, vsrc, vtr, vt, stmp):
    a, b, sel = ORD[order]
    k(f"""v_lshrrev_b32 v{vsrc}, 3, v{vl}
    s_mov_b32 s{stmp}, {pitch}
    v_mul_lo_u32 v{vsrc}, v{vsrc}, s{stmp}
    v_and_b32 v{vt}, 7, v{vl}
    v_lshl_add_u32 v{vsrc}, v{vt}, 4, v{vsrc}
    v_bfe_u32 v{vtr}, v{vl}, 2, 2
    v_bfe_u32 v{vt}, v{vl}, 4, 1
    v_lshl_add_u32 v{vtr}, v{vt}, {b.bit_length()-1}, v{vtr}
    v_lshrrev_b32 v{vt}, 5, v{vl}
    v_lshl_add_u32 v{vtr}, v{vt}, {a.bit_length()-1}, v{vtr}
    v_lshlrev_b32 v{vtr}, 7, v{vtr}
    v_and_b32 v{vt}, 3, v{vl}
    v_lshl_add_u32 v{vtr}, v{vt}, 3, v{vtr}""")

def pack_issue(k, srd, pitch, vsrc, s_src, s_lds, stmp):
    for i in range(4):
        k(f"s_add_u32 m0, s{s_lds}, {1024*i}\ns_add_u32 s{stmp}, s{s_src}, {8*i*pitch}")
        k(f"buffer_load_dwordx4 v{vsrc}, s[{srd}:{srd+3}], s{stmp} offen lds")

def pack_read(k, order, vaddr, F):
    sel = ORD[order][2]
    for nt in range(4):
        k(f"ds_read_b64_tr_b16 {vr(F+4*nt,2)}, v{vaddr} offset:{32*nt}")
        k(f"ds_read_b64_tr_b16 {vr(F+4*nt+2,2)}, v{vaddr} offset:{32*nt+128*sel}")

def wg_map(k, mode, rb, ct, tmp=39):
    lr = {"R2": 1, "R4": 2, "R8": 3, "R16": 4}[mode]
    if os.environ.get("SCRAMBLE") == "1":
        k("s_lshr_b32 s3, s2, 3\ns_and_b32 s3, s3, 7\ns_xor_b32 s2, s2, s3\ns_lshr_b32 s3, s2, 6\ns_xor_b32 s2, s2, s3")
    k(f"""s_and_b32 s{rb}, s2, 7
    s_lshr_b32 s3, s2, 3
    s_and_b32 s{ct}, s{rb}, {(1 << (lr-1)) - 1}
    s_lshl_b32 s{ct}, s{ct}, {5-lr}
    s_lshr_b32 s{rb}, s{rb}, {lr-1}
    s_lshl_b32 s{rb}, s{rb}, {lr}
    s_and_b32 s{tmp}, s3, {(1 << lr) - 1}
    s_or_b32 s{rb}, s{rb}, s{tmp}
    s_lshr_b32 s{tmp}, s3, {lr}
    s_or_b32 s{ct}, s{ct}, s{tmp}""")

def interleave(mf, other, start=0, step=1):
    slots = [[] for _ in mf]
    for i, o in enumerate(other):
        slots[min(start + int(i*step), len(mf)-1)].append(o)
    out = []
    for m, s in zip(mf, slots):
        out.append(m); out += s
    return out

class Gemm:
    def __init__(self, k, name, KB, KS, NS, BN, base=0, split=1, skh=None, aflag=''):
        self.aflag = aflag
        self.k, self.name, self.KB, self.KS, self.NS, self.BN, self.base = k, name, KB, KS, NS, BN, base
        self.split, self.skh = split, skh
        self.S = KB // KS
        self.ASZ = KS * 8192
        self.BSZ = KS * BN * 64
        self.STG = self.ASZ + self.BSZ
        self.LDS = self.STG * NS
        self.NT = BN // 32; self.MT = 4
        self.bper = self.BSZ // 4
        self.nb = (self.bper + 1023) // 1024
        self.d = 2*KS + self.nb
    def L(self, s): return f"L_{self.name}_{s}"
    def slot_adv(self):
        return [f"s_add_u32 s53, s53, {self.STG}", f"s_cmp_eq_u32 s53, {self.base+self.LDS}", f"s_cselect_b32 s53, {self.base}, s53"]
    def issueA(self, adv=True):
        k = self.k
        k("s_add_u32 m0, s53, s46\ns_nop 0")
        for i in range(2*self.KS):
            k(f"buffer_load_dwordx4 v3, s[12:15], s45 offen offset:{1024*i} {self.aflag} lds")
        k(f"s_add_u32 s45, s45, {self.ASZ}")
        if adv: k(f"s_add_u32 s53, s53, {self.STG}")
    def issueB(self, slot):
        k = self.k
        k(f"s_add_u32 m0, s49, {slot}\ns_nop 0")
        for i in range(self.nb):
            half = (i+1)*1024 > self.bper
            if half: k("s_mov_b32 exec_hi, 0")
            k(f"buffer_load_dwordx4 v3, s[16:19], s47 offen offset:{1024*i} lds")
            if half: k("s_mov_b32 exec_hi, -1")
        k(f"s_add_u32 s47, s47, {self.BSZ}")
    def issue(self):
        k = self.k
        k("s_add_u32 m0, s53, s46\ns_add_u32 s54, s53, s49")
        for i in range(2*self.KS):
            k(f"buffer_load_dwordx4 v3, s[12:15], s45 offen offset:{1024*i} {self.aflag} lds")
        k(f"s_mov_b32 m0, s54\ns_add_u32 s45, s45, {self.ASZ}")
        for i in range(self.nb):
            half = (i+1)*1024 > self.bper
            if half: k("s_mov_b32 exec_hi, 0")
            k(f"buffer_load_dwordx4 v3, s[16:19], s47 offen offset:{1024*i} lds")
            if half: k("s_mov_b32 exec_hi, -1")
        k(f"s_add_u32 s47, s47, {self.BSZ}")
        k("\n".join(self.slot_adv()))
    def loader(self, tail_hooks=None, gate=None, npre=0, st=1):
        k, S, NS, d = self.k, self.S, self.NS, self.d
        tail_hooks = tail_hooks or {}
        k(f"""s_sub_u32 s43, s42, 4
        s_mul_i32 s45, s40, {self.split*self.KB*8192}
        s_mul_i32 s46, s43, {2*self.KS*1024}
        s_add_u32 s45, s45, s46
        s_mul_i32 s47, s41, {self.split*self.KB*self.BN*64}
        s_mul_i32 s49, s43, {self.bper}
        s_add_u32 s47, s47, s49
        s_add_u32 s49, s49, {self.ASZ}
        s_mov_b32 s53, {self.base}""")
        if self.split > 1:
            k(f"s_mul_i32 s48, s{self.skh}, {self.KB*8192}\ns_add_u32 s45, s45, s48\ns_mul_i32 s48, s{self.skh}, {self.KB*self.BN*64}\ns_add_u32 s47, s47, s48")
        assert npre < NS
        for i in range(npre): self.issueB(self.base + i*self.STG)
        if gate: gate()
        ops = []; issued = 0
        def iss(n):
            nonlocal issued
            for _ in range(n):
                if issued < npre: self.issueA(); ops.extend([issued] * (2*self.KS))
                else: self.issue(); ops.extend([issued] * d)
                issued += 1
        def after(s): return sum(1 for o in ops if o > s)
        iss(2 if npre < 2 else min(npre, 3))
        stamp(k, st)
        k(f"s_waitcnt vmcnt({after(0)})")
        stamp(k, st+1)
        k("s_barrier")
        iss(min(2, NS-issued))
        s = 0
        while issued < s + NS or after(s+1) != (NS-2)*d:
            k(f"s_waitcnt vmcnt({after(s+1)})\ns_barrier")
            iss(min(2, s + NS + 1 - issued))
            s += 1
        assert issued == s + NS
        k(f"s_mov_b32 s56, {S-NS-s}\n{self.L('lloop')}:")
        k(f"s_waitcnt vmcnt({(NS-2)*d})\ns_barrier")
        self.issue()
        k(f"s_sub_u32 s56, s56, 1\ns_cmp_lg_u32 s56, 0\ns_cbranch_scc1 {self.L('lloop')}")
        extra = 0
        for i, s in enumerate(range(S-NS, S)):
            k(f"s_waitcnt vmcnt({max(0, S-2-s)*d + extra})\ns_barrier")
            if i in tail_hooks:
                fn, n = tail_hooks[i]; fn(); extra += n
    def compute(self, X, ACC, va, vb, vca, vcb, pre=None, pre_at=None, hooks=None, st=1, before=None, after=None):
        k, KS, MT, NT = self.k, self.KS, self.MT, self.NT
        NF = KS * (MT + NT); Y = X + 4*NF
        k(f"""s_lshl_b32 s45, s43, 12
        v_add_u32 v{va}, s45, v3
        s_mul_i32 s46, s44, {NT*1024}
        s_add_u32 s46, s46, {self.ASZ}
        v_add_u32 v{vb}, s46, v3
        s_mov_b32 s53, {self.base}""")
        for i in range(4*MT*NT): k(f"v_mov_b32 v{ACC+i}, 0")
        upd = [f"v_add_u32 v{vca}, s53, v{va}", f"v_add_u32 v{vcb}, s53, v{vb}"] + self.slot_adv()
        def reads(F):
            r = []
            for ks in range(KS):
                f = F + 4*ks*(MT+NT)
                a = [f"ds_read_b128 {vr(f+4*m,4)}, v{vca} offset:{ks*8192+1024*m}" for m in range(MT)]
                b = [f"ds_read_b128 {vr(f+4*MT+4*n,4)}, v{vcb} offset:{ks*self.BN*64+1024*n}" for n in range(NT)]
                r += [b[0]] + a + b[1:]
            return r
        def mfmas(F):
            r = []
            for ks in range(KS):
                f = F + 4*ks*(MT+NT)
                for n in range(NT):
                    for m in range(MT):
                        a = ACC + 4*(m*NT + n)
                        r.append(f"v_mfma_f32_16x16x32_bf16 {vr(a,4)}, {vr(f+4*MT+4*n,4)}, {vr(f+4*m,4)}, {vr(a,4)}")
            return r
        k("\n".join(upd))
        if before: before()
        stamp(k, st)
        k("s_barrier")
        stamp(k, st+1)
        if after: after()
        k("\n".join(reads(X) + upd))
        k(f"s_mov_b32 s56, {self.S//2}\ns_waitcnt lgkmcnt(0)")
        k(f".p2align 6\n{self.L('cloop')}:")
        for (cu, nx) in ((X, Y), (Y, X)):
            k("s_barrier")
            mf = mfmas(cu); oth = reads(nx) + upd
            k("\n".join(interleave(mf, oth, 0, min(1.0, (len(mf)-1)/len(oth)))))
            k("s_waitcnt lgkmcnt(0)")
        hooks = dict(hooks or {})
        if pre: hooks[pre_at or PRE_AT] = pre
        if hooks:
            mask = sum(1 << h for h in hooks)
            k(f"s_bitcmp1_b32 {hex(mask)}, s56\ns_cbranch_scc1 {self.L('hook')}\n{self.L('hookret')}:")
        k(f"s_sub_u32 s56, s56, 1\ns_cmp_lg_u32 s56, 0\ns_cbranch_scc1 {self.L('cloop')}")
        if hooks:
            k(f"s_branch {self.L('cdone')}\n{self.L('hook')}:")
            hs = sorted(hooks)
            for h in hs:
                if h != hs[-1]: k(f"s_cmp_lg_u32 s56, {h}\ns_cbranch_scc1 {self.L('hk%d' % h)}")
                hooks[h]()
                k(f"s_branch {self.L('hookret')}")
                if h != hs[-1]: k(f"{self.L('hk%d' % h)}:")
            k(f"{self.L('cdone')}:")
        return X + 8*NF

CODEPF = os.environ.get("CODEPF", "1") == "1"
def code_pull(k, first, last, vl, vt, sp=68):
    if not CODEPF: return 0
    lab = k.label("pc")
    n = CODE_LINES.get((first, last), 2)
    k(f"""s_getpc_b64 s[{sp}:{sp+1}]
    {lab}:
    s_add_u32 s{sp}, s{sp}, {first}-{lab}
    s_addc_u32 s{sp+1}, s{sp+1}, 0
    v_lshlrev_b32 v{vt}, 7, v{vl}""")
    for i in range(n):
        k(f"v_min_u32 v{vt+1}, {last}-{first}-4, v{vt}\nglobal_load_dword v{vt+2}, v{vt+1}, s[{sp}:{sp+1}]")
        if i + 1 < n: k(f"v_add_u32 v{vt}, 8192, v{vt}")
    return n
CODE_LINES = {("back_kernel", "L_code_end"): 2, ("attn_kernel", "back_kernel"): 2, ("front2_kernel", "oproj_kernel"): 3, ("attn_kernel", "oproj_kernel"): 2, ("oproj_kernel", "w1_kernel"): 1, ("w1_kernel", "w2_kernel"): 1, ("w2_kernel", "L_code_end"): 1}

def ln_finish(k, var, nmean, off):
    round_bf16(k, var)
    k(f"v_add_f32 v{var}, {hex(f2u(1e-5))}, v{var}")
    round_bf16(k, var)
    k(f"v_sqrt_f32 v{var}, v{var}\ns_nop 0")
    round_bf16(k, var)
    k(f"v_rcp_f32 v{var}, v{var}")
    round_bf16(k, nmean)
    k(f"v_mul_f32 v{off}, v{nmean}, v{var}")


SPLITK = os.environ.get("SPLITK", "1") == "1"
```

```python
from common import *
import math

OST = os.environ.get('OST', WT)
def k_attn(force_fallback=False):
    k = Kern("attn_kernel", 168)
    L = lambda s: f"L_attn_{s}"
    QB = 65536; SCR = 128*1024; XCH = SCR; CMB = 0; FLAG = 36*1024
    SA, SB, OA, OB, MA, MB_ = 16, 32, 48, 64, 80, 96
    QA, QBr, KF, V0, V1, LA, LB, ONE = 112, 120, 128, 136, 140, 144, 148, 152
    IDX, VC, VN = 156, 157, 158
    k(f"s_cmp_ge_u32 s2, 256\ns_cbranch_scc1 {L('end')}")
    stamp(k, 0)
    k(f"""s_load_dwordx2 s[10:11], s[0:1], {A_WS}
    s_load_dwordx2 s[8:9], s[0:1], {B_W1}
    s_load_dwordx2 s[6:7], s[0:1], {B_W2}
    s_load_dwordx2 s[4:5], s[0:1], {A_WMOD}
    s_load_dwordx2 s[64:65], s[0:1], {A_X}""")
    wg_map(k, "R2", 40, 41)
    k(f"""v_lshrrev_b32 v1, 6, v0
    v_and_b32 v2, 63, v0
    v_readfirstlane_b32 s42, v1
    v_lshlrev_b32 v3, 4, v2
    s_waitcnt lgkmcnt(0)""")
    srd_ws(k, 12, 10, WS_H1, SZ_ACT)
    srd_ws(k, 16, 10, WS_WQP, 2*MB)
    srd_ws(k, 20, 10, WS_KV, 262144)
    G = Gemm(k, "attnq", 32, 2, 4, 64, base=QB)
    def kv4(lds, goff):
        k(f"s_add_u32 m0, s58, {lds}\ns_add_u32 s59, s57, {goff}")
        for i in range(4): k(f"buffer_load_dwordx4 v3, s[20:23], s59 offen offset:{1024*i} lds")
    def zero_init():
        for i in range(16): k(f"v_mov_b32 v{OA+i}, 0\nv_mov_b32 v{OB+i}, 0\nv_mov_b32 v{SB+i}, 0")
        for i in range(4): k(f"v_mov_b32 v{LA+i}, 0\nv_mov_b32 v{LB+i}, 0\nv_mov_b32 v{V1+i}, 0")
    k(f"s_cmp_lt_u32 s42, 4\ns_cbranch_scc1 {L('qcomp')}\ns_cmp_eq_u32 s42, 8\ns_cbranch_scc1 {L('service')}")
    k("s_and_b32 s57, s42, 3\ns_lshl_b32 s57, s57, 13\ns_mov_b32 s58, s57")
    def kvh(h):
        def f():
            kv4(32768*h, 131072*h); kv4(32768*h + 4096, 131072*h + 4096)
        return (f, 8)
    G.loader({0: kvh(0), 1: kvh(1)})
    k(f"""s_branch {L('join')}
    {L('qcomp')}:
    s_and_b32 s43, s42, 1
    s_lshr_b32 s44, s42, 1""")
    QACC = 112
    G.compute(16, QACC, 8, 9, 10, 11)
    k(f"""s_mov_b32 s50, {hex(f2u(LOG2E / math.sqrt(32.0)))}
    s_lshl_b32 s51, s42, 12
    s_add_u32 s51, s51, {XCH}
    v_add_u32 v11, s51, v3
    s_nop 4""")
    for i in range(0, 32, 2): k(f"v_pk_mul_f32 {vr(QACC+i,2)}, {vr(QACC+i,2)}, s[50:51] op_sel_hi:[1,0]")
    for i in range(16): k(f"v_cvt_pk_bf16_f32 v{SA+i}, v{QACC+2*i}, v{QACC+2*i+1}")
    k("s_nop 1")
    for p in range(2):
        for i in range(4): k(f"v_permlane16_swap_b32 v{SA+8*p+i}, v{SA+8*p+4+i}")
    for i in range(4): k(f"ds_write_b128 v11, {vr(SA+4*i,4)} offset:{1024*i}")
    k(f"{L('join')}:\ns_setprio 2")
    stamp(k, 3)
    srd_ws(k, 24, 10, WS_O, SZ_ACT)
    zero_init()
    k(f"""s_and_b32 s43, s42, 3
    s_lshr_b32 s44, s42, 2
    s_lshl_b32 s57, s44, 17
    s_lshl_b32 s58, s43, 13
    s_add_u32 s57, s57, s58
    s_lshl_b32 s58, s42, 13
    s_lshl_b32 s50, s43, 11
    s_add_u32 s50, s50, {XCH}
    v_add_u32 v11, s50, v3
    v_mov_b32 v{IDX}, 0xdddddddd
    v_and_b32 v12, 7, v2
    v_mov_b32 v13, 0x3f803f80
    v_cmp_eq_u32 vcc, 0, v12
    s_nop 1
    v_cndmask_b32 v{ONE}, 0, v13, vcc
    v_cndmask_b32 v{ONE+1}, 0, v13, vcc
    v_cmp_eq_u32 vcc, 4, v12
    s_nop 1
    v_cndmask_b32 v{ONE+2}, 0, v13, vcc
    v_cndmask_b32 v{ONE+3}, 0, v13, vcc
    s_lshl_b32 s50, s44, 15
    v_add_u32 v14, s50, v3
    s_mov_b32 s60, 0
    s_waitcnt vmcnt(0) lgkmcnt(0)
    s_barrier
    ds_read_b128 {vr(QA,4)}, v11
    ds_read_b128 {vr(QA+4,4)}, v11 offset:1024
    ds_read_b128 {vr(QBr,4)}, v11 offset:8192
    ds_read_b128 {vr(QBr+4,4)}, v11 offset:9216
    ds_read_b128 {vr(KF,4)}, v3
    ds_read_b128 {vr(KF+4,4)}, v3 offset:1024""")
    k(f"""s_waitcnt lgkmcnt(0)
    s_barrier
    v_mfma_f32_32x32x16_bf16 {vr(SA,16)}, {vr(KF,4)}, {vr(QA,4)}, 0
    v_mfma_f32_32x32x16_bf16 {vr(MB_,16)}, {vr(KF,4)}, {vr(QBr,4)}, 0
    v_mfma_f32_32x32x16_bf16 {vr(SA,16)}, {vr(KF+4,4)}, {vr(QA+4,4)}, {vr(SA,16)}
    v_mfma_f32_32x32x16_bf16 {vr(MB_,16)}, {vr(KF+4,4)}, {vr(QBr+4,4)}, {vr(MB_,16)}
    s_nop 10""")
    def rowmax(S, dst, first):
        if first:
            k(f"v_max3_f32 v{dst}, v{S}, v{S+1}, v{S+2}")
            for i in range(3, 15, 2): k(f"v_max3_f32 v{dst}, v{dst}, v{S+i}, v{S+i+1}")
            k(f"v_max_f32 v{dst}, v{dst}, v{S+15}")
        else:
            for i in range(0, 16, 2): k(f"v_max3_f32 v{dst}, v{dst}, v{S+i}, v{S+i+1}")
    rowmax(SA, 12, True); rowmax(MB_, 13, True)
    if force_fallback:
        k("v_add_f32 v12, 0xc3000000, v12\nv_add_f32 v13, 0xc3000000, v13")
    k(f"""{L('setmax')}:
    v_mov_b32 v{VC}, v14
    v_add_u32 v{VN}, 0x10000, v14
    v_mov_b32 v15, v12
    v_mov_b32 v11, v13
    ds_read_b128 {vr(KF,4)}, v{VC}
    ds_read_b128 {vr(KF+4,4)}, v{VC} offset:1024
    ds_read_b128 {vr(V0,4)}, v{VC} offset:2048
    v_permlane32_swap_b32 v12, v15
    v_permlane32_swap_b32 v13, v11
    v_max_f32 v12, v12, v15
    v_max_f32 v13, v13, v11""")
    for i in range(16): k(f"v_sub_f32 v{MA+i}, 0, v12")
    k(f"""s_mov_b32 s56, 0                 ; stage
    s_mov_b32 s61, 0                 ; slot(s)
    s_mov_b32 s63, {2*32768}
    s_waitcnt lgkmcnt(0)
    v_mfma_f32_32x32x16_bf16 {vr(SA,16)}, {vr(KF,4)}, {vr(QA,4)}, {vr(MA,16)}
    v_mfma_f32_32x32x16_bf16 {vr(SA,16)}, {vr(KF+4,4)}, {vr(QA+4,4)}, {vr(SA,16)}""")
    for i in range(16): k(f"v_sub_f32 v{MB_+i}, 0, v13")
    stamp(k, 4)
    if TIMING: k("s_waitcnt lgkmcnt(0)")
    k(f".p2align 6\n{L('loop')}:")
    def pv(O, V, S): return f"v_smfmac_f32_32x32x32_bf16 {vr(O,16)}, {vr(V,4)}, {vr(S,8)}, v{IDX}"
    def sm(Lr, S): return f"v_smfmac_f32_16x16x64_bf16 {vr(Lr,4)}, {vr(ONE,4)}, {vr(S,8)}, v{IDX}"
    NTL = 8
    PRIO = {2: 1, 4: 0} if os.environ.get('PRIO', '1') == '1' else {}
    def phase(X, OX, LX, Y, OY, LY, QY, MY, isA, j):
        e = [f"v_exp_f32 v{X+i}, v{X+i}" for i in range(16)]
        last = j == NTL - 1
        nx = (VC, (j+1)*4096) if not last else (VN, 0)
        o = e[0:2] + [pv(OY, V1, Y+8)]
        if isA: o.append(f"ds_read_b128 {vr(V1,4)}, v{VC} offset:{j*4096+3072}")
        o += e[2:5] + [sm(LY, Y+8)]
        o.append("s_waitcnt lgkmcnt(1)" if isA else "s_waitcnt lgkmcnt(0)")
        o += e[5:6] + [f"v_mfma_f32_32x32x16_bf16 {vr(Y,16)}, {vr(KF,4)}, {vr(QY,4)}, {vr(MY,16)}"]
        if isA and not last: o.append(f"ds_read_b128 {vr(KF,4)}, v{nx[0]} offset:{nx[1]}")
        o += e[6:9] + [f"v_mfma_f32_32x32x16_bf16 {vr(Y,16)}, {vr(KF+4,4)}, {vr(QY+4,4)}, {vr(Y,16)}"]
        if isA and last:
            o += [f"s_cmp_eq_u32 s56, 3", f"s_cbranch_scc1 {L('nobar')}", "s_waitcnt vmcnt(0) lgkmcnt(0)", "s_barrier", "s_setprio 2", f"{L('nobar')}:",
                  f"ds_read_b128 {vr(KF,4)}, v{nx[0]} offset:{nx[1]}"]
        if isA: o += [f"ds_read_b128 {vr(KF+4,4)}, v{nx[0]} offset:{nx[1]+1024}"]
        else: o.append("s_nop 0")
        o += e[9:12] + [pv(OX, V0, X)]
        if not isA: o.append(f"ds_read_b128 {vr(V0,4)}, v{nx[0]} offset:{nx[1]+2048}")
        elif j in PRIO: o.append(f"s_setprio {PRIO[j]}")
        else: o.append("s_nop 0")
        o += e[12:15] + [sm(LX, X)]
        if isA: o.append("s_waitcnt lgkmcnt(2)")
        else: o.append("s_nop 0")
        o += e[15:16]
        k("\n".join(o))
    for j in range(NTL):
        phase(SA, OA, LA, SB, OB, LB, QBr, MB_, True, j)
        phase(SB, OB, LB, SA, OA, LA, QA, MA, False, j)
    k(f"""s_cmp_eq_u32 s56, 3
    s_cbranch_scc1 {L('done')}
    s_cmp_eq_u32 s60, 0
    s_cbranch_scc1 {L('hooke_ret')}
    s_cmp_ge_u32 s56, 2
    s_cbranch_scc1 {L('hooke_ret')}
    s_add_u32 s62, s61, 4096
    s_add_u32 s47, s63, 4096""")
    kv4("s61", "s63"); kv4("s62", "s47")
    k(f"""{L('hooke_ret')}:
    s_add_u32 s63, s63, 32768
    v_mov_b32 v{VC}, v{VN}
    v_add_u32 v{VN}, s61, v14
    s_xor_b32 s61, s61, 0x10000
    s_add_u32 s56, s56, 1
    s_branch {L('loop')}""")
    k(f"{L('service')}:\ns_setprio 3")
    srd_arg(k, 32, 8, 0, 1024*7168)
    srd_arg(k, 36, 6, 0, 3584*2048)
    srd_arg(k, 4, 4, 0, 1024*12288)
    srd_arg(k, 64, 64, 0, 4*MB)
    srd_ws(k, 12, 10, WS_W1P, 7*MB)
    srd_ws(k, 16, 10, WS_W2P, 7*MB)
    srd_ws(k, 28, 10, 0, WS_XB + 8*MB)
    pack_addr(k, "split", 2048, 2, 4, 5, 6, 47)
    k(f"""v_add_u32 v5, {SCR}, v5
    v_lshrrev_b32 v7, 3, v2
    v_mul_u32_u24 v7, 7168, v7
    v_and_b32 v6, 7, v2
    v_lshl_add_u32 v7, v6, 4, v7
    s_mul_i32 s45, s2, 7
    s_mov_b32 s56, {G.S + 2}
    {L('sbar')}:
    s_barrier
    s_sub_u32 s56, s56, 1
    s_cmp_lg_u32 s56, 0
    s_cbranch_scc1 {L('sbar')}""")
    def kvstage(st):
        k(f"s_mov_b32 s58, {65536*(st%2)}\ns_mov_b32 s57, {32768*st}\ns_mov_b32 s56, 8\n{L('skv%d' % st)}:")
        kv4(0, 0); kv4(32768, 131072)
        k(f"s_add_u32 s58, s58, 4096\ns_add_u32 s57, s57, 4096\ns_sub_u32 s56, s56, 1\ns_cmp_lg_u32 s56, 0\ns_cbranch_scc1 {L('skv%d' % st)}")
    def loop7(name, body):
        k(f"s_mov_b32 s56, 0\n{L(name)}:\ns_add_u32 s52, s45, s56\ns_lshl_b32 s53, s56, 12")
        body()
        k(f"s_add_u32 s56, s56, 1\ns_cmp_lt_u32 s56, 7\ns_cbranch_scc1 {L(name)}")
    def w2_in():
        k(f"""s_lshr_b32 s47, s52, 4
        s_lshl_b32 s47, s47, 16
        s_and_b32 s48, s52, 15
        s_lshl_b32 s48, s48, 7
        s_add_u32 s47, s47, s48
        s_add_u32 s46, s53, {SCR}""")
        pack_issue(k, 36, 2048, 4, 47, 46, 48)
    def w2_out():
        k(f"""s_lshr_b32 s48, s52, 4           ; kb
        s_mul_i32 s49, s48, 9363
        s_lshr_b32 s49, s49, 16
        s_mul_i32 s50, s49, 7
        s_sub_u32 s48, s48, s50          ; pair
        s_cmp_eq_u32 s48, 6
        s_cselect_b64 vcc, -1, 0
        s_cselect_b32 s51, 4, 16
        s_lshl_b32 s51, s51, 7
        v_cndmask_b32 v10, v5, v12, vcc
        v_add_u32 v10, s53, v10
        v_add_u32 v9, s51, v10""")
        for nt in range(4):
            k(f"ds_read_b64_tr_b16 {vr(16+4*nt,2)}, v10 offset:{32*nt}\nds_read_b64_tr_b16 {vr(18+4*nt,2)}, v9 offset:{32*nt}")
        k(f"""        s_and_b32 s50, s49, 7            ; c
        s_lshr_b32 s49, s49, 3           ; half
        s_cmp_ge_u32 s48, 3
        s_cselect_b32 s51, -47, 0
        s_lshl_b32 s47, s48, 4
        s_add_u32 s47, s47, s51
        s_cmp_ge_u32 s47, 16
        s_cselect_b32 s51, 8, 0
        s_add_u32 s47, s47, s51
        s_add_u32 s47, s47, s50          ; (0,24,40)[g] + nh + c
        s_cmp_eq_u32 s48, 6
        s_cselect_b32 s47, 16, s47
        s_add_u32 s47, s47, s50
        s_mul_i32 s50, s49, 56
        s_add_u32 s47, s47, s50          ; kb'
        s_bfe_u32 s50, s52, 0x30001
        s_mul_i32 s50, s50, 112
        s_add_u32 s47, s47, s50
        s_lshl_b32 s47, s47, 13
        s_and_b32 s50, s52, 1
        s_lshl_b32 s50, s50, 12
        s_add_u32 s47, s47, s50
        s_lshl_b32 s49, s49, 11
        s_add_u32 s47, s47, s49
        s_xor_b32 s48, s47, 2048
        s_waitcnt lgkmcnt(0)""")
        for nt in range(4): k(f"buffer_store_dwordx4 {vr(16+4*nt,4)}, v3, s[16:19], s{47 + nt//2} offen offset:{1024*(nt%2)} {WT}")
    def w1_in():
        k(f"""s_and_b32 s47, s52, 31
        s_mul_i32 s47, s47, {32*7168}
        s_lshr_b32 s48, s52, 5
        s_lshl_b32 s48, s48, 7
        s_add_u32 s47, s47, s48
        s_add_u32 s46, s53, {SCR}""")
        pack_issue(k, 32, 7168, 7, 47, 46, 48)
    def w1_out():
        k("v_add_u32 v10, s53, v5")
        pack_read(k, "split", 10, 16)
        k(f"""s_and_b32 s47, s52, 31
        s_mul_i32 s47, s47, {14*1024}
        s_lshr_b32 s48, s52, 5
        s_lshl_b32 s48, s48, 2
        s_waitcnt lgkmcnt(0)""")
        for nt in range(4):
            k(f"""s_add_u32 s49, s48, {nt}
            s_mul_i32 s50, s49, 4682
            s_lshr_b32 s50, s50, 16
            s_mul_i32 s51, s50, 14
            s_sub_u32 s49, s49, s51
            s_cmp_ge_u32 s49, 6
            s_addc_u32 s51, s49, 0
            s_cmp_eq_u32 s49, 12
            s_cselect_b32 s51, 6, s51
            s_min_u32 s51, s51, 13
            s_mul_i32 s50, s50, {32*14*1024}
            s_lshl_b32 s51, s51, 10
            s_add_u32 s50, s50, s51
            s_add_u32 s50, s50, s47
            buffer_store_dwordx4 {vr(16+4*nt,4)}, v3, s[12:15], s50 offen {WT}""")
    k(f"""v_lshrrev_b32 v11, 3, v2
    v_mul_u32_u24 v11, 12288, v11
    v_lshl_add_u32 v11, v6, 4, v11
    v_lshlrev_b32 v8, 7, v2
    v_lshrrev_b32 v13, 4, v2
    v_lshl_add_u32 v12, v13, 9, v5
    v_lshlrev_b32 v15, 3, v13
    s_and_b32 s54, s2, 63
    s_lshr_b32 s55, s2, 6            ; k quarter""")
    k("s_barrier")
    kvstage(1)
    k(f"""s_lshl_b32 s47, s54, 7
    s_add_u32 s47, s47, 4096
    s_mul_i32 s48, s55, {256*12288}
    s_add_u32 s47, s47, s48
    s_mov_b32 s46, {SCR}
    s_mov_b32 s56, 32
    {L('sgi')}:
    s_mov_b32 m0, s46
    s_add_u32 s46, s46, 1024
    buffer_load_dwordx4 v11, s[4:7], s47 offen lds
    s_add_u32 s47, s47, {8*12288}
    s_sub_u32 s56, s56, 1
    s_cmp_lg_u32 s56, 0
    s_cbranch_scc1 {L('sgi')}""")
    k(f"s_lshl_b32 s47, s55, 9\ns_add_u32 s47, s47, {WS_SC}")
    for i in range(8):
        k(f"buffer_load_dwordx2 {vr(32+4*i,2)}, v15, s[28:31], s47 offen offset:{64*i}")
        k(f"buffer_load_dwordx2 {vr(34+4*i,2)}, v15, s[28:31], s47 offen offset:{64*i+32}")
    for j in range(4): k(f"v_mov_b32 v{84+j}, -1")
    k(f"""s_lshl_b32 s47, s2, 11
    s_add_u32 s47, s47, {WS_ST2}
    buffer_store_dwordx4 v[84:87], v3, s[28:31], s47 offen {WT}
    buffer_store_dwordx4 v[84:87], v3, s[28:31], s47 offen offset:1024 {WT}
    s_waitcnt vmcnt(50)""")
    for j in range(4): k(f"v_mov_b32 v{88+j}, 0")
    k(f"s_lshl_b32 s47, s2, 10\ns_add_u32 s47, s47, {WS_FLG}\nbuffer_store_dwordx4 v[88:91], v3, s[28:31], s47 offen {WT}")
    if SPLITK:
        k(f"s_lshl_b32 s47, s2, 14\ns_add_u32 s47, s47, {WS_XB}\ns_mov_b32 s56, 4\n{L('sxb')}:")
        for i in range(4): k(f"buffer_store_dwordx4 v[84:87], v3, s[28:31], s47 offen offset:{1024*i} {WT}")
        k(f"s_add_u32 s47, s47, 4096\ns_sub_u32 s56, s56, 1\ns_cmp_lg_u32 s56, 0\ns_cbranch_scc1 {L('sxb')}")
    stamp(k, 1)
    k("s_barrier")
    stamp(k, 2)
    k("s_waitcnt vmcnt(0)")
    kvstage(2)
    for c in range(8):
        k(f"v_add_u32 v10, {4096*c}, v5")
        pack_read(k, "split", 10, 16)
        k("s_waitcnt lgkmcnt(0)")
        for nt in range(4):
            k(f"v_mfma_f32_16x16x32_bf16 {vr(64+4*nt,4)}, {vr(16+4*nt,4)}, {vr(32+4*c,4)}, {'0' if c == 0 else vr(64+4*nt,4)}")
    k(f"""s_mul_i32 s47, s55, {6144*4}
    s_lshl_b32 s48, s54, 8
    s_add_u32 s47, s47, s48
    s_add_u32 s47, s47, {WS_MODP + 8192}
    v_lshlrev_b32 v15, 1, v15
    s_nop 3""")
    for nt in range(4): k(f"buffer_store_dwordx4 {vr(64+4*nt,4)}, v15, s[28:31], s47 offen offset:{64*nt} {WT}")
    loop7("sw2i", w2_in)
    k("s_waitcnt vmcnt(32)")
    stamp(k, 3)
    k("s_barrier")
    stamp(k, 4)
    k("s_waitcnt vmcnt(0)")
    kvstage(3)
    loop7("sw2o", w2_out)
    loop7("sw1i", w1_in)
    k("s_waitcnt vmcnt(56)")
    stamp(k, 5)
    k("s_barrier")
    stamp(k, 6)
    k(f"""s_lshr_b32 s50, s2, 3
    s_lshl_b32 s51, s50, 16
    s_add_u32 s51, s51, {WS_WOP}
    s_lshl_b32 s50, s50, 14
    s_and_b32 s49, s2, 7
    s_lshl_b32 s49, s49, 19
    s_add_u32 s50, s50, s49
    s_waitcnt vmcnt(0)""")
    for i in range(2): k(f"buffer_load_dword v14, v8, s[64:67], s50 offen\ns_add_u32 s50, s50, 8192")
    for i in range(8): k(f"buffer_load_dword v14, v8, s[28:31], s51 offen\ns_add_u32 s51, s51, 8192")
    code_pull(k, "back_kernel", "L_code_end", 2, 80)
    loop7("sw1o", w1_out)
    if TIMING:
        stamp(k, 7)
        k("s_mov_b32 s42, 0")
        stamps_out(k, 9, 8)
    k("s_endpgm")
    k(f"{L('done')}:")
    stamp(k, 5)
    k(f"""s_nop 0
    {pv(OB, V1, SB+8)}
    {sm(LB, SB+8)}
    s_mul_i32 s50, s42, 4352
    v_add_u32 v11, s50, v3
    v_lshlrev_b32 v15, 2, v2
    v_add_u32 v15, s50, v15
    s_xor_b32 s51, s42, 4
    s_mul_i32 s51, s51, 4352
    s_lshl_b32 s52, s42, 2
    v_mov_b32 v13, s52
    v_max3_f32 v12, |v{OA}|, |v{OA+1}|, |v{OA+2}|""")
    for i in range(3, 15, 2): k(f"v_max3_f32 v12, v12, |v{OA+i}|, |v{OA+i+1}|")
    k(f"v_max3_f32 v12, v12, |v{OA+15}|, |v{OB}|")
    for i in range(1, 15, 2): k(f"v_max3_f32 v12, v12, |v{OB+i}|, |v{OB+i+1}|")
    k(f"""v_max_f32 v12, v12, |v{OB+15}|
    s_mov_b32 s52, {hex(f2u(2.0**126))}
    s_mov_b32 s53, {hex(f2u(2.0**79))}
    v_cmp_nlt_f32 s[54:55], v12, s52
    v_cmp_nlt_f32 s[48:49], v{LA}, s53
    v_cmp_nlt_f32 vcc, v{LB}, s53
    s_or_b64 s[54:55], s[54:55], vcc
    s_or_b64 s[54:55], s[54:55], s[48:49]
    s_cselect_b32 s52, 1, 0
    v_mov_b32 v12, s52
    ds_write_b32 v13, v12 offset:{FLAG}
    s_cmp_eq_u32 s44, 0
    s_cbranch_scc1 {L('sendB')}""")
    for i in range(4): k(f"ds_write_b128 v11, {vr(OA+4*i,4)} offset:{1024*i}")
    k(f"ds_write_b32 v15, v{LA} offset:4096")
    for i in range(0, 16, 2): k(f"v_mov_b64 {vr(OA+i,2)}, {vr(OB+i,2)}")
    k(f"v_mov_b32 v{LA}, v{LB}\ns_branch {L('sent')}\n{L('sendB')}:")
    for i in range(4): k(f"ds_write_b128 v11, {vr(OB+4*i,4)} offset:{1024*i}")
    k(f"ds_write_b32 v15, v{LB} offset:4096")
    k(f"""{L('sent')}:
    v_add_u32 v11, s51, v3
    v_lshlrev_b32 v15, 2, v2
    v_and_b32 v13, 28, v15
    v_add_u32 v15, s51, v15
    s_waitcnt lgkmcnt(0)
    s_barrier
    ds_read_b32 v13, v13 offset:{FLAG}
    ds_read_b32 v{LB}, v15 offset:4096""")
    for i in range(4): k(f"ds_read_b128 {vr(OB+4*i,4)}, v11 offset:{1024*i}")
    k(f"""v_bfe_u32 v11, v2, 4, 1
    v_lshlrev_b32 v11, 10, v11
    v_lshrrev_b32 v15, 5, v2
    v_lshl_add_u32 v11, v15, 8, v11
    v_and_b32 v15, 15, v2
    v_lshl_add_u32 v11, v15, 4, v11
    s_lshl_b32 s50, s40, 18
    s_lshl_b32 s51, s41, 14
    s_add_u32 s50, s50, s51
    s_lshl_b32 s51, s44, 13
    s_add_u32 s50, s50, s51
    s_lshl_b32 s51, s43, 11
    s_add_u32 s50, s50, s51
    s_waitcnt lgkmcnt(4)
    v_cmp_lt_u32 vcc, s60, v13
    v_add_f32 v{LA}, v{LA}, v{LB}
    v_rcp_f32 v{LA}, v{LA}
    s_cmp_lg_u64 vcc, 0
    s_cbranch_scc1 {L('fallback')}""")
    for i in range(4):
        k(f"s_waitcnt lgkmcnt({3-i})")
        for h in range(2): k(f"v_pk_add_f32 {vr(OA+4*i+2*h,2)}, {vr(OA+4*i+2*h,2)}, {vr(OB+4*i+2*h,2)}")
        for h in range(2): k(f"v_pk_mul_f32 {vr(OA+4*i+2*h,2)}, {vr(OA+4*i+2*h,2)}, {vr(LA,2)} op_sel_hi:[1,0]")
        k("s_nop 0")
        for h in range(2): k(f"v_cvt_pk_bf16_f32 v{SA+2*i+h}, v{OA+4*i+2*h}, v{OA+4*i+2*h+1}")
        if i % 2 == 1: k(f"buffer_store_dwordx4 {vr(SA+2*i-2,4)}, v11, s[24:27], s50 offen offset:{256*(i-1)} {OST}")
    stamps_out(k, 2, 6)
    k(f"""s_endpgm
    {L('fallback')}:
    s_mov_b32 s60, 1
    v_mov_b32 v12, 0xff800000
    v_mov_b32 v13, 0xff800000
    s_mov_b32 s50, 0
    s_waitcnt lgkmcnt(0)
    s_barrier
    {L('floop')}:
    buffer_load_dwordx4 {vr(KF,4)}, v3, s[20:23], s50 offen
    buffer_load_dwordx4 {vr(KF+4,4)}, v3, s[20:23], s50 offen offset:1024
    s_waitcnt vmcnt(0)
    v_mfma_f32_32x32x16_bf16 {vr(SA,16)}, {vr(KF,4)}, {vr(QA,4)}, 0
    v_mfma_f32_32x32x16_bf16 {vr(SB,16)}, {vr(KF,4)}, {vr(QBr,4)}, 0
    v_mfma_f32_32x32x16_bf16 {vr(SA,16)}, {vr(KF+4,4)}, {vr(QA+4,4)}, {vr(SA,16)}
    v_mfma_f32_32x32x16_bf16 {vr(SB,16)}, {vr(KF+4,4)}, {vr(QBr+4,4)}, {vr(SB,16)}
    s_nop 11""")
    rowmax(SA, 12, False); rowmax(SB, 13, False)
    k(f"""s_add_u32 s50, s50, 4096
    s_cmp_lt_u32 s50, 262144
    s_cbranch_scc1 {L('floop')}""")
    for st in range(2):
        kv4(65536*st, 32768*st); kv4(65536*st + 4096, 32768*st + 4096)
    zero_init()
    k(f"""s_waitcnt vmcnt(0)
    s_barrier
    s_branch {L('setmax')}
    {L('end')}:
    s_endpgm""")
    return k, (256, 576, 163840)
```

```python
from common import *

SPIN_MAX = 1 << 22
MAP_W1 = os.environ.get("MAP_w1", "R8")
NPRE1 = int(os.environ.get("NPRE1", "4"))
NPRE2 = int(os.environ.get("NPRE2", "3"))

def k_back():
    k = Kern("back_kernel", 248)
    L = lambda s: f"L_back_{s}"
    GO = Gemm(k, "bo", 32, 2, 6, 64)
    G1 = Gemm(k, "b1", 32, 1, 7, 224, aflag="sc1")
    G2 = Gemm(k, "b2", 56, 2, 4, 128, split=2, skh=61, aflag="sc1")
    MODL = G1.LDS; STL = MODL + 1024
    def map2():
        k("""s_and_b32 s61, s2, 1             ; K half
        s_bfe_u32 s40, s2, 0x20001
        s_lshl_b32 s40, s40, 2
        s_bfe_u32 s3, s2, 0x20003
        s_add_u32 s40, s40, s3
        s_lshr_b32 s41, s2, 5""")
    def spin(tag, load, cmp_):
        k(f"s_mov_b32 s66, {SPIN_MAX}\n{L(tag)}:")
        load()
        k("s_waitcnt vmcnt(0)")
        cmp_()
        k(f"""s_sub_u32 s66, s66, 1
        s_cbranch_scc1 {L(tag + 'd')}
        s_cmp_lg_u64 vcc, 0
        s_cbranch_scc1 {L(tag)}
        {L(tag + 'd')}:""")
    k(f"s_cmp_ge_u32 s2, 256\ns_cbranch_scc1 {L('end')}")
    stamp(k, 0)
    k(f"""s_load_dwordx2 s[10:11], s[0:1], {A_WS}
    s_load_dwordx2 s[6:7], s[0:1], {A_X}
    s_load_dwordx2 s[8:9], s[0:1], {A_OUT}""")
    wg_map(k, "R2", 40, 41)
    k(f"""v_lshrrev_b32 v1, 6, v0
    v_and_b32 v2, 63, v0
    v_readfirstlane_b32 s42, v1
    v_lshlrev_b32 v3, 4, v2
    s_waitcnt lgkmcnt(0)""")
    srd_ws(k, 12, 10, WS_O, SZ_ACT)
    srd_ws(k, 16, 10, WS_WOP, 2*MB)
    k(f"s_cmp_lt_u32 s42, 4\ns_cbranch_scc1 {L('compute')}")
    def mod_ld(col_expr):
        def f():
            srd_ws(k, 24, 10, WS_MODP, 4*6144*4)
            k(col_expr + "\nv_lshlrev_b32 v4, 2, v2")
            for p in range(4): k(f"s_add_u32 s58, s57, {p*6144*4}\nbuffer_load_dword v{8+p}, v4, s[24:27], s58 offen")
        return f
    def mod_fin(plus1):
        def f():
            if plus1: k("s_cmp_eq_u32 s43, 2\ns_cselect_b32 s58, 1.0, 0")
            k(f"""s_lshl_b32 s57, s43, 8
            s_add_u32 s57, s57, {MODL}
            v_add_u32 v4, s57, v4
            s_waitcnt vmcnt(0)
            v_add_f32 v8, v8, v9
            v_add_f32 v10, v10, v11
            v_add_f32 v8, v8, v10""")
            round_bf16(k, 8)
            if plus1:
                k("v_add_f32 v8, s58, v8")
                round_bf16(k, 8)
            k("ds_write_b32 v4, v8\ns_waitcnt lgkmcnt(0)")
        return f
    GO.loader({0: (mod_ld("s_lshl_b32 s57, s43, 12\ns_lshl_b32 s58, s41, 8\ns_add_u32 s57, s57, s58\ns_add_u32 s57, s57, 8192"), 4), GO.NS-2: (mod_fin(True), 0)})
    stamp(k, 3)
    srd_ws(k, 24, 10, WS_ST2, 2048*256)
    k(f"""s_lshl_b32 s57, s40, 15
    s_lshl_b32 s58, s43, 8
    s_add_u32 s57, s57, s58
    v_and_b32 v4, 15, v2
    v_lshrrev_b32 v5, 4, v2
    v_lshlrev_b32 v6, 10, v5
    v_lshl_add_u32 v6, v4, 4, v6""")
    wg_map(k, MAP_W1, 40, 41)
    srd_ws(k, 12, 10, WS_H2, SZ_ACT)
    srd_ws(k, 16, 10, WS_W1P, 7*MB)
    def gate1():
        def ld():
            for i in range(8): k(f"s_add_u32 s58, s57, {4096*i}\nbuffer_load_dwordx4 {vr(8+4*i,4)}, v6, s[24:27], s58 offen sc1")
        def cm():
            k("v_max3_u32 v7, v8, v9, v10")
            for i in range(11, 39, 2): k(f"v_max3_u32 v7, v7, v{i}, v{i+1}")
            k("v_max_u32 v7, v7, v39\nv_cmp_eq_u32 vcc, -1, v7")
        k("s_barrier")
        spin("pst", ld, cm)
        for i in range(1, 8):
            k(f"v_pk_add_f32 v[8:9], v[8:9], {vr(8+4*i,2)}\nv_pk_add_f32 v[10:11], v[10:11], {vr(10+4*i,2)}")
        k(f"""s_lshl_b32 s58, s43, 8
        s_add_u32 s58, s58, {STL}
        v_permlane16_swap_b32 v8, v10
        v_permlane16_swap_b32 v9, v11
        v_pk_add_f32 v[8:9], v[8:9], v[10:11]
        v_and_b32 v5, 1, v5
        v_lshlrev_b32 v5, 3, v5
        v_mov_b64 v[10:11], v[8:9]
        v_lshl_add_u32 v5, v4, 4, v5
        v_add_u32 v5, s58, v5
        v_permlane32_swap_b32 v8, v10
        v_permlane32_swap_b32 v9, v11
        v_pk_add_f32 v[8:9], v[8:9], v[10:11]
        v_mul_f32 v10, {hex(f2u(-1/1024))}, v8
        v_mul_f32 v9, {hex(f2u(1/1024))}, v9
        v_fma_f32 v9, -v10, v10, v9
        v_max_f32 v9, 0, v9""")
        ln_finish(k, 9, 10, 8)
        k("ds_write_b64 v5, v[8:9]\ns_waitcnt lgkmcnt(0)\ns_barrier")
        srd_ws(k, 24, 10, WS_FLG, 262144)
        k("v_lshlrev_b32 v6, 7, v2\ns_lshl_b32 s57, s40, 13\ns_barrier")
        stamp(k, 4)
        spin("ph2", lambda: k("buffer_load_dword v7, v6, s[24:27], s57 offen sc1"), lambda: k("v_cmp_eq_u32 vcc, 0, v7"))
    G1.loader(gate=gate1, npre=NPRE1, st=5)
    stamp(k, 7)
    map2()
    srd_ws(k, 12, 10, WS_U, SZ_U)
    srd_ws(k, 16, 10, WS_W2P, 7*MB)
    k(f"""v_and_b32 v6, 0xf80, v6
    s_lshl_b32 s57, s40, 13
    s_lshl_b32 s58, s61, 12
    s_add_u32 s57, s57, s58
    s_add_u32 s57, s57, 131072""")
    G2.loader({0: (mod_ld(f"s_and_b32 s57, s43, 1\ns_lshl_b32 s57, s57, 8\ns_lshl_b32 s58, s41, 9\ns_add_u32 s57, s57, s58\ns_add_u32 s57, s57, {5120*4}"), 4), G2.NS-2: (mod_fin(False), 0)},
              gate=lambda: (k("s_barrier"), spin("pu1", lambda: k("buffer_load_dword v7, v6, s[24:27], s57 offen sc1"), lambda: k("v_cmp_eq_u32 vcc, 0, v7"))), npre=NPRE2, st=8)
    stamp(k, 10)
    stamps_out(k, 3, 11)
    k("s_endpgm")
    k(f"""{L('compute')}:
    s_and_b32 s43, s42, 1            ; th
    s_lshr_b32 s44, s42, 1           ; nh
    v_and_b32 v4, 15, v2             ; t
    v_lshrrev_b32 v5, 4, v2          ; g""")
    X = 12; ACC = X + 96; EPI = ACC + 32
    srd_ws(k, 20, 10, WS_X1, 2*SZ_ACT)
    srd_arg(k, 28, 6, 0, 4*MB)
    srd_ws(k, 32, 10, WS_FLG, 262144)
    k(f"""s_lshl_b32 s59, s40, 18
    s_lshl_b32 s58, s41, 14
    s_add_u32 s59, s59, s58
    s_lshl_b32 s58, s42, 12
    s_add_u32 s59, s59, s58
    s_lshl_b32 s60, s40, 18
    s_lshl_b32 s58, s43, 17
    s_add_u32 s60, s60, s58
    s_lshl_b32 s58, s41, 7
    s_add_u32 s60, s60, s58
    s_lshl_b32 s58, s44, 6
    s_add_u32 s60, s60, s58
    s_lshl_b32 s58, s44, 7
    s_add_u32 s58, s58, {MODL}
    v_lshl_add_u32 v6, v5, 4, s58
    v_lshlrev_b32 v7, 11, v4
    v_lshl_add_u32 v7, v5, 3, v7
    v_mov_b32 v230, 0""")
    def pre():
        for m in range(4):
            k(f"s_add_u32 s58, s60, {m*32768}")
            k(f"buffer_load_dwordx2 {vr(EPI+8+4*m,2)}, v7, s[28:31], s58 offen")
            k(f"buffer_load_dwordx2 {vr(EPI+10+4*m,2)}, v7, s[28:31], s58 offen offset:32")
    GO.compute(X, ACC, 8, 9, 10, 11, pre)
    stamp(k, 3)
    k(f"ds_read_b128 {vr(EPI,4)}, v6\nds_read_b128 {vr(EPI+4,4)}, v6 offset:64")
    for j in range(2):
        k(f"ds_read_b128 {vr(EPI+24+4*j,4)}, v6 offset:{256+64*j}\nds_read_b128 {vr(EPI+32+4*j,4)}, v6 offset:{512+64*j}")
    T = X
    k("s_waitcnt vmcnt(0)")
    for m in range(4):
        for j in range(4):
            t = T + 8*m + 2*j
            k(f"v_lshlrev_b32 v{t}, 16, v{EPI+8+4*m+j}\nv_and_b32 v{t+1}, 0xffff0000, v{EPI+8+4*m+j}")
    k("s_waitcnt lgkmcnt(0)")
    for m in range(4):
        for j in range(4):
            t = T + 8*m + 2*j
            k(f"v_pk_fma_f32 {vr(t,2)}, {vr(ACC+8*m+2*j,2)}, {vr(EPI+2*j,2)}, {vr(t,2)}")
    S1, S2 = T + 32, T + 40
    for m in range(4):
        t = T + 8*m
        k(f"v_pk_add_f32 {vr(S1+2*m,2)}, {vr(t,2)}, {vr(t+2,2)}\nv_pk_mul_f32 {vr(S2+2*m,2)}, {vr(t,2)}, {vr(t,2)}")
    for m in range(4):
        t = T + 8*m
        k(f"v_pk_add_f32 {vr(S1+2*m,2)}, {vr(S1+2*m,2)}, {vr(t+4,2)}\nv_pk_fma_f32 {vr(S2+2*m,2)}, {vr(t+2,2)}, {vr(t+2,2)}, {vr(S2+2*m,2)}")
    for m in range(4):
        t = T + 8*m
        k(f"v_pk_add_f32 {vr(S1+2*m,2)}, {vr(S1+2*m,2)}, {vr(t+6,2)}\nv_pk_fma_f32 {vr(S2+2*m,2)}, {vr(t+4,2)}, {vr(t+4,2)}, {vr(S2+2*m,2)}")
    for m in range(4):
        t = T + 8*m
        k(f"v_pk_fma_f32 {vr(S2+2*m,2)}, {vr(t+6,2)}, {vr(t+6,2)}, {vr(S2+2*m,2)}")
    for m in range(4):
        k(f"v_add_f32 v{S1+2*m}, v{S1+2*m}, v{S1+2*m+1}\nv_add_f32 v{S1+2*m+1}, v{S2+2*m}, v{S2+2*m+1}")
    srd_ws(k, 24, 10, WS_ST2, 2048*256)
    for j in range(2): k(f"v_permlane16_swap_b32 v{S1+j}, v{S1+2+j}\nv_permlane16_swap_b32 v{S1+4+j}, v{S1+6+j}")
    k(f"v_pk_add_f32 {vr(S1,2)}, {vr(S1,2)}, {vr(S1+2,2)}\nv_pk_add_f32 {vr(S1+4,2)}, {vr(S1+4,2)}, {vr(S1+6,2)}")
    k(f"""s_lshl_b32 s57, s40, 15
    s_lshl_b32 s58, s41, 11
    s_add_u32 s57, s57, s58
    s_lshl_b32 s58, s42, 9
    s_add_u32 s57, s57, s58
    v_lshlrev_b32 v7, 3, v2""")
    for j in range(2): k(f"v_permlane32_swap_b32 v{S1+j}, v{S1+4+j}")
    k(f"""v_pk_add_f32 {vr(S1,2)}, {vr(S1,2)}, {vr(S1+4,2)}
    v_min_u32 v{S1}, -2, v{S1}
    v_min_u32 v{S1+1}, -2, v{S1+1}
    buffer_store_dwordx2 {vr(S1,2)}, v7, s[24:27], s57 offen {WT}
    s_barrier""")
    for m in range(4):
        for j in range(4): k(f"v_cvt_pk_bf16_f32 v{EPI+8+4*m+j}, v{T+8*m+2*j}, v{T+8*m+2*j+1}")
        k(f"buffer_store_dwordx4 {vr(EPI+8+4*m,4)}, v3, s[20:23], s59 offen offset:{1024*m} {WT}")
    k(f"""s_lshl_b32 s58, s43, 9
    s_add_u32 s58, s58, {STL}
    v_lshl_add_u32 v7, v4, 3, s58
    s_add_u32 s59, s59, {SZ_ACT}
    s_lshr_b32 s57, s57, 2
    v_mov_b32 v231, 1
    s_barrier""")
    for m in range(4): k(f"ds_read_b64 {vr(S1+2*m,2)}, v7 offset:{128*m}")
    for m in range(4):
        k(f"s_waitcnt lgkmcnt({3-m})")
        for j in range(4):
            t = T + 8*m + 2*j
            k(f"v_pk_fma_f32 {vr(t,2)}, {vr(t,2)}, {vr(S1+2*m,2)}, {vr(S1+2*m,2)} op_sel:[0,1,0] op_sel_hi:[1,1,0]")
        for j in range(4):
            t = T + 8*m + 2*j
            k(f"v_pk_fma_f32 {vr(t,2)}, {vr(t,2)}, {vr(EPI+32+2*j,2)}, {vr(EPI+24+2*j,2)}")
        for j in range(4): k(f"v_cvt_pk_bf16_f32 v{ACC+4*m+j}, v{T+8*m+2*j}, v{T+8*m+2*j+1}")
        k(f"buffer_store_dwordx4 {vr(ACC+4*m,4)}, v3, s[20:23], s59 offen offset:{1024*m} {WT}")
    stamp(k, 4)
    k(f"s_waitcnt vmcnt(0)\nbuffer_store_dword v231, v230, s[32:35], s57 offen {WT}\ns_barrier")
    wg_map(k, MAP_W1, 40, 41)
    srd_ws(k, 20, 10, WS_U, SZ_U)
    ACC = X + 88; NT = 7
    G1.compute(X, ACC, 8, 9, 10, 11, st=5)
    stamp(k, 7)
    k(f"""s_lshr_b32 s50, s41, 3           ; half
    s_and_b32 s51, s41, 7            ; c
    s_lshl_b32 s67, s40, 1
    s_add_u32 s67, s67, s50
    s_mul_i32 s48, s67, {56*8192}
    s_lshl_b32 s47, s43, 12
    s_add_u32 s48, s48, s47
    s_lshl_b32 s47, s51, 13
    s_add_u32 s50, s48, s47
    s_add_u32 s48, s50, s47
    s_add_u32 s50, s50, {16*8192}
    s_lshl_b32 s47, s44, 9
    s_add_u32 s50, s50, s47
    v_and_b32 v7, 1, v5
    v_lshlrev_b32 v7, 10, v7
    v_lshrrev_b32 v6, 1, v5
    v_lshl_add_u32 v7, v6, 8, v7
    v_lshl_add_u32 v7, v4, 4, v7
    s_lshl_b32 s47, s44, 13
    s_add_u32 s48, s48, s47          ; group 0
    s_lshl_b32 s67, s67, 12
    s_lshl_b32 s47, s51, 9
    s_add_u32 s67, s67, s47
    s_lshl_b32 s47, s42, 7
    s_add_u32 s67, s67, s47
    s_add_u32 s67, s67, 131072
    s_mov_b32 s52, {hex(f2u(-LOG2E))}""")
    def silu(a, n, dst):
        for i in range(0, n, 2): k(f"v_pk_mul_f32 {vr(T+i,2)}, {vr(a+i,2)}, s[52:53] op_sel_hi:[1,0]")
        for i in range(n): k(f"v_exp_f32 v{T+i}, v{T+i}")
        for i in range(0, n, 2): k(f"v_pk_add_f32 {vr(T+i,2)}, {vr(T+i,2)}, 1.0 op_sel_hi:[1,0]")
        for i in range(n): k(f"v_rcp_f32 v{T+i}, v{T+i}")
        for i in range(0, n, 2): k(f"v_pk_mul_f32 {vr(T+i,2)}, {vr(T+i,2)}, {vr(a+i,2)}")
        for i in range(0, n, 2): k(f"v_cvt_pk_bf16_f32 v{dst+i//2}, v{T+i}, v{T+i+1}")
    P = T + 8; H2R = 232
    for m in range(4):
        silu(ACC + 4*(m*NT), 8, P + 4*m)
        k(f"buffer_store_dwordx4 {vr(P+4*m,4)}, v3, s[20:23], s48 offen offset:{1024*m} {WT}")
    for m in range(0, 4, 2):
        silu(ACC + 4*(m*NT + 6), 4, P + 16 + 2*m)
        silu(ACC + 4*((m+1)*NT + 6), 4, P + 18 + 2*m)
        q = P + 16 + 2*m
        k(f"s_nop 1\nv_permlane16_swap_b32 v{q}, v{q+2}\nv_permlane16_swap_b32 v{q+1}, v{q+3}")
        k(f"buffer_store_dwordx4 {vr(q,4)}, v7, s[20:23], s50 offen offset:{1024*m} {WT}")
    for m in range(4): silu(ACC + 4*(m*NT + 2), 8, P + 24 + 4*m)
    k(f"s_waitcnt vmcnt(0)\nbuffer_store_dword v231, v230, s[32:35], s67 offen {WT}\ns_barrier")
    for m in range(4): silu(ACC + 4*(m*NT + 4), 8, H2R + 4*m)
    k(f"s_add_u32 s68, s48, {24*8192}\ns_add_u32 s69, s48, {40*8192}")
    srd_ws(k, 36, 10, WS_U, SZ_U)
    map2()
    ACC = X + 128; EPI = ACC + 64
    srd_ws(k, 20, 10, WS_X1, SZ_ACT)
    srd_ws(k, 24, 10, WS_XB, 4*MB)
    srd_arg(k, 28, 8, 0, 4*MB)
    k(f"""s_lshl_b32 s62, s41, 2
    s_lshl_b32 s58, s44, 1
    s_add_u32 s62, s62, s58
    s_add_u32 s62, s62, s61
    s_lshl_b32 s59, s40, 18
    s_lshl_b32 s58, s62, 13
    s_add_u32 s59, s59, s58
    s_lshl_b32 s58, s43, 12
    s_add_u32 s59, s59, s58          ; X1 granule
    s_lshl_b32 s60, s40, 18
    s_lshl_b32 s58, s43, 17
    s_add_u32 s60, s60, s58
    s_lshl_b32 s58, s62, 6
    s_add_u32 s60, s60, s58
    s_and_b32 s58, s62, 3
    s_lshl_b32 s58, s58, 7
    s_add_u32 s58, s58, {MODL}
    v_lshl_add_u32 v6, v5, 4, s58
    s_lshl_b32 s63, s2, 14
    s_lshl_b32 s58, s42, 12
    s_add_u32 s63, s63, s58
    s_xor_b32 s64, s63, 0x4000
    s_lshl_b32 s65, s40, 13
    s_lshl_b32 s58, s61, 12
    s_add_u32 s65, s65, s58
    s_add_u32 s65, s65, 131072
    v_and_b32 v228, 31, v2
    v_lshlrev_b32 v228, 7, v228""")
    def st1():
        for m in range(4): k(f"buffer_store_dwordx4 {vr(P+24+4*m,4)}, v3, s[36:39], s68 offen offset:{1024*m} {WT}")
    def pub(n): k(f"v_mov_b32 v231, {n}\ns_waitcnt vmcnt(0)\nbuffer_store_dword v231, v230, s[32:35], s67 offen {WT}")
    def h13():
        pub(2)
        for m in range(4): k(f"buffer_store_dwordx4 {vr(H2R+4*m,4)}, v3, s[36:39], s69 offen offset:{1024*m} {WT}")
    def pl(): k("buffer_load_dword v229, v228, s[32:35], s65 offen sc1")
    def chk(n, tag, p):
        def f():
            if p: pub(p)
            else: k("s_waitcnt vmcnt(0)")
            k(f"v_cmp_gt_u32 vcc, {n}, v229\ns_nop 0\ns_cmp_eq_u64 vcc, 0\ns_cbranch_scc1 {L(tag + 'd')}")
            spin(tag, pl, lambda: k(f"v_cmp_gt_u32 vcc, {n}, v229"))
        return f
    def pre2():
        for m in range(4): k(f"buffer_load_dwordx4 {vr(EPI+8+4*m,4)}, v3, s[20:23], s59 offen offset:{1024*m} sc1")
    G2.compute(X, ACC, 8, 9, 10, 11, hooks={13: h13, 12: pl, 11: chk(2, "pu2", 3), 8: pl, 7: chk(3, "pu3", 0), 3: pre2}, st=8, after=st1)
    stamp(k, 10)
    k(f"ds_read_b128 {vr(EPI,4)}, v6\nds_read_b128 {vr(EPI+4,4)}, v6 offset:64\ns_waitcnt vmcnt(0)\ns_nop 2")
    T = X; R = X + 32; SND = X + 64; RB = X + 80
    for m in range(4):
        for j in range(4): k(f"v_cvt_pk_bf16_f32 v{SND+4*m+j}, v{ACC+16*m+8+2*j}, v{ACC+16*m+9+2*j}")
        for j in range(4): k(f"v_min_u32 v{SND+4*m+j}, -2, v{SND+4*m+j}")
        k(f"buffer_store_dwordx4 {vr(SND+4*m,4)}, v3, s[24:27], s64 offen offset:{1024*m} {WT}")
    for m in range(4):
        for j in range(4):
            t = T + 8*m + 2*j
            k(f"v_lshlrev_b32 v{t}, 16, v{EPI+8+4*m+j}\nv_and_b32 v{t+1}, 0xffff0000, v{EPI+8+4*m+j}")
    def ldx():
        for j in range(4): k(f"buffer_load_dwordx4 {vr(RB+4*j,4)}, v3, s[24:27], s63 offen offset:{1024*j} sc1")
    def cmx():
        k(f"v_max3_u32 v7, v{RB}, v{RB+1}, v{RB+2}")
        for i in range(3, 15, 2): k(f"v_max3_u32 v7, v7, v{RB+i}, v{RB+i+1}")
        k(f"v_max_u32 v7, v7, v{RB+15}\nv_cmp_eq_u32 vcc, -1, v7")
    spin("px", ldx, cmx)
    k(f"""v_and_b32 v7, 1, v5
    v_lshlrev_b32 v7, 5, v7
    v_lshrrev_b32 v8, 1, v5
    v_lshl_add_u32 v7, v8, 4, v7
    v_lshl_add_u32 v7, v4, 11, v7
    s_waitcnt lgkmcnt(0)""")
    for m in range(4):
        xr = EPI + 8 + 4*m
        for j in range(4): k(f"v_lshlrev_b32 v{R+8*m+2*j}, 16, v{RB+4*m+j}\nv_and_b32 v{R+8*m+2*j+1}, 0xffff0000, v{RB+4*m+j}")
        for j in range(4): k(f"v_pk_add_f32 {vr(R+8*m+2*j,2)}, {vr(R+8*m+2*j,2)}, {vr(ACC+16*m+2*j,2)}")
        for j in range(4): k(f"v_pk_fma_f32 {vr(T+8*m+2*j,2)}, {vr(R+8*m+2*j,2)}, {vr(EPI+2*j,2)}, {vr(T+8*m+2*j,2)}")
        for j in range(4): k(f"v_cvt_pk_bf16_f32 v{xr+j}, v{T+8*m+2*j}, v{T+8*m+2*j+1}")
        k(f"s_add_u32 s58, s60, {m*32768}\ns_nop 0")
        k(f"v_permlane16_swap_b32 v{xr}, v{xr+2}\nv_permlane16_swap_b32 v{xr+1}, v{xr+3}")
        k(f"buffer_store_dwordx4 {vr(xr,4)}, v7, s[28:31], s58 offen {WT}")
    stamps_out(k, 3, 11)
    k(f"{L('end')}:\ns_endpgm")
    return k, (256, 512, STL + 1024)
```

```python
from gen_valu import gen
import sys
ITERS=int(sys.argv[1]) if len(sys.argv)>1 else 100
def tile(Sc, Sn, mode):
    mf = [f"  v_mfma_f32_32x32x16_bf16 v[{Sn}:{Sn+15}], v[8:11], v[16:19], v[56:71]",
          f"  v_mfma_f32_32x32x16_bf16 v[{Sn}:{Sn+15}], v[12:15], v[20:23], v[{Sn}:{Sn+15}]"]
    pv0 = f"  v_smfmac_f32_32x32x32_bf16 v[112:127], v[24:27], v[{Sc}:{Sc+7}], v40"
    sm0 = f"  v_smfmac_f32_16x16x64_bf16 v[36:39], v[32:35], v[{Sc}:{Sc+7}], v40"
    pvp = f"  v_smfmac_f32_32x32x32_bf16 v[112:127], v[28:31], v[{Sn+8}:{Sn+15}], v40"
    smp = f"  v_smfmac_f32_16x16x64_bf16 v[36:39], v[32:35], v[{Sn+8}:{Sn+15}], v40"
    e = [f"  v_exp_f32 v{Sc+i}, v{Sc+i}" for i in range(16)]
    rd = ["  ds_read_b128 v[104:107], v1", "  ds_read_b128 v[108:111], v1 offset:1024"]
    w = "  s_waitcnt lgkmcnt(2)"
    sal = "  s_add_u32 s20, s20, 1"
    if mode == "base":   return e[0:2] + [pvp] + e[2:5] + [smp] + e[5:7] + [mf[0]] + e[7:10] + [mf[1]] + e[10:13] + [pv0] + e[13:16] + [sm0]
    if mode == "aftermf": return e[0:2] + [w, pvp, rd[0]] + e[2:5] + [smp] + e[5:7] + [w, mf[0]] + e[7:10] + [mf[1], rd[1]] + e[10:13] + [pv0] + e[13:16] + [sm0]
    if mode == "afterexp": return [e[0], w, e[1], pvp, e[2], rd[0]] + e[3:5] + [smp, e[5], w, e[6], mf[0]] + e[7:10] + [mf[1], e[10], rd[1]] + e[11:13] + [pv0] + e[13:16] + [sm0]
    if mode == "salu16":
        o = []
        for x in e[0:2] + [pvp] + e[2:5] + [smp] + e[5:7] + [mf[0]] + e[7:10] + [mf[1]] + e[10:13] + [pv0] + e[13:16] + [sm0]:
            o.append(x)
            if "exp" in x: o.append(sal)
        return o
    if mode == "salu22":
        o = []
        for x in e[0:2] + [pvp] + e[2:5] + [smp] + e[5:7] + [mf[0]] + e[7:10] + [mf[1]] + e[10:13] + [pv0] + e[13:16] + [sm0]:
            o.append(x); o.append(sal)
        return o
    if mode == "cur":
        return e[0:2] + [w, pvp, rd[0]] + e[2:4] + [smp] + e[4:5] + [w, mf[0]] + e[5:8] + [mf[1], rd[1]] + e[8:11] + [pv0] + e[11:14] + [sm0] + e[14:16]
def t2(Sc, Sn, mode):
    mf = [f"  v_mfma_f32_32x32x16_bf16 v[{Sn}:{Sn+15}], v[8:11], v[16:19], v[56:71]",
          f"  v_mfma_f32_32x32x16_bf16 v[{Sn}:{Sn+15}], v[12:15], v[20:23], v[{Sn}:{Sn+15}]"]
    OX, OY = (112, 128) if Sc == 72 else (128, 112)
    LX, LY = (36, 44) if Sc == 72 else (44, 36)
    pv0 = f"  v_smfmac_f32_32x32x32_bf16 v[{OX}:{OX+15}], v[24:27], v[{Sc}:{Sc+7}], v40"
    sm0 = f"  v_smfmac_f32_16x16x64_bf16 v[{LX}:{LX+3}], v[32:35], v[{Sc}:{Sc+7}], v40"
    pvp = f"  v_smfmac_f32_32x32x32_bf16 v[{OY}:{OY+15}], v[28:31], v[{Sn+8}:{Sn+15}], v40"
    smp = f"  v_smfmac_f32_16x16x64_bf16 v[{LY}:{LY+3}], v[32:35], v[{Sn+8}:{Sn+15}], v40"
    e = [f"  v_exp_f32 v{Sc+i}, v{Sc+i}" for i in range(16)]
    rd = ["  ds_read_b128 v[104:107], v1", "  ds_read_b128 v[108:111], v1 offset:1024"]
    P = {"n": [], "nop": ["  s_nop 0"], "add": ["  s_add_u32 s20, s20, 1"], "wait": ["  s_waitcnt lgkmcnt(3)"], "rd": rd[:1]}
    o, p = mode.split("_")
    if o == "D":
        q = [rd[:int(ch)] for ch in p]
        return e[0:2] + [pvp] + q[0] + e[2:5] + [smp] + q[1] + e[5:6] + [mf[0]] + q[2] + e[6:9] + [mf[1]] + q[3] + e[9:12] + [pv0] + q[4] + e[12:15] + [sm0] + q[5] + e[15:16]
    p = P[p]
    if o == "A": return e[0:2] + [pvp] + e[2:5] + [smp] + e[5:6] + [mf[0]] + e[6:9] + [mf[1]] + p + e[9:12] + [pv0] + p + e[12:15] + [sm0] + p + e[15:16]
    if o == "B": return e[0:2] + [pvp] + e[2:5] + [smp] + e[5:7] + [mf[0]] + e[7:10] + [mf[1]] + p + e[10:13] + [pv0] + p + e[13:16] + [sm0] + p
    if o == "C": return e[0:3] + [pvp] + e[3:6] + [smp] + e[6:7] + [mf[0]] + e[7:10] + [mf[1]] + p + e[10:13] + [pv0] + p + e[13:16] + [sm0] + p
m2 = ["D_100000", "D_010000", "D_001000", "D_000100", "D_000010", "D_000001", "D_200000", "D_100010", "D_110011", "D_010001"]
for mode in m2:
    body = "  v_mov_b32 v40, 0xdddddddd\n" + "\n".join(sum([t2(72, 88, mode) + t2(88, 72, mode) for _ in range(8)], []))
    gen(f"attn5_{mode}.s", body, 1, iters=ITERS, vgprs=160)
    s_ = open(f"attn5_{mode}.s").read().replace("lds=0", "lds=16384")
    open(f"attn5_{mode}.s", "w").write(s_)
print(" ".join(m2)); sys.exit(0)
modes = ("base", "aftermf", "afterexp", "salu16", "salu22", "cur")
for mode in modes:
    body = "  v_mov_b32 v40, 0xdddddddd\n" + "\n".join(sum([tile(72, 88, mode) + tile(88, 72, mode) for _ in range(4)], []))
    for w in (1, 2):
        gen(f"attn3_{mode}_w{w}.s", body, w, iters=ITERS)
        s = open(f"attn3_{mode}_w{w}.s").read().replace("lds=0", "lds=16384")
        open(f"attn3_{mode}_w{w}.s", "w").write(s)
print(" ".join(modes))
```

```python
from asmlib import Kern, vr, sr, check
NAME = "adaLN_cond__grouped_kv_mqa__dense_activation_silu__prompt"
A_X, A_WQ, A_WK, A_WV, A_WO, B_X, B_W1, B_W2, A_C, A_WMOD, A_OUT, A_DBG, A_WS = [8*i for i in range(13)]
MB = 1 << 20
WS_MOD = 0
WS_MODP = 65536
WS_SC = 196608
WS_MOD2 = 262144
WS_ST2 = 524288
WS_H1 = 1*MB
WS_KV = 5*MB
WS_O = 6*MB
WS_X1 = 10*MB
WS_H2 = 14*MB
WS_U = 18*MB
WS_WQP = 32*MB
WS_WOP = 34*MB
WS_W1P = 36*MB
WS_W2P = 43*MB
SZ_ACT = 4*MB
SZ_U = 2048*3584*2
LOG2E = 1.4426950408889634
def f2u(x):
    import struct
    return struct.unpack("<I", struct.pack("<f", x))[0]

def srd_arg(k, d, tmp, argoff, size):
    k(f"s_mov_b32 s{d}, s{tmp}\ns_and_b32 s{d+1}, s{tmp+1}, 0xffff\ns_mov_b32 s{d+2}, {size}\ns_mov_b32 s{d+3}, 0x20000")
def srd_ws(k, d, ws, off, size):
    k(f"s_add_u32 s{d}, s{ws}, {off}\ns_addc_u32 s{d+1}, s{ws+1}, 0\ns_and_b32 s{d+1}, s{d+1}, 0xffff\ns_mov_b32 s{d+2}, {size}\ns_mov_b32 s{d+3}, 0x20000")

def xlane_sum(k, v, t, op="v_add_f32"):
    k(f"v_mov_b32 v{t}, v{v}\ns_nop 1\nv_permlane16_swap_b32 v{v}, v{t}\n{op} v{v}, v{v}, v{t}")
    k(f"v_mov_b32 v{t}, v{v}\ns_nop 1\nv_permlane32_swap_b32 v{v}, v{t}\n{op} v{v}, v{v}, v{t}")

def round_bf16(k, v):
    k(f"v_cvt_pk_bf16_f32 v{v}, v{v}, v{v}\nv_and_b32 v{v}, 0xffff0000, v{v}")


import os
TIMING = os.environ.get("TIMING", "0") != "0"
TINS = "s_memtime" if os.environ.get("TIMING") == "2" else "s_memrealtime"
WS_FLG = 5*MB + 524288
WS_FF = 5*MB + 262144
WS_XB = 50*MB
WS_TIME = 60*MB
TSV = 255
def stamp(k, i):
    if TIMING:
        if i == 0: k(f"v_mov_b32 v{TSV}, 0")
        k(f"{TINS} s[70:71]\ns_waitcnt lgkmcnt(0)\nv_writelane_b32 v{TSV}, s70, {i}")
def stamps_out(k, kidx, n, wsreg=10, vtmp=0):
    if not TIMING: return
    k("s_waitcnt vmcnt(0)")
    stamp(k, n)
    k(f"""s_add_u32 s72, s{wsreg}, {WS_TIME + kidx*262144}
    s_addc_u32 s73, s{wsreg+1}, 0
    s_lshl_b32 s74, s2, 10
    s_lshl_b32 s75, s42, 7
    s_add_u32 s74, s74, s75
    v_and_b32 v0, 31, v2
    v_lshl_add_u32 v0, v0, 2, s74
    s_mov_b32 exec_hi, 0
    global_store_dword v0, v{TSV}, s[72:73]
    s_waitcnt vmcnt(0)""")

PRE_AT = int(os.environ.get("PRE_AT", "4"))
WT = os.environ.get("WT", "sc0 sc1")
ORD = {"nat": (16, 8, 4), "split": (8, 4, 16), "att": (16, 4, 8)}

def pack_addr(k, order, pitch, vl, vsrc, vtr, vt, stmp):
    a, b, sel = ORD[order]
    k(f"""v_lshrrev_b32 v{vsrc}, 3, v{vl}
    s_mov_b32 s{stmp}, {pitch}
    v_mul_lo_u32 v{vsrc}, v{vsrc}, s{stmp}
    v_and_b32 v{vt}, 7, v{vl}
    v_lshl_add_u32 v{vsrc}, v{vt}, 4, v{vsrc}
    v_bfe_u32 v{vtr}, v{vl}, 2, 2
    v_bfe_u32 v{vt}, v{vl}, 4, 1
    v_lshl_add_u32 v{vtr}, v{vt}, {b.bit_length()-1}, v{vtr}
    v_lshrrev_b32 v{vt}, 5, v{vl}
    v_lshl_add_u32 v{vtr}, v{vt}, {a.bit_length()-1}, v{vtr}
    v_lshlrev_b32 v{vtr}, 7, v{vtr}
    v_and_b32 v{vt}, 3, v{vl}
    v_lshl_add_u32 v{vtr}, v{vt}, 3, v{vtr}""")

def pack_issue(k, srd, pitch, vsrc, s_src, s_lds, stmp):
    for i in range(4):
        k(f"s_add_u32 m0, s{s_lds}, {1024*i}\ns_add_u32 s{stmp}, s{s_src}, {8*i*pitch}")
        k(f"buffer_load_dwordx4 v{vsrc}, s[{srd}:{srd+3}], s{stmp} offen lds")

def pack_read(k, order, vaddr, F):
    sel = ORD[order][2]
    for nt in range(4):
        k(f"ds_read_b64_tr_b16 {vr(F+4*nt,2)}, v{vaddr} offset:{32*nt}")
        k(f"ds_read_b64_tr_b16 {vr(F+4*nt+2,2)}, v{vaddr} offset:{32*nt+128*sel}")

def wg_map(k, mode, rb, ct, tmp=39):
    lr = {"R2": 1, "R4": 2, "R8": 3, "R16": 4}[mode]
    if os.environ.get("SCRAMBLE") == "1":
        k("s_lshr_b32 s3, s2, 3\ns_and_b32 s3, s3, 7\ns_xor_b32 s2, s2, s3\ns_lshr_b32 s3, s2, 6\ns_xor_b32 s2, s2, s3")
    k(f"""s_and_b32 s{rb}, s2, 7
    s_lshr_b32 s3, s2, 3
    s_and_b32 s{ct}, s{rb}, {(1 << (lr-1)) - 1}
    s_lshl_b32 s{ct}, s{ct}, {5-lr}
    s_lshr_b32 s{rb}, s{rb}, {lr-1}
    s_lshl_b32 s{rb}, s{rb}, {lr}
    s_and_b32 s{tmp}, s3, {(1 << lr) - 1}
    s_or_b32 s{rb}, s{rb}, s{tmp}
    s_lshr_b32 s{tmp}, s3, {lr}
    s_or_b32 s{ct}, s{ct}, s{tmp}""")

def interleave(mf, other, start=0, step=1):
    slots = [[] for _ in mf]
    for i, o in enumerate(other):
        slots[min(start + int(i*step), len(mf)-1)].append(o)
    out = []
    for m, s in zip(mf, slots):
        out.append(m); out += s
    return out

class Gemm:
    def __init__(self, k, name, KB, KS, NS, BN, base=0, split=1, skh=None, aflag='', bflag=''):
        self.aflag = aflag; self.bflag = bflag
        self.k, self.name, self.KB, self.KS, self.NS, self.BN, self.base = k, name, KB, KS, NS, BN, base
        self.split, self.skh = split, skh
        self.S = KB // KS
        self.ASZ = KS * 8192
        self.BSZ = KS * BN * 64
        self.STG = self.ASZ + self.BSZ
        self.LDS = self.STG * NS
        self.NT = BN // 32; self.MT = 4
        self.bper = self.BSZ // 4
        self.nb = (self.bper + 1023) // 1024
        self.d = 2*KS + self.nb
    def L(self, s): return f"L_{self.name}_{s}"
    def slot_adv(self):
        return [f"s_add_u32 s53, s53, {self.STG}", f"s_cmp_eq_u32 s53, {self.base+self.LDS}", f"s_cselect_b32 s53, {self.base}, s53"]
    def issueA(self, adv=True):
        k = self.k
        k("s_add_u32 m0, s53, s46\ns_nop 0")
        for i in range(2*self.KS):
            k(f"buffer_load_dwordx4 v3, s[12:15], s45 offen offset:{1024*i} {self.aflag} lds")
        k(f"s_add_u32 s45, s45, {self.ASZ}")
        if adv: k(f"s_add_u32 s53, s53, {self.STG}")
    def issueB(self, slot):
        k = self.k
        k(f"s_add_u32 m0, s49, {slot}\ns_nop 0")
        for i in range(self.nb):
            half = (i+1)*1024 > self.bper
            if half: k("s_mov_b32 exec_hi, 0")
            k(f"buffer_load_dwordx4 v3, s[16:19], s47 offen offset:{1024*i} {self.bflag} lds")
            if half: k("s_mov_b32 exec_hi, -1")
        k(f"s_add_u32 s47, s47, {self.BSZ}")
    def issue(self):
        k = self.k
        k("s_add_u32 m0, s53, s46\ns_add_u32 s54, s53, s49")
        for i in range(2*self.KS):
            k(f"buffer_load_dwordx4 v3, s[12:15], s45 offen offset:{1024*i} {self.aflag} lds")
        k(f"s_mov_b32 m0, s54\ns_add_u32 s45, s45, {self.ASZ}")
        for i in range(self.nb):
            half = (i+1)*1024 > self.bper
            if half: k("s_mov_b32 exec_hi, 0")
            k(f"buffer_load_dwordx4 v3, s[16:19], s47 offen offset:{1024*i} {self.bflag} lds")
            if half: k("s_mov_b32 exec_hi, -1")
        k(f"s_add_u32 s47, s47, {self.BSZ}")
        k("\n".join(self.slot_adv()))
    def loader(self, tail_hooks=None, gate=None, npre=0, st=1):
        k, S, NS, d = self.k, self.S, self.NS, self.d
        tail_hooks = tail_hooks or {}
        k(f"""s_sub_u32 s43, s42, 4
        s_mul_i32 s45, s40, {self.split*self.KB*8192}
        s_mul_i32 s46, s43, {2*self.KS*1024}
        s_add_u32 s45, s45, s46
        s_mul_i32 s47, s41, {self.split*self.KB*self.BN*64}
        s_mul_i32 s49, s43, {self.bper}
        s_add_u32 s47, s47, s49
        s_add_u32 s49, s49, {self.ASZ}
        s_mov_b32 s53, {self.base}""")
        if self.split > 1:
            k(f"s_mul_i32 s48, s{self.skh}, {self.KB*8192}\ns_add_u32 s45, s45, s48\ns_mul_i32 s48, s{self.skh}, {self.KB*self.BN*64}\ns_add_u32 s47, s47, s48")
        assert npre < NS
        for i in range(npre): self.issueB(self.base + i*self.STG)
        if gate: gate()
        ops = []; issued = 0
        def iss(n):
            nonlocal issued
            for _ in range(n):
                if issued < npre: self.issueA(); ops.extend([issued] * (2*self.KS))
                else: self.issue(); ops.extend([issued] * d)
                issued += 1
        def after(s): return sum(1 for o in ops if o > s)
        iss(2 if npre < 2 else min(npre, 3))
        stamp(k, st)
        k(f"s_waitcnt vmcnt({after(0)})")
        stamp(k, st+1)
        k("s_barrier")
        iss(min(2, NS-issued))
        s = 0
        while issued < s + NS or after(s+1) != (NS-2)*d:
            k(f"s_waitcnt vmcnt({after(s+1)})\ns_barrier")
            iss(min(2, s + NS + 1 - issued))
            s += 1
        assert issued == s + NS
        k(f"s_mov_b32 s56, {S-NS-s}\n{self.L('lloop')}:")
        k(f"s_waitcnt vmcnt({(NS-2)*d})\ns_barrier")
        self.issue()
        k(f"s_sub_u32 s56, s56, 1\ns_cmp_lg_u32 s56, 0\ns_cbranch_scc1 {self.L('lloop')}")
        extra = 0
        for i, s in enumerate(range(S-NS, S)):
            k(f"s_waitcnt vmcnt({max(0, S-2-s)*d + extra})\ns_barrier")
            if i in tail_hooks:
                fn, n = tail_hooks[i]; fn(); extra += n
    def compute(self, X, ACC, va, vb, vca, vcb, pre=None, pre_at=None, hooks=None, st=1, before=None, after=None):
        k, KS, MT, NT = self.k, self.KS, self.MT, self.NT
        NF = KS * (MT + NT); Y = X + 4*NF
        k(f"""s_lshl_b32 s45, s43, 12
        v_add_u32 v{va}, s45, v3
        s_mul_i32 s46, s44, {NT*1024}
        s_add_u32 s46, s46, {self.ASZ}
        v_add_u32 v{vb}, s46, v3
        s_mov_b32 s53, {self.base}""")
        for i in range(4*MT*NT): k(f"v_mov_b32 v{ACC+i}, 0")
        upd = [f"v_add_u32 v{vca}, s53, v{va}", f"v_add_u32 v{vcb}, s53, v{vb}"] + self.slot_adv()
        def reads(F):
            r = []
            for ks in range(KS):
                f = F + 4*ks*(MT+NT)
                a = [f"ds_read_b128 {vr(f+4*m,4)}, v{vca} offset:{ks*8192+1024*m}" for m in range(MT)]
                b = [f"ds_read_b128 {vr(f+4*MT+4*n,4)}, v{vcb} offset:{ks*self.BN*64+1024*n}" for n in range(NT)]
                r += [b[0]] + a + b[1:]
            return r
        def mfmas(F):
            r = []
            for ks in range(KS):
                f = F + 4*ks*(MT+NT)
                for n in range(NT):
                    for m in range(MT):
                        a = ACC + 4*(m*NT + n)
                        r.append(f"v_mfma_f32_16x16x32_bf16 {vr(a,4)}, {vr(f+4*MT+4*n,4)}, {vr(f+4*m,4)}, {vr(a,4)}")
            return r
        k("\n".join(upd))
        if before: before()
        stamp(k, st)
        k("s_barrier")
        stamp(k, st+1)
        if after: after()
        k("\n".join(reads(X) + upd))
        k(f"s_mov_b32 s56, {self.S//2}\ns_waitcnt lgkmcnt(0)")
        k(f".p2align 6\n{self.L('cloop')}:")
        for (cu, nx) in ((X, Y), (Y, X)):
            k("s_barrier")
            mf = mfmas(cu); oth = reads(nx) + upd
            k("\n".join(interleave(mf, oth, 0, min(1.0, (len(mf)-1)/len(oth)))))
            k("s_waitcnt lgkmcnt(0)")
        hooks = dict(hooks or {})
        if pre: hooks[pre_at or PRE_AT] = pre
        if hooks:
            mask = sum(1 << h for h in hooks)
            k(f"s_bitcmp1_b32 {hex(mask)}, s56\ns_cbranch_scc1 {self.L('hook')}\n{self.L('hookret')}:")
        k(f"s_sub_u32 s56, s56, 1\ns_cmp_lg_u32 s56, 0\ns_cbranch_scc1 {self.L('cloop')}")
        if hooks:
            k(f"s_branch {self.L('cdone')}\n{self.L('hook')}:")
            hs = sorted(hooks)
            for h in hs:
                if h != hs[-1]: k(f"s_cmp_lg_u32 s56, {h}\ns_cbranch_scc1 {self.L('hk%d' % h)}")
                hooks[h]()
                k(f"s_branch {self.L('hookret')}")
                if h != hs[-1]: k(f"{self.L('hk%d' % h)}:")
            k(f"{self.L('cdone')}:")
        return X + 8*NF

CODEPF = os.environ.get("CODEPF", "1") == "1"
def code_pull(k, first, last, vl, vt, sp=68):
    if not CODEPF: return 0
    lab = k.label("pc")
    n = CODE_LINES.get((first, last), 2)
    k(f"""s_getpc_b64 s[{sp}:{sp+1}]
    {lab}:
    s_add_u32 s{sp}, s{sp}, {first}-{lab}
    s_addc_u32 s{sp+1}, s{sp+1}, 0
    v_lshlrev_b32 v{vt}, 7, v{vl}""")
    for i in range(n):
        k(f"v_min_u32 v{vt+1}, {last}-{first}-4, v{vt}\nglobal_load_dword v{vt+2}, v{vt+1}, s[{sp}:{sp+1}]")
        if i + 1 < n: k(f"v_add_u32 v{vt}, 8192, v{vt}")
    return n
CODE_LINES = {("L_f_end", "L_code_end"): 4, ("main_kernel", "L_code_end"): 4, ("back_kernel", "L_code_end"): 2, ("attn_kernel", "back_kernel"): 2, ("front2_kernel", "oproj_kernel"): 3, ("attn_kernel", "oproj_kernel"): 2, ("oproj_kernel", "w1_kernel"): 1, ("w1_kernel", "w2_kernel"): 1, ("w2_kernel", "L_code_end"): 1}

def ln_finish(k, var, nmean, off):
    round_bf16(k, var)
    k(f"v_add_f32 v{var}, {hex(f2u(1e-5))}, v{var}")
    round_bf16(k, var)
    k(f"v_sqrt_f32 v{var}, v{var}\ns_nop 0")
    round_bf16(k, var)
    k(f"v_rcp_f32 v{var}, v{var}")
    round_bf16(k, nmean)
    k(f"v_mul_f32 v{off}, v{nmean}, v{var}")


SPLITK = os.environ.get("SPLITK", "1") == "1"
```

```python
from common import *

SPIN_MAX = 1 << 22
MAP_W1 = os.environ.get("MAP_w1", "R8")
W2KS = int(os.environ.get('W2KS', '2'))
NPRE0 = int(os.environ.get("NPRE0", "2"))
NPRE1 = int(os.environ.get("NPRE1", "4"))
NPRE2 = int(os.environ.get("NPRE2", "3"))

class Back:
    def __init__(self, k):
        self.k = k
        self.GO = Gemm(k, "bo", 32, 2, 6, 64, aflag="sc1", bflag="sc1")
        self.G1 = Gemm(k, "b1", 32, 1, 7, 224, aflag="sc1", bflag="sc1")
        self.G2 = Gemm(k, "b2", 56, W2KS, 4 if W2KS == 2 else 9, 128, split=2, skh=61, aflag="sc1", bflag="sc1")
        self.MODL = 159744; self.STL = self.MODL + 1024; self.MODL2 = self.STL + 1024
    def map2(self):
        self.k("""s_and_b32 s61, s2, 1             ; K half
        s_bfe_u32 s40, s2, 0x20001
        s_lshl_b32 s40, s40, 2
        s_bfe_u32 s3, s2, 0x20003
        s_add_u32 s40, s40, s3
        s_lshr_b32 s41, s2, 5""")
    def sv_ld(self):
        for i in range(4): self.k(f"s_mov_b32 s58, {8192 + 2048*i}\nbuffer_load_dword v{28+i}, v5, s[24:27], s58 offen sc1")
    def sv_cmp(self, n): self.k(f"v_min3_u32 v28, v28, v29, v30\nv_min_u32 v28, v28, v31\nv_cmp_gt_u32 vcc, {n}, v28")
    def mods(self):
        k = self.k
        srd_ws(k, 24, 10, WS_FF, 16384)
        k("v_lshlrev_b32 v5, 5, v2")
        spin(k, "psva", self.sv_ld, lambda: self.sv_cmp(1), sleep=16)
        srd_ws(k, 24, 10, WS_MOD2, 16*16384)
        k(f"""s_lshl_b32 s57, s43, 12
        s_lshl_b32 s58, s41, 8
        s_add_u32 s57, s57, s58
        s_and_b32 s59, s43, 1
        s_lshl_b32 s59, s59, 8
        s_lshr_b32 s58, s2, 5
        s_lshl_b32 s58, s58, 9
        s_add_u32 s59, s59, s58
        s_add_u32 s59, s59, {3072*4}
        v_and_b32 v4, 0xf0, v3
        v_lshrrev_b32 v6, 4, v2
        v_lshl_add_u32 v9, v6, 14, v4""")
        for p in range(4):
            k(f"buffer_load_dwordx4 {vr(16+4*p,4)}, v9, s[24:27], s57 offen sc1\ns_add_u32 s57, s57, 65536")
            k(f"buffer_load_dwordx4 {vr(32+4*p,4)}, v9, s[24:27], s59 offen sc1\ns_add_u32 s59, s59, 65536")
        k(f"""s_cmp_eq_u32 s43, 2
        s_cselect_b32 s58, 1.0, 0
        s_lshl_b32 s57, s43, 8
        s_add_u32 s57, s57, {self.MODL}
        v_lshl_add_u32 v4, v6, 2, v4
        v_add_u32 v4, s57, v4
        s_waitcnt vmcnt(0)""")
        for a in (16, 32):
            for p in range(1, 4):
                for h in (0, 2): k(f"v_pk_add_f32 {vr(a+h,2)}, {vr(a+h,2)}, {vr(a+4*p+h,2)}")
        k("s_nop 0")
        for a in (16, 32): k(f"v_permlane16_swap_b32 v{a}, v{a+1}\nv_permlane16_swap_b32 v{a+2}, v{a+3}")
        for a in (16, 32): k(f"v_add_f32 v{a}, v{a}, v{a+1}\nv_add_f32 v{a+2}, v{a+2}, v{a+3}")
        k("s_nop 1")
        for a in (16, 32): k(f"v_permlane32_swap_b32 v{a}, v{a+2}")
        for a in (16, 32):
            k(f"v_add_f32 v{a}, v{a}, v{a+2}")
            round_bf16(k, a)
        k("v_add_f32 v16, s58, v16")
        round_bf16(k, 16)
        k("ds_write_b32 v4, v16\nds_write_b32 v4, v32 offset:2048\ns_waitcnt lgkmcnt(0)")

def spin(k, tag, load, cmp_, sleep=0):
    k(f"s_mov_b32 s66, {SPIN_MAX}")
    if sleep: k(f"s_branch L_{tag}f\nL_{tag}:\ns_sleep {sleep}\nL_{tag}f:")
    else: k(f"L_{tag}:")
    load()
    k("s_waitcnt vmcnt(0)")
    cmp_()
    k(f"""s_sub_u32 s66, s66, 1
    s_cbranch_scc1 L_{tag}d
    s_cmp_lg_u64 vcc, 0
    s_cbranch_scc1 L_{tag}
    L_{tag}d:""")

def back_loader(B, gateO, S0):
    k, GO, G1, G2, MODL, STL, map2 = B.k, B.GO, B.G1, B.G2, B.MODL, B.STL, B.map2
    srd_ws(k, 12, 10, WS_O, SZ_ACT)
    srd_ws(k, 16, 10, WS_WOP, 2*MB)
    def sv0():
        srd_ws(k, 24, 10, WS_FF, 16384)
        k("v_lshlrev_b32 v5, 5, v2")
        B.sv_ld()
    GO.loader({1: (sv0, 4)}, gate=gateO, npre=NPRE0, st=S0+1)
    k("s_waitcnt vmcnt(0)")
    B.sv_cmp(2)
    k("s_nop 0\ns_cmp_eq_u64 vcc, 0\ns_cbranch_scc1 L_psvd")
    spin(k, "psv", B.sv_ld, lambda: B.sv_cmp(2))
    stamp(k, S0+3)
    srd_ws(k, 24, 10, WS_ST2, 2048*256)
    k(f"""s_lshl_b32 s57, s40, 15
    s_lshl_b32 s58, s43, 8
    s_add_u32 s57, s57, s58
    v_and_b32 v4, 15, v2
    v_lshrrev_b32 v5, 4, v2
    v_lshlrev_b32 v6, 10, v5
    v_lshl_add_u32 v6, v4, 4, v6""")
    wg_map(k, MAP_W1, 40, 41)
    srd_ws(k, 12, 10, WS_H2, SZ_ACT)
    srd_ws(k, 16, 10, WS_W1P, 7*MB)
    def gate1():
        def ld():
            for i in range(8): k(f"s_add_u32 s58, s57, {4096*i}\nbuffer_load_dwordx4 {vr(8+4*i,4)}, v6, s[24:27], s58 offen sc1")
        def cm():
            k("v_max3_u32 v7, v8, v9, v10")
            for i in range(11, 39, 2): k(f"v_max3_u32 v7, v7, v{i}, v{i+1}")
            k("v_max_u32 v7, v7, v39\nv_cmp_eq_u32 vcc, -1, v7")
        k("s_barrier")
        spin(k, "pst", ld, cm)
        for i in range(1, 8):
            k(f"v_pk_add_f32 v[8:9], v[8:9], {vr(8+4*i,2)}\nv_pk_add_f32 v[10:11], v[10:11], {vr(10+4*i,2)}")
        k(f"""s_lshl_b32 s58, s43, 8
        s_add_u32 s58, s58, {STL}
        v_permlane16_swap_b32 v8, v10
        v_permlane16_swap_b32 v9, v11
        v_pk_add_f32 v[8:9], v[8:9], v[10:11]
        v_and_b32 v5, 1, v5
        v_lshlrev_b32 v5, 3, v5
        v_mov_b64 v[10:11], v[8:9]
        v_lshl_add_u32 v5, v4, 4, v5
        v_add_u32 v5, s58, v5
        v_permlane32_swap_b32 v8, v10
        v_permlane32_swap_b32 v9, v11
        v_pk_add_f32 v[8:9], v[8:9], v[10:11]
        v_mul_f32 v10, {hex(f2u(-1/1024))}, v8
        v_mul_f32 v9, {hex(f2u(1/1024))}, v9
        v_fma_f32 v9, -v10, v10, v9
        v_max_f32 v9, 0, v9""")
        ln_finish(k, 9, 10, 8)
        k("ds_write_b64 v5, v[8:9]\ns_waitcnt lgkmcnt(0)\ns_barrier")
        srd_ws(k, 24, 10, WS_FLG, 524288)
        k("v_lshlrev_b32 v6, 7, v2\ns_lshl_b32 s57, s40, 13\ns_barrier")
        stamp(k, S0+4)
        spin(k, "ph2", lambda: k("buffer_load_dword v7, v6, s[24:27], s57 offen sc1"), lambda: k("v_cmp_eq_u32 vcc, 0, v7"))
    G1.loader(gate=gate1, npre=NPRE1, st=S0+5)
    stamp(k, S0+7)
    map2()
    srd_ws(k, 12, 10, WS_U, SZ_U)
    srd_ws(k, 16, 10, WS_W2P, 7*MB)
    k(f"""v_and_b32 v6, 0xf80, v6
    s_lshl_b32 s57, s40, 13
    s_lshl_b32 s58, s61, 12
    s_add_u32 s57, s57, s58
    s_add_u32 s57, s57, 131072""")
    G2.loader(
              gate=lambda: (k("s_barrier"), spin(k, "pu1", lambda: k("buffer_load_dword v7, v6, s[24:27], s57 offen sc1"), lambda: k("v_cmp_eq_u32 vcc, 0, v7"))), npre=NPRE2, st=S0+8)
    stamp(k, S0+10)

def back_compute(B, S0):
    k, GO, G1, G2, MODL, STL, map2 = B.k, B.GO, B.G1, B.G2, B.MODL, B.STL, B.map2
    k(f"""s_and_b32 s43, s42, 1            ; th
    s_lshr_b32 s44, s42, 1           ; nh
    v_and_b32 v4, 15, v2             ; t
    v_lshrrev_b32 v5, 4, v2          ; g""")
    X = 12; ACC = X + 96; EPI = ACC + 32
    srd_ws(k, 20, 10, WS_X1, 2*SZ_ACT)
    srd_arg(k, 28, 6, 0, 4*MB)
    srd_ws(k, 32, 10, WS_FLG, 524288)
    k(f"""s_lshl_b32 s59, s40, 18
    s_lshl_b32 s58, s41, 14
    s_add_u32 s59, s59, s58
    s_lshl_b32 s58, s42, 12
    s_add_u32 s59, s59, s58
    s_lshl_b32 s60, s40, 18
    s_lshl_b32 s58, s43, 17
    s_add_u32 s60, s60, s58
    s_lshl_b32 s58, s41, 7
    s_add_u32 s60, s60, s58
    s_lshl_b32 s58, s44, 6
    s_add_u32 s60, s60, s58
    s_lshl_b32 s58, s44, 7
    s_add_u32 s58, s58, {MODL}
    v_lshl_add_u32 v6, v5, 4, s58
    v_lshlrev_b32 v7, 11, v4
    v_lshl_add_u32 v7, v5, 3, v7
    v_mov_b32 v230, 0""")
    def pre():
        for m in range(4):
            k(f"s_add_u32 s58, s60, {m*32768}")
            k(f"buffer_load_dwordx2 {vr(EPI+8+4*m,2)}, v7, s[28:31], s58 offen")
            k(f"buffer_load_dwordx2 {vr(EPI+10+4*m,2)}, v7, s[28:31], s58 offen offset:32")
    GO.compute(X, ACC, 8, 9, 10, 11, pre, st=S0+1)
    stamp(k, S0+3)
    k(f"ds_read_b128 {vr(EPI,4)}, v6\nds_read_b128 {vr(EPI+4,4)}, v6 offset:64")
    for j in range(2):
        k(f"ds_read_b128 {vr(EPI+24+4*j,4)}, v6 offset:{256+64*j}\nds_read_b128 {vr(EPI+32+4*j,4)}, v6 offset:{512+64*j}")
    T = X
    k("s_waitcnt vmcnt(0)")
    for m in range(4):
        for j in range(4):
            t = T + 8*m + 2*j
            k(f"v_lshlrev_b32 v{t}, 16, v{EPI+8+4*m+j}\nv_and_b32 v{t+1}, 0xffff0000, v{EPI+8+4*m+j}")
    k("s_waitcnt lgkmcnt(0)")
    for m in range(4):
        for j in range(4):
            t = T + 8*m + 2*j
            k(f"v_pk_fma_f32 {vr(t,2)}, {vr(ACC+8*m+2*j,2)}, {vr(EPI+2*j,2)}, {vr(t,2)}")
    S1, S2 = T + 32, T + 40
    for m in range(4):
        t = T + 8*m
        k(f"v_pk_add_f32 {vr(S1+2*m,2)}, {vr(t,2)}, {vr(t+2,2)}\nv_pk_mul_f32 {vr(S2+2*m,2)}, {vr(t,2)}, {vr(t,2)}")
    for m in range(4):
        t = T + 8*m
        k(f"v_pk_add_f32 {vr(S1+2*m,2)}, {vr(S1+2*m,2)}, {vr(t+4,2)}\nv_pk_fma_f32 {vr(S2+2*m,2)}, {vr(t+2,2)}, {vr(t+2,2)}, {vr(S2+2*m,2)}")
    for m in range(4):
        t = T + 8*m
        k(f"v_pk_add_f32 {vr(S1+2*m,2)}, {vr(S1+2*m,2)}, {vr(t+6,2)}\nv_pk_fma_f32 {vr(S2+2*m,2)}, {vr(t+4,2)}, {vr(t+4,2)}, {vr(S2+2*m,2)}")
    for m in range(4):
        t = T + 8*m
        k(f"v_pk_fma_f32 {vr(S2+2*m,2)}, {vr(t+6,2)}, {vr(t+6,2)}, {vr(S2+2*m,2)}")
    for m in range(4):
        k(f"v_add_f32 v{S1+2*m}, v{S1+2*m}, v{S1+2*m+1}\nv_add_f32 v{S1+2*m+1}, v{S2+2*m}, v{S2+2*m+1}")
    srd_ws(k, 24, 10, WS_ST2, 2048*256)
    for j in range(2): k(f"v_permlane16_swap_b32 v{S1+j}, v{S1+2+j}\nv_permlane16_swap_b32 v{S1+4+j}, v{S1+6+j}")
    k(f"v_pk_add_f32 {vr(S1,2)}, {vr(S1,2)}, {vr(S1+2,2)}\nv_pk_add_f32 {vr(S1+4,2)}, {vr(S1+4,2)}, {vr(S1+6,2)}")
    k(f"""s_lshl_b32 s57, s40, 15
    s_lshl_b32 s58, s41, 11
    s_add_u32 s57, s57, s58
    s_lshl_b32 s58, s42, 9
    s_add_u32 s57, s57, s58
    v_lshlrev_b32 v7, 3, v2""")
    for j in range(2): k(f"v_permlane32_swap_b32 v{S1+j}, v{S1+4+j}")
    k(f"""v_pk_add_f32 {vr(S1,2)}, {vr(S1,2)}, {vr(S1+4,2)}
    v_min_u32 v{S1}, -2, v{S1}
    v_min_u32 v{S1+1}, -2, v{S1+1}
    buffer_store_dwordx2 {vr(S1,2)}, v7, s[24:27], s57 offen {WT}
    s_barrier""")
    for m in range(4):
        for j in range(4): k(f"v_cvt_pk_bf16_f32 v{EPI+8+4*m+j}, v{T+8*m+2*j}, v{T+8*m+2*j+1}")
        k(f"buffer_store_dwordx4 {vr(EPI+8+4*m,4)}, v3, s[20:23], s59 offen offset:{1024*m} {WT}")
    k(f"""s_lshl_b32 s58, s43, 9
    s_add_u32 s58, s58, {STL}
    v_lshl_add_u32 v7, v4, 3, s58
    s_add_u32 s59, s59, {SZ_ACT}
    s_lshr_b32 s57, s57, 2
    v_mov_b32 v231, 1
    s_barrier""")
    for m in range(4): k(f"ds_read_b64 {vr(S1+2*m,2)}, v7 offset:{128*m}")
    for m in range(4):
        k(f"s_waitcnt lgkmcnt({3-m})")
        for j in range(4):
            t = T + 8*m + 2*j
            k(f"v_pk_fma_f32 {vr(t,2)}, {vr(t,2)}, {vr(S1+2*m,2)}, {vr(S1+2*m,2)} op_sel:[0,1,0] op_sel_hi:[1,1,0]")
        for j in range(4):
            t = T + 8*m + 2*j
            k(f"v_pk_fma_f32 {vr(t,2)}, {vr(t,2)}, {vr(EPI+32+2*j,2)}, {vr(EPI+24+2*j,2)}")
        for j in range(4): k(f"v_cvt_pk_bf16_f32 v{ACC+4*m+j}, v{T+8*m+2*j}, v{T+8*m+2*j+1}")
        k(f"buffer_store_dwordx4 {vr(ACC+4*m,4)}, v3, s[20:23], s59 offen offset:{1024*m} {WT}")
    stamp(k, S0+4)
    k(f"s_waitcnt vmcnt(0)\nbuffer_store_dword v231, v230, s[32:35], s57 offen {WT}\ns_barrier")
    wg_map(k, MAP_W1, 40, 41)
    srd_ws(k, 20, 10, WS_U, SZ_U)
    ACC = X + 88; NT = 7
    G1.compute(X, ACC, 8, 9, 10, 11, st=S0+5)
    stamp(k, S0+7)
    k(f"""s_lshr_b32 s50, s41, 3           ; half
    s_and_b32 s51, s41, 7            ; c
    s_lshl_b32 s67, s40, 1
    s_add_u32 s67, s67, s50
    s_mul_i32 s48, s67, {56*8192}
    s_lshl_b32 s47, s43, 12
    s_add_u32 s48, s48, s47
    s_lshl_b32 s47, s51, 13
    s_add_u32 s50, s48, s47
    s_add_u32 s48, s50, s47
    s_add_u32 s50, s50, {16*8192}
    s_lshl_b32 s47, s44, 9
    s_add_u32 s50, s50, s47
    v_and_b32 v7, 1, v5
    v_lshlrev_b32 v7, 10, v7
    v_lshrrev_b32 v6, 1, v5
    v_lshl_add_u32 v7, v6, 8, v7
    v_lshl_add_u32 v7, v4, 4, v7
    s_lshl_b32 s47, s44, 13
    s_add_u32 s48, s48, s47          ; group 0
    s_lshl_b32 s67, s67, 12
    s_lshl_b32 s47, s51, 9
    s_add_u32 s67, s67, s47
    s_lshl_b32 s47, s42, 7
    s_add_u32 s67, s67, s47
    s_add_u32 s67, s67, 131072
    s_mov_b32 s52, {hex(f2u(-LOG2E))}""")
    def silu(a, n, dst):
        for i in range(0, n, 2): k(f"v_pk_mul_f32 {vr(T+i,2)}, {vr(a+i,2)}, s[52:53] op_sel_hi:[1,0]")
        for i in range(n): k(f"v_exp_f32 v{T+i}, v{T+i}")
        for i in range(0, n, 2): k(f"v_pk_add_f32 {vr(T+i,2)}, {vr(T+i,2)}, 1.0 op_sel_hi:[1,0]")
        for i in range(n): k(f"v_rcp_f32 v{T+i}, v{T+i}")
        for i in range(0, n, 2): k(f"v_pk_mul_f32 {vr(T+i,2)}, {vr(T+i,2)}, {vr(a+i,2)}")
        for i in range(0, n, 2): k(f"v_cvt_pk_bf16_f32 v{dst+i//2}, v{T+i}, v{T+i+1}")
    P = T + 8; H2R = 232
    for m in range(4):
        silu(ACC + 4*(m*NT), 8, P + 4*m)
        k(f"buffer_store_dwordx4 {vr(P+4*m,4)}, v3, s[20:23], s48 offen offset:{1024*m} {WT}")
    for m in range(0, 4, 2):
        silu(ACC + 4*(m*NT + 6), 4, P + 16 + 2*m)
        silu(ACC + 4*((m+1)*NT + 6), 4, P + 18 + 2*m)
        q = P + 16 + 2*m
        k(f"s_nop 1\nv_permlane16_swap_b32 v{q}, v{q+2}\nv_permlane16_swap_b32 v{q+1}, v{q+3}")
        k(f"buffer_store_dwordx4 {vr(q,4)}, v7, s[20:23], s50 offen offset:{1024*m} {WT}")
    for m in range(4): silu(ACC + 4*(m*NT + 2), 8, P + 24 + 4*m)
    k(f"s_waitcnt vmcnt(0)\nbuffer_store_dword v231, v230, s[32:35], s67 offen {WT}\ns_barrier")
    for m in range(4): silu(ACC + 4*(m*NT + 4), 8, H2R + 4*m)
    k(f"s_add_u32 s68, s48, {24*8192}\ns_add_u32 s69, s48, {40*8192}")
    srd_ws(k, 36, 10, WS_U, SZ_U)
    map2()
    ACC = X + 128; EPI = ACC + 64
    srd_ws(k, 20, 10, WS_X1, SZ_ACT)
    srd_ws(k, 24, 10, WS_XB, 4*MB)
    srd_arg(k, 28, 8, 0, 4*MB)
    k(f"""s_lshl_b32 s62, s41, 2
    s_lshl_b32 s58, s44, 1
    s_add_u32 s62, s62, s58
    s_add_u32 s62, s62, s61
    s_lshl_b32 s59, s40, 18
    s_lshl_b32 s58, s62, 13
    s_add_u32 s59, s59, s58
    s_lshl_b32 s58, s43, 12
    s_add_u32 s59, s59, s58          ; X1 granule
    s_lshl_b32 s60, s40, 18
    s_lshl_b32 s58, s43, 17
    s_add_u32 s60, s60, s58
    s_lshl_b32 s58, s62, 6
    s_add_u32 s60, s60, s58
    s_and_b32 s58, s62, 3
    s_lshl_b32 s58, s58, 7
    s_add_u32 s58, s58, {B.MODL2}
    v_lshl_add_u32 v6, v5, 4, s58
    s_lshl_b32 s63, s2, 14
    s_lshl_b32 s58, s42, 12
    s_add_u32 s63, s63, s58
    s_xor_b32 s64, s63, 0x4000
    s_lshl_b32 s65, s40, 13
    s_lshl_b32 s58, s61, 12
    s_add_u32 s65, s65, s58
    s_add_u32 s65, s65, 131072
    v_and_b32 v228, 31, v2
    v_lshlrev_b32 v228, 7, v228""")
    def st1():
        for m in range(4): k(f"buffer_store_dwordx4 {vr(P+24+4*m,4)}, v3, s[36:39], s68 offen offset:{1024*m} {WT}")
    def pub(n): k(f"v_mov_b32 v231, {n}\ns_waitcnt vmcnt(0)\nbuffer_store_dword v231, v230, s[32:35], s67 offen {WT}")
    def h13():
        pub(2)
        for m in range(4): k(f"buffer_store_dwordx4 {vr(H2R+4*m,4)}, v3, s[36:39], s69 offen offset:{1024*m} {WT}")
    def pl(): k("buffer_load_dword v229, v228, s[32:35], s65 offen sc1")
    def chk(n, tag, p):
        def f():
            if p: pub(p)
            else: k("s_waitcnt vmcnt(0)")
            k(f"v_cmp_gt_u32 vcc, {n}, v229\ns_nop 0\ns_cmp_eq_u64 vcc, 0\ns_cbranch_scc1 L_{tag}d")
            spin(k, tag, pl, lambda: k(f"v_cmp_gt_u32 vcc, {n}, v229"))
        return f
    def pre2():
        for m in range(4): k(f"buffer_load_dwordx4 {vr(EPI+8+4*m,4)}, v3, s[20:23], s59 offen offset:{1024*m} sc1")
    G2.compute(X, ACC, 8, 9, 10, 11, hooks=({13: h13, 12: pl, 11: chk(2, "pu2", 3), 8: pl, 7: chk(3, "pu3", 0), 3: pre2} if W2KS == 2 else
        {26: h13, 24: pl, 22: chk(2, "pu2", 3), 16: pl, 14: chk(3, "pu3", 0), 5: pre2}), st=S0+8, after=st1)
    stamp(k, S0+10)
    k(f"ds_read_b128 {vr(EPI,4)}, v6\nds_read_b128 {vr(EPI+4,4)}, v6 offset:64\ns_waitcnt vmcnt(0)\ns_nop 2")
    T = X; R = X + 32; SND = X + 64; RB = X + 80
    for m in range(4):
        for j in range(4): k(f"v_cvt_pk_bf16_f32 v{SND+4*m+j}, v{ACC+16*m+8+2*j}, v{ACC+16*m+9+2*j}")
        for j in range(4): k(f"v_min_u32 v{SND+4*m+j}, -2, v{SND+4*m+j}")
        k(f"buffer_store_dwordx4 {vr(SND+4*m,4)}, v3, s[24:27], s64 offen offset:{1024*m} {WT}")
    for m in range(4):
        for j in range(4):
            t = T + 8*m + 2*j
            k(f"v_lshlrev_b32 v{t}, 16, v{EPI+8+4*m+j}\nv_and_b32 v{t+1}, 0xffff0000, v{EPI+8+4*m+j}")
    def ldx():
        for j in range(4): k(f"buffer_load_dwordx4 {vr(RB+4*j,4)}, v3, s[24:27], s63 offen offset:{1024*j} sc1")
    def cmx():
        k(f"v_max3_u32 v7, v{RB}, v{RB+1}, v{RB+2}")
        for i in range(3, 15, 2): k(f"v_max3_u32 v7, v7, v{RB+i}, v{RB+i+1}")
        k(f"v_max_u32 v7, v7, v{RB+15}\nv_cmp_eq_u32 vcc, -1, v7")
    spin(k, "px", ldx, cmx)
    k(f"""v_and_b32 v7, 1, v5
    v_lshlrev_b32 v7, 5, v7
    v_lshrrev_b32 v8, 1, v5
    v_lshl_add_u32 v7, v8, 4, v7
    v_lshl_add_u32 v7, v4, 11, v7
    s_waitcnt lgkmcnt(0)""")
    for m in range(4):
        xr = EPI + 8 + 4*m
        for j in range(4): k(f"v_lshlrev_b32 v{R+8*m+2*j}, 16, v{RB+4*m+j}\nv_and_b32 v{R+8*m+2*j+1}, 0xffff0000, v{RB+4*m+j}")
        for j in range(4): k(f"v_pk_add_f32 {vr(R+8*m+2*j,2)}, {vr(R+8*m+2*j,2)}, {vr(ACC+16*m+2*j,2)}")
        for j in range(4): k(f"v_pk_fma_f32 {vr(T+8*m+2*j,2)}, {vr(R+8*m+2*j,2)}, {vr(EPI+2*j,2)}, {vr(T+8*m+2*j,2)}")
        for j in range(4): k(f"v_cvt_pk_bf16_f32 v{xr+j}, v{T+8*m+2*j}, v{T+8*m+2*j+1}")
        k(f"s_add_u32 s58, s60, {m*32768}\ns_nop 0")
        k(f"v_permlane16_swap_b32 v{xr}, v{xr+2}\nv_permlane16_swap_b32 v{xr+1}, v{xr+3}")
        k(f"buffer_store_dwordx4 {vr(xr,4)}, v7, s[28:31], s58 offen {WT}")
```

```python
from common import *
from gen_back import Back, back_loader, back_compute, spin
import math

def main_body(k, gateQ=None, force_fallback=False, S0=0):
    L = lambda s: f"L_attn_{s}"
    QB = 65536; SCR = 128*1024
    SA, SB, OA, OB, MA, MB_ = 16, 32, 48, 64, 80, 96
    KF, V0, V1, LA, LB, ONE, IDX, VC, VN, QA, QBr = 112, 120, 124, 128, 132, 136, 140, 141, 142, 144, 152
    ALT = 48
    B = Back(k)
    wg_map(k, "R2", 40, 41)
    srd_ws(k, 12, 10, WS_H1, SZ_ACT)
    srd_ws(k, 16, 10, WS_WQP, 2*MB)
    srd_ws(k, 20, 10, WS_KV, 262144)
    G = Gemm(k, "attnq", 32, 2, 4, 64, base=QB, aflag="sc1", bflag="sc1")
    k(f"s_cmp_lt_u32 s42, 4\ns_cbranch_scc1 {L('qcomp')}")
    k(f"""s_load_dwordx2 s[8:9], s[0:1], {B_W1}
    s_load_dwordx2 s[6:7], s[0:1], {B_W2}
    s_load_dwordx2 s[4:5], s[0:1], {A_WMOD}
    s_load_dwordx2 s[64:65], s[0:1], {A_X}
    s_and_b32 s57, s42, 3
    s_lshl_b32 s57, s57, 14""")
    def kv(st, parts):
        for q in parts:
            k(f"s_add_u32 m0, s57, {65536*(st%2) + 4096*q}\ns_add_u32 s59, s57, {65536*st + 4096*q}")
            for i in range(4): k(f"buffer_load_dwordx4 v3, s[20:23], s59 offen offset:{1024*i} sc1 lds")
    G.loader({0: (lambda: kv(0, (0, 1)), 8), 1: (lambda: kv(0, (2, 3)), 8)}, gate=gateQ, st=S0+1)
    stamp(k, S0+3)
    k(f"s_setprio {os.environ.get('SVP', '3')}\ns_waitcnt vmcnt(0) lgkmcnt(0)\ns_barrier")
    srd_arg(k, 32, 8, 0, 1024*7168)
    srd_arg(k, 36, 6, 0, 3584*2048)
    srd_arg(k, 4, 4, 0, 1024*12288)
    srd_arg(k, 64, 64, 0, 4*MB)
    srd_ws(k, 12, 10, WS_W1P, 7*MB)
    srd_ws(k, 16, 10, WS_W2P, 7*MB)
    srd_ws(k, 28, 10, 0, WS_XB + 4*MB)
    pack_addr(k, "split", 2048, 2, 4, 5, 6, 47)
    k(f"""v_add_u32 v5, {SCR}, v5
    v_lshrrev_b32 v7, 3, v2
    v_mul_u32_u24 v11, 12288, v7
    v_mul_u32_u24 v7, 7168, v7
    v_and_b32 v6, 7, v2
    v_lshl_add_u32 v7, v6, 4, v7
    v_lshl_add_u32 v11, v6, 4, v11
    v_lshlrev_b32 v8, 7, v2
    v_lshrrev_b32 v13, 4, v2
    v_lshl_add_u32 v12, v13, 9, v5
    v_lshlrev_b32 v15, 3, v13
    s_mul_i32 s45, s2, 7
    s_and_b32 s54, s2, 63
    s_lshr_b32 s55, s2, 6""")
    def blocks(name, body):
        k(f"s_mov_b32 s56, s43\n{L(name)}:\ns_add_u32 s52, s45, s56\ns_lshl_b32 s53, s56, 12")
        body()
        k(f"s_add_u32 s56, s56, 4\ns_cmp_lt_u32 s56, 7\ns_cbranch_scc1 {L(name)}")
    def w2_in():
        k(f"""s_lshr_b32 s47, s52, 4
        s_lshl_b32 s47, s47, 16
        s_and_b32 s48, s52, 15
        s_lshl_b32 s48, s48, 7
        s_add_u32 s47, s47, s48
        s_add_u32 s46, s53, {SCR}""")
        pack_issue(k, 36, 2048, 4, 47, 46, 48)
    def w2_out():
        k(f"""s_lshr_b32 s48, s52, 4           ; kb
        s_mul_i32 s49, s48, 9363
        s_lshr_b32 s49, s49, 16
        s_mul_i32 s50, s49, 7
        s_sub_u32 s48, s48, s50          ; pair
        s_cmp_eq_u32 s48, 6
        s_cselect_b64 vcc, -1, 0
        s_cselect_b32 s51, 4, 16
        s_lshl_b32 s51, s51, 7
        v_cndmask_b32 v10, v5, v12, vcc
        v_add_u32 v10, s53, v10
        v_add_u32 v9, s51, v10""")
        for nt in range(4):
            k(f"ds_read_b64_tr_b16 {vr(16+4*nt,2)}, v10 offset:{32*nt}\nds_read_b64_tr_b16 {vr(18+4*nt,2)}, v9 offset:{32*nt}")
        k(f"""s_and_b32 s50, s49, 7            ; c
        s_lshr_b32 s49, s49, 3           ; half
        s_cmp_ge_u32 s48, 3
        s_cselect_b32 s51, -47, 0
        s_lshl_b32 s47, s48, 4
        s_add_u32 s47, s47, s51
        s_cmp_ge_u32 s47, 16
        s_cselect_b32 s51, 8, 0
        s_add_u32 s47, s47, s51
        s_add_u32 s47, s47, s50          ; (0,24,40)[g] + nh + c
        s_cmp_eq_u32 s48, 6
        s_cselect_b32 s47, 16, s47
        s_add_u32 s47, s47, s50
        s_mul_i32 s50, s49, 56
        s_add_u32 s47, s47, s50          ; kb'
        s_bfe_u32 s50, s52, 0x30001
        s_mul_i32 s50, s50, 112
        s_add_u32 s47, s47, s50
        s_lshl_b32 s47, s47, 13
        s_and_b32 s50, s52, 1
        s_lshl_b32 s50, s50, 12
        s_add_u32 s47, s47, s50
        s_lshl_b32 s49, s49, 11
        s_add_u32 s47, s47, s49
        s_xor_b32 s48, s47, 2048
        s_waitcnt lgkmcnt(0)""")
        for nt in range(4): k(f"buffer_store_dwordx4 {vr(16+4*nt,4)}, v3, s[16:19], s{47 + nt//2} offen offset:{1024*(nt%2)} {WT}")
    def w1_in():
        k(f"""s_and_b32 s47, s52, 31
        s_mul_i32 s47, s47, {32*7168}
        s_lshr_b32 s48, s52, 5
        s_lshl_b32 s48, s48, 7
        s_add_u32 s47, s47, s48
        s_add_u32 s46, s53, {SCR}""")
        pack_issue(k, 32, 7168, 7, 47, 46, 48)
    def w1_out():
        k("v_add_u32 v10, s53, v5")
        pack_read(k, "split", 10, 16)
        k(f"""s_and_b32 s47, s52, 31
        s_mul_i32 s47, s47, {14*1024}
        s_lshr_b32 s48, s52, 5
        s_lshl_b32 s48, s48, 2
        s_waitcnt lgkmcnt(0)""")
        for nt in range(4):
            k(f"""s_add_u32 s49, s48, {nt}
            s_mul_i32 s50, s49, 4682
            s_lshr_b32 s50, s50, 16
            s_mul_i32 s51, s50, 14
            s_sub_u32 s49, s49, s51
            s_cmp_ge_u32 s49, 6
            s_addc_u32 s51, s49, 0
            s_cmp_eq_u32 s49, 12
            s_cselect_b32 s51, 6, s51
            s_min_u32 s51, s51, 13
            s_mul_i32 s50, s50, {32*14*1024}
            s_lshl_b32 s51, s51, 10
            s_add_u32 s50, s50, s51
            s_add_u32 s50, s50, s47
            buffer_store_dwordx4 {vr(16+4*nt,4)}, v3, s[12:15], s50 offen {WT}""")
    kv(1, range(4))
    k(f"""s_lshl_b32 s47, s54, 7
    s_add_u32 s47, s47, 4096
    s_lshl_b32 s48, s55, 3
    s_add_u32 s48, s48, s43
    s_lshl_b32 s49, s48, 6
    s_add_u32 s49, s49, {WS_SC}
    s_mul_i32 s48, s48, {32*12288}
    s_add_u32 s47, s47, s48
    s_lshl_b32 s46, s43, 12
    v_add_u32 v10, s46, v5
    s_add_u32 s46, s46, {SCR}""")
    pack_issue(k, 4, 12288, 11, 47, 46, 48)
    k(f"s_add_u32 s47, s47, {4*32*12288}\ns_add_u32 s46, s46, 16384")
    pack_issue(k, 4, 12288, 11, 47, 46, 48)
    for i in range(2):
        k(f"buffer_load_dwordx2 {vr(48+4*i,2)}, v15, s[28:31], s49 offen offset:{256*i} sc1")
        k(f"buffer_load_dwordx2 {vr(50+4*i,2)}, v15, s[28:31], s49 offen offset:{256*i+32} sc1")
    for j in range(4): k(f"v_mov_b32 v{84+j}, -1")
    k(f"s_lshl_b32 s47, s2, 14\ns_lshl_b32 s48, s43, 12\ns_add_u32 s47, s47, s48\ns_add_u32 s47, s47, {WS_XB}")
    for i in range(4): k(f"buffer_store_dwordx4 v[84:87], v3, s[28:31], s47 offen offset:{1024*i} {WT}")
    k(f"""s_lshl_b32 s47, s2, 11
    s_lshl_b32 s48, s43, 9
    s_add_u32 s47, s47, s48
    s_lshr_b32 s48, s47, 1
    s_add_u32 s47, s47, {WS_ST2}
    s_add_u32 s48, s48, {WS_FLG}
    v_lshlrev_b32 v9, 3, v2
    buffer_store_dwordx2 v[84:85], v9, s[28:31], s47 offen {WT}
    v_lshlrev_b32 v9, 2, v2
    v_mov_b32 v88, 0
    buffer_store_dword v88, v9, s[28:31], s48 offen {WT}
    s_waitcnt vmcnt(18)""")
    stamp(k, S0+4)
    k("s_barrier\ns_waitcnt vmcnt(0)")
    kv(2, range(4))
    pack_read(k, "split", 10, 16)
    k("v_add_u32 v10, 16384, v10")
    pack_read(k, "split", 10, 32)
    k(f"""s_lshl_b32 s47, s55, 2
    s_add_u32 s47, s47, s43
    s_lshl_b32 s47, s47, 14
    s_lshl_b32 s48, s54, 8
    s_add_u32 s47, s47, s48
    s_add_u32 s47, s47, {WS_MOD2}
    v_lshlrev_b32 v15, 1, v15
    s_waitcnt lgkmcnt(0)""")
    for c in range(2):
        for nt in range(4): k(f"v_mfma_f32_16x16x32_bf16 {vr(64+4*nt,4)}, {vr(16+16*c+4*nt,4)}, {vr(48+4*c,4)}, {'0' if c == 0 else vr(64+4*nt,4)}")
    k("s_nop 7")
    for nt in range(4): k(f"buffer_store_dwordx4 {vr(64+4*nt,4)}, v15, s[28:31], s47 offen offset:{64*nt} {WT}")
    k("s_waitcnt vmcnt(0)")
    blocks("sw2i", w2_in)
    stamp(k, S0+5)
    k("s_barrier\ns_waitcnt vmcnt(0)")
    k(f"""s_cmp_lg_u32 s43, 0
    s_cbranch_scc1 {L('nosva')}
    s_lshl_b32 s58, s2, 5
    s_add_u32 s58, s58, {WS_FF + 8192}
    v_mov_b32 v9, 0
    v_mov_b32 v10, 1
    buffer_store_dword v10, v9, s[28:31], s58 offen {WT}
    {L('nosva')}:""")
    kv(3, range(4))
    k("s_waitcnt vmcnt(0)")
    blocks("sw2o", w2_out)
    blocks("sw1i", w1_in)
    k(f"""; L2 pulls: packed wo (16KB per wave), x rows (4KB per wave)
    s_lshr_b32 s50, s2, 3
    s_lshl_b32 s50, s50, 2
    s_add_u32 s50, s50, s43
    s_lshl_b32 s51, s50, 14
    s_add_u32 s51, s51, {WS_WOP}
    s_lshl_b32 s50, s50, 12
    s_and_b32 s49, s2, 7
    s_lshl_b32 s49, s49, 19
    s_add_u32 s50, s50, s49
    v_lshlrev_b32 v9, 6, v2
    buffer_load_dword v14, v9, s[64:67], s50 offen
    buffer_load_dword v14, v8, s[28:31], s51 offen sc1
    s_add_u32 s51, s51, 8192
    buffer_load_dword v14, v8, s[28:31], s51 offen sc1""")
    stamp(k, S0+6)
    k("s_barrier\ns_waitcnt vmcnt(0)")
    blocks("sw1o", w1_out)
    B.mods()
    k("s_setprio 0")
    stamp(k, S0+7)
    def gateO():
        srd_ws(k, 24, 10, WS_FLG, 524288)
        k(f"v_lshlrev_b32 v6, 7, v2\ns_lshl_b32 s57, s40, 13\ns_add_u32 s57, s57, 262144\ns_barrier")
        k(f"""s_cmp_lg_u32 s43, 0
        s_cbranch_scc1 {L('nosv')}
        s_lshl_b32 s58, s2, 5
        s_add_u32 s58, s58, {WS_FF + 8192}
        v_mov_b32 v9, 0
        v_mov_b32 v10, 2
        buffer_store_dword v10, v9, s[28:31], s58 offen {WT}
        {L('nosv')}:""")
        stamp(k, S0+8)
        spin(k, "po", lambda: k("buffer_load_dword v7, v6, s[24:27], s57 offen sc1"), lambda: k("v_cmp_eq_u32 vcc, 0, v7"))
    back_loader(B, gateO, S0+8)
    stamps_out(k, 2, S0+19)
    k("s_endpgm")
    k(f"""{L('qcomp')}:
    s_load_dwordx2 s[6:7], s[0:1], {A_X}
    s_load_dwordx2 s[8:9], s[0:1], {A_OUT}
    s_and_b32 s43, s42, 1
    s_lshr_b32 s44, s42, 1
    s_waitcnt lgkmcnt(0)""")
    QACC = 112
    G.compute(16, QACC, 8, 9, 10, 11, st=S0+1)
    stamp(k, S0+3)
    def zero_init():
        for i in range(0, 16, 2): k(f"v_mov_b64 {vr(OA+i,2)}, 0\nv_mov_b64 {vr(OB+i,2)}, 0")
        for i in range(0, 4, 2): k(f"v_mov_b64 {vr(LA+i,2)}, 0\nv_mov_b64 {vr(LB+i,2)}, 0")
    k(f"s_mov_b32 s50, {hex(f2u(LOG2E / math.sqrt(32.0)))}")
    for i in range(0, 16, 2): k(f"v_mov_b64 {vr(SB+i,2)}, 0")
    for i in range(0, 32, 2): k(f"v_pk_mul_f32 {vr(QACC+i,2)}, {vr(QACC+i,2)}, s[50:51] op_sel_hi:[1,0]")
    for i in range(16): k(f"v_cvt_pk_bf16_f32 v{QA+i}, v{QACC+2*i}, v{QACC+2*i+1}")
    k(f"""s_barrier
    ds_read_b128 {vr(KF,4)}, v3
    ds_read_b128 {vr(KF+4,4)}, v3 offset:1024
    ds_read_b128 {vr(V0,4)}, v3 offset:2048
    ds_read_b128 {vr(V1,4)}, v3 offset:3072
    ds_read_b128 {vr(KF+ALT,4)}, v3 offset:4096
    ds_read_b128 {vr(KF+ALT+4,4)}, v3 offset:5120
    ds_read_b128 {vr(V0+ALT,4)}, v3 offset:6144""")
    for p in range(2):
        for i in range(4): k(f"v_permlane16_swap_b32 v{QA+8*p+i}, v{QA+8*p+4+i}")
    srd_ws(k, 24, 10, WS_O, SZ_ACT)
    k(f"""v_mov_b32 v{IDX}, 0xdddddddd
    v_and_b32 v12, 7, v2
    v_mov_b32 v13, 0x3f803f80
    s_waitcnt lgkmcnt(5)
    v_mfma_f32_32x32x16_bf16 {vr(SA,16)}, {vr(KF,4)}, {vr(QA,4)}, 0
    v_cmp_eq_u32 vcc, 0, v12
    v_mfma_f32_32x32x16_bf16 {vr(MB_,16)}, {vr(KF,4)}, {vr(QBr,4)}, 0
    v_mov_b32 v{VC}, v3
    v_add_u32 v{VN}, 0x8000, v3
    v_cndmask_b32 v{ONE}, 0, v13, vcc
    v_cndmask_b32 v{ONE+1}, 0, v13, vcc
    v_mfma_f32_32x32x16_bf16 {vr(SA,16)}, {vr(KF+4,4)}, {vr(QA+4,4)}, {vr(SA,16)}
    v_cmp_eq_u32 vcc, 4, v12
    v_mfma_f32_32x32x16_bf16 {vr(MB_,16)}, {vr(KF+4,4)}, {vr(QBr+4,4)}, {vr(MB_,16)}
    v_mov_b64 {vr(V1+ALT,2)}, 0
    v_mov_b64 {vr(V1+ALT+2,2)}, 0
    v_cndmask_b32 v{ONE+2}, 0, v13, vcc
    v_cndmask_b32 v{ONE+3}, 0, v13, vcc""")
    zero_init()
    def rowmax(S, dst, first):
        if first:
            k(f"v_max3_f32 v{dst}, v{S}, v{S+1}, v{S+2}")
            for i in range(3, 15, 2): k(f"v_max3_f32 v{dst}, v{dst}, v{S+i}, v{S+i+1}")
            k(f"v_max_f32 v{dst}, v{dst}, v{S+15}")
        else:
            for i in range(0, 16, 2): k(f"v_max3_f32 v{dst}, v{dst}, v{S+i}, v{S+i+1}")
    def negm():
        k(f"""v_mov_b32 v13, v12
        v_mov_b32 v15, v14
        s_nop 1
        v_permlane32_swap_b32 v12, v13
        v_permlane32_swap_b32 v14, v15
        v_max_f32 v12, v12, v13
        v_max_f32 v14, v14, v15
        v_sub_f32 v12, 0, v12
        v_sub_f32 v14, 0, v14
        v_mov_b32 v13, v12
        v_mov_b32 v15, v14""")
        for i in range(0, 16, 2): k(f"v_mov_b64 {vr(MA+i,2)}, v[12:13]")
        for i in range(0, 16, 2): k(f"v_mov_b64 {vr(MB_+i,2)}, v[14:15]")
    rowmax(SA, 12, True); rowmax(MB_, 14, True)
    if force_fallback:
        k("v_add_f32 v12, 0xc3000000, v12\nv_add_f32 v14, 0xc3000000, v14")
    negm()
    for i in range(0, 16, 2): k(f"v_pk_add_f32 {vr(SA+i,2)}, {vr(SA+i,2)}, v[12:13]")
    k("s_mov_b32 s56, 0\ns_mov_b32 s61, 0x8000\ns_waitcnt lgkmcnt(0)")
    stamp(k, S0+4)
    k(f".p2align 6\n{L('loop')}:")
    def pv(O, V, S): return f"v_smfmac_f32_32x32x32_bf16 {vr(O,16)}, {vr(V,4)}, {vr(S,8)}, v{IDX}"
    def sm(Lr, S): return f"v_smfmac_f32_16x16x64_bf16 {vr(Lr,4)}, {vr(ONE,4)}, {vr(S,8)}, v{IDX}"
    NTL = 8
    def phase(X, OX, LX, Y, OY, LY, QY, MY, isA, j):
        e = [f"v_exp_f32 v{X+i}, v{X+i}" for i in range(16)]
        me, ot = ALT*(j & 1), ALT*((j+1) & 1)
        def at(t, off): return f"v{VC} offset:{t*4096+off}" if t < NTL else f"v{VN} offset:{(t-NTL)*4096+off}"
        bar = j == NTL - 2; last = j == NTL - 1
        kq = me if isA else ot
        o = e[0:2] + [pv(OY, V1 + (ot if isA else me), Y+8)]
        if last and not isA: o.append("s_add_u32 s56, s56, 1")
        o += e[2:5] + [sm(LY, Y+8)]
        o.append(f"ds_read_b128 {vr(V1+ot,4)}, {at(j+1, 3072)}" if isA else f"ds_read_b128 {vr(KF+me+4,4)}, {at(j+2, 1024)}")
        o += e[5:6] + [f"v_mfma_f32_32x32x16_bf16 {vr(Y,16)}, {vr(KF+kq,4)}, {vr(QY,4)}, {vr(MY,16)}"]
        if isA and bar: o.append("s_bitcmp1_b32 0x2a, s56")
        o += e[6:9] + [f"v_mfma_f32_32x32x16_bf16 {vr(Y,16)}, {vr(KF+kq+4,4)}, {vr(QY+4,4)}, {vr(Y,16)}"]
        o.append("s_waitcnt lgkmcnt(2)" if isA else "s_waitcnt lgkmcnt(3)")
        o += e[9:12] + [pv(OX, V0+me, X)]
        if isA and bar: o += [f"s_cbranch_scc1 {L('bar')}", f"{L('barret')}:"]
        elif last and not isA: o.append("s_cmp_lt_u32 s56, 8")
        else: o.append("s_nop 0")
        o += e[12:15] + [sm(LX, X)]
        o.append(f"ds_read_b128 {vr(KF+me,4)}, {at(j+2, 0)}" if isA else f"ds_read_b128 {vr(V0+me,4)}, {at(j+2, 2048)}")
        if last and not isA: o += [f"v_mov_b32 v{VC}, v{VN}", f"v_add_u32 v{VN}, s61, v3"]
        if j == 0 and isA: o[3:3] = ["s_add_u32 s61, s61, 0x8000"];
        if j == 0 and not isA: o[3:3] = ["s_and_b32 s61, s61, 0x1ffff"]
        o += e[15:16]
        k("\n".join(o))
    PAD = os.environ.get("PAD", "s_nop 0")
    for j in range(NTL):
        phase(SA, OA, LA, SB, OB, LB, QBr, MB_, True, j)
        phase(SB, OB, LB, SA, OA, LA, QA, MA, False, j)
    k(f"""s_cbranch_scc1 {L('loop')}
    s_nop 0
    {pv(OB, V1+ALT, SB+8)}
    {sm(LB, SB+8)}""")
    stamp(k, S0+5)
    k(f"""s_mov_b32 s52, {hex(f2u(2.0**127))}
    s_mov_b32 s53, {hex(f2u(2.0**80))}
    v_max3_f32 v12, |v{OA}|, |v{OA+1}|, |v{OA+2}|""")
    for i in range(3, 15, 2): k(f"v_max3_f32 v12, v12, |v{OA+i}|, |v{OA+i+1}|")
    k(f"v_cmp_nlt_f32 s[48:49], v{LA}, s53\nv_cmp_nlt_f32 vcc, v{LB}, s53\ns_nop 0\nv_max3_f32 v12, v12, |v{OA+15}|, |v{OB}|")
    for i in range(1, 15, 2): k(f"v_max3_f32 v12, v12, |v{OB+i}|, |v{OB+i+1}|")
    k(f"""v_max_f32 v12, v12, |v{OB+15}|
    v_cmp_nlt_f32 s[54:55], v12, s52
    s_or_b64 s[48:49], s[48:49], vcc
    s_or_b64 s[54:55], s[54:55], s[48:49]
    s_cbranch_scc1 {L('fallback')}
    {L('norm')}:
    v_rcp_f32 v{LA}, v{LA}
    v_rcp_f32 v{LB}, v{LB}
    v_bfe_u32 v11, v2, 4, 1
    v_lshlrev_b32 v11, 10, v11
    v_lshrrev_b32 v15, 5, v2
    v_lshl_add_u32 v11, v15, 8, v11
    v_and_b32 v15, 15, v2
    v_lshl_add_u32 v11, v15, 4, v11
    s_lshl_b32 s50, s40, 18
    s_lshl_b32 s51, s41, 14
    s_add_u32 s50, s50, s51
    s_lshl_b32 s51, s42, 12
    s_add_u32 s50, s50, s51""")
    for (O, Lr, off) in ((OA, LA, 0), (OB, LB, 2048)):
        for h in range(2):
            d = SA + (off // 256) + 4*h
            for j in range(0, 8, 2): k(f"v_pk_mul_f32 {vr(O+8*h+j,2)}, {vr(O+8*h+j,2)}, {vr(Lr,2)} op_sel_hi:[1,0]")
            for j in range(4): k(f"v_cvt_pk_bf16_f32 v{d+j}, v{O+8*h+2*j}, v{O+8*h+2*j+1}")
            k(f"buffer_store_dwordx4 {vr(d,4)}, v11, s[24:27], s50 offen offset:{off+512*h} {WT}")
    srd_ws(k, 32, 10, WS_FLG, 524288)
    k(f"""s_lshr_b32 s50, s50, 5
    s_add_u32 s50, s50, 262144
    v_mov_b32 v12, 0
    v_mov_b32 v13, 1
    s_waitcnt vmcnt(0) lgkmcnt(0)
    buffer_store_dword v13, v12, s[32:35], s50 offen {WT}
    s_barrier""")
    stamp(k, S0+8)
    back_compute(B, S0+8)
    stamps_out(k, 2, S0+19)
    k(f"""s_endpgm
    {L('bar')}:
    s_waitcnt lgkmcnt(0)
    s_barrier
    s_branch {L('barret')}
    {L('fallback')}:
    v_mov_b32 v12, 0xff800000
    v_mov_b32 v14, 0xff800000
    s_mov_b32 s50, 0
    s_waitcnt lgkmcnt(0)
    {L('floop')}:
    buffer_load_dwordx4 {vr(KF,4)}, v3, s[20:23], s50 offen sc1
    buffer_load_dwordx4 {vr(KF+4,4)}, v3, s[20:23], s50 offen offset:1024 sc1
    s_waitcnt vmcnt(0)
    v_mfma_f32_32x32x16_bf16 {vr(SA,16)}, {vr(KF,4)}, {vr(QA,4)}, 0
    v_mfma_f32_32x32x16_bf16 {vr(SB,16)}, {vr(KF,4)}, {vr(QBr,4)}, 0
    v_mfma_f32_32x32x16_bf16 {vr(SA,16)}, {vr(KF+4,4)}, {vr(QA+4,4)}, {vr(SA,16)}
    v_mfma_f32_32x32x16_bf16 {vr(SB,16)}, {vr(KF+4,4)}, {vr(QBr+4,4)}, {vr(SB,16)}
    s_nop 11""")
    rowmax(SA, 12, False); rowmax(SB, 14, False)
    k(f"""s_add_u32 s50, s50, 4096
    s_cmp_lt_u32 s50, 262144
    s_cbranch_scc1 {L('floop')}""")
    negm()
    zero_init()
    k(f"""s_mov_b32 s50, 0
    {L('floop2')}:
    buffer_load_dwordx4 {vr(KF,4)}, v3, s[20:23], s50 offen sc1
    buffer_load_dwordx4 {vr(KF+4,4)}, v3, s[20:23], s50 offen offset:1024 sc1
    buffer_load_dwordx4 {vr(V0,4)}, v3, s[20:23], s50 offen offset:2048 sc1
    buffer_load_dwordx4 {vr(V1,4)}, v3, s[20:23], s50 offen offset:3072 sc1
    s_waitcnt vmcnt(0)
    v_mfma_f32_32x32x16_bf16 {vr(SA,16)}, {vr(KF,4)}, {vr(QA,4)}, {vr(MA,16)}
    v_mfma_f32_32x32x16_bf16 {vr(SB,16)}, {vr(KF,4)}, {vr(QBr,4)}, {vr(MB_,16)}
    v_mfma_f32_32x32x16_bf16 {vr(SA,16)}, {vr(KF+4,4)}, {vr(QA+4,4)}, {vr(SA,16)}
    v_mfma_f32_32x32x16_bf16 {vr(SB,16)}, {vr(KF+4,4)}, {vr(QBr+4,4)}, {vr(SB,16)}
    s_nop 11""")
    for i in range(32): k(f"v_exp_f32 v{SA+i}, v{SA+i}")
    k("s_nop 1")
    for (O, Lr, S) in ((OA, LA, SA), (OB, LB, SB)):
        k("\n".join([pv(O, V0, S), pv(O, V1, S+8), sm(Lr, S), sm(Lr, S+8)]))
    k(f"""s_add_u32 s50, s50, 4096
    s_cmp_lt_u32 s50, 262144
    s_cbranch_scc1 {L('floop2')}
    s_nop 11
    s_branch {L('norm')}""")

def k_main(force_fallback=False):
    k = Kern("main_kernel", 248)
    k("s_cmp_ge_u32 s2, 256\ns_cbranch_scc1 L_main_end")
    stamp(k, 0)
    k(f"""s_load_dwordx2 s[10:11], s[0:1], {A_WS}
    v_lshrrev_b32 v1, 6, v0
    v_and_b32 v2, 63, v0
    v_readfirstlane_b32 s42, v1
    v_lshlrev_b32 v3, 4, v2
    s_waitcnt lgkmcnt(0)""")
    main_body(k, None, force_fallback)
    k("L_main_end:\ns_endpgm")
    return k, (256, 512, 163840)
```

```python
import sys, math
from common import *

PACKEARLY = os.environ.get("PACKEARLY", "0") == "1"
def tb_map(k, dst, sub=0, shift=0):
    k(f"s_and_b32 s{dst}, s2, 7\ns_lshl_b32 s{dst}, s{dst}, 4\ns_sub_u32 s3, s2, {sub}\ns_lshr_b32 s3, s3, {3+shift}\ns_add_u32 s{dst}, s{dst}, s3")

def gemv_part(k, pfx, RW, lds, mid=None, publish=None):
    NI = RW // 8
    k(f"""v_lshrrev_b32 v4, 3, v2          ; r
    v_and_b32 v5, 7, v2              ; c8
    v_mul_u32_u24 v6, {NI*12288}, v4
    v_lshl_add_u32 v6, v5, 4, v6
    s_lshl_b32 s30, s29, 3
    s_add_u32 s30, s30, s42
    s_mul_i32 s31, s30, {RW*2}
    s_mul_i32 s30, s30, {RW*12288}
    s_lshl_b32 s21, s28, 7
    s_add_u32 s30, s30, s21
    v_lshlrev_b32 v7, 2, v2
    s_waitcnt lgkmcnt(0)""")
    srd_arg(k, 12, 4, 0, 2048)
    srd_arg(k, 16, 6, 0, 1024*12288)
    srd_ws(k, 24, 10, WS_MODP, 4*6144*4)
    k("buffer_load_dword v8, v7, s[12:15], s31 offen")
    for i in range(NI):
        k(f"s_add_u32 s22, s30, {i*12288}\nbuffer_load_dwordx4 v[{32+4*i}:{35+4*i}], v6, s[16:19], s22 offen")
    nmid = mid() if mid else 0
    stamp(k, 1)
    k(f"""s_waitcnt vmcnt({NI+nmid})
    v_and_b32 v9, 0xffff0000, v8
    v_lshlrev_b32 v8, 16, v8
    v_mul_f32 v10, {hex(f2u(-LOG2E))}, v8
    v_mul_f32 v11, {hex(f2u(-LOG2E))}, v9
    v_exp_f32 v10, v10
    v_exp_f32 v11, v11
    s_lshl_b32 s22, s42, 9
    v_add_f32 v10, 1.0, v10
    v_add_f32 v11, 1.0, v11
    v_rcp_f32 v10, v10
    v_rcp_f32 v11, v11
    s_add_u32 s22, s22, {lds}
    v_mul_f32 v8, v8, v10
    v_mul_f32 v9, v9, v11""")
    srd_ws(k, 12, 10, WS_SC, 2048)
    k(f"""v_cvt_pk_bf16_f32 v10, v8, v9
    s_cmp_eq_u32 s28, 0
    s_cselect_b32 s14, 2048, 0
    v_mov_b32 v11, 0x80000000
    v_cmp_gt_u32 vcc, {RW//2}, v2
    v_lshlrev_b32 v8, 16, v10
    v_and_b32 v9, 0xffff0000, v10
    v_cndmask_b32 v11, v11, v7, vcc
    buffer_store_dword v10, v11, s[12:15], s31 offen {WT}""")
    nmid += 1
    k(f"""v_lshl_add_u32 v10, v2, 3, s22
    ds_write_b64 v10, v[8:9]
    v_lshl_add_u32 v10, v4, {(NI*4).bit_length()-1}, s22
    s_waitcnt lgkmcnt(0)""")
    for i in range(NI//4): k(f"ds_read_b128 v[{12+4*i}:{15+4*i}], v10 offset:{16*i}")
    k("s_waitcnt lgkmcnt(0)")
    for i in range(NI):
        k(f"s_waitcnt vmcnt({NI-1-i+nmid})")
        for d in range(4):
            w = 32 + 4*i + d
            op = "v_mul_f32" if i == 0 else "v_fmac_f32"
            k(f"v_lshlrev_b32 v{28+2*(d%2)}, 16, v{w}\nv_and_b32 v{29+2*(d%2)}, 0xffff0000, v{w}")
            k(f"{op} v{20+2*d}, v{28+2*(d%2)}, v{12+i}\n{op} v{21+2*d}, v{29+2*(d%2)}, v{12+i}")
    stamp(k, 2)
    k("s_nop 1")
    for j in range(4): k(f"v_permlane32_swap_b32 v{20+j}, v{24+j}")
    for j in range(4): k(f"v_add_f32 v{20+j}, v{20+j}, v{24+j}")
    k("s_nop 1")
    for j in range(2): k(f"v_permlane16_swap_b32 v{20+j}, v{22+j}")
    for j in range(2): k(f"v_add_f32 v{20+j}, v{20+j}, v{22+j}")
    k("s_nop 1")
    for j in range(2): k(f"v_add_f32_dpp v{20+j}, v{20+j}, v{20+j} row_ror:8 row_mask:0xf bank_mask:0xf")
    k(f"""v_lshrrev_b32 v10, 4, v2
    v_lshlrev_b32 v10, 3, v10
    v_lshl_add_u32 v10, v5, 5, v10
    s_lshl_b32 s22, s42, 8
    s_add_u32 s22, s22, {lds+4096}
    v_add_u32 v10, s22, v10
    ds_write_b64 v10, v[20:21]
    s_cmp_lg_u32 s42, 0
    s_cbranch_scc1 L_{pfx}_nowait""")
    publish()
    k(f"""L_{pfx}_nowait:
    s_waitcnt lgkmcnt(0)
    s_barrier
    s_cmp_lg_u32 s42, 0
    s_cbranch_scc1 L_{pfx}_gdone
    v_add_u32 v10, {lds+4096}, v7""")
    for p in range(8): k(f"ds_read_b32 v{12+p}, v10 offset:{256*p}")
    k(f"""s_mul_i32 s21, s29, {6144*4}
    s_lshl_b32 s22, s28, 8
    s_add_u32 s21, s21, s22
    s_waitcnt lgkmcnt(0)""")
    for p in range(1, 8): k(f"v_add_f32 v12, v12, v{12+p}")
    k(f"v_min_u32 v12, -2, v12\nbuffer_store_dword v12, v7, s[24:27], s21 offen {WT}")
    k(f"L_{pfx}_gdone:")

ONE = os.environ.get("ONE", "1") == "1"
def k_front():
    k = Kern(NAME + "_kernel" if ONE else "front_kernel", 248 if ONE else 216)
    k("s_cmp_ge_u32 s2, 256\ns_cbranch_scc1 L_f_exit")
    stamp(k, 0)
    k(f"""v_lshrrev_b32 v1, 6, v0
    v_and_b32 v2, 63, v0
    v_readfirstlane_b32 s42, v1
    s_load_dwordx2 s[10:11], s[0:1], {A_WS}
    s_load_dwordx2 s[56:57], s[0:1], {A_DBG}
    s_cmp_ge_u32 s2, 128
    s_cbranch_scc1 L_f_ln
    s_load_dwordx2 s[4:5], s[0:1], {A_C}
    s_load_dwordx2 s[6:7], s[0:1], {A_WMOD}
    s_load_dwordx2 s[8:9], s[0:1], {A_WQ}
    s_load_dwordx2 s[36:37], s[0:1], {A_WO}
    s_and_b32 s28, s2, 31
    s_lshr_b32 s29, s2, 5
    v_lshlrev_b32 v3, 4, v2""")
    def wait_init(tag, srd, v):
        srd_arg(k, srd, 56, 0, 256)
        k(f"""v_and_b32 v{v}, 7, v2
        v_lshlrev_b32 v{v}, 2, v{v}
        s_mov_b32 s51, {1 << 22}
        L_f_wi{tag}:
        buffer_load_dword v{v+1}, v{v}, s[{srd}:{srd+3}], 0 offen sc1
        s_waitcnt vmcnt(0)
        v_cmp_eq_u32 vcc, 0, v{v+1}
        s_sub_u32 s51, s51, 1
        s_cbranch_scc1 L_f_wd{tag}
        s_cmp_lg_u64 vcc, 0
        s_cbranch_scc1 L_f_wi{tag}
        L_f_wd{tag}:""")
    def post():
        pack_addr(k, "nat", 2048, 2, 64, 65, 66, 47)
        k("""v_bfe_u32 v66, v2, 4, 1
        v_lshlrev_b32 v66, 9, v66
        v_sub_u32 v66, v65, v66
        s_cmp_lt_u32 s42, 4
        s_cselect_b64 vcc, -1, 0
        s_cselect_b32 s32, s8, s36
        s_cselect_b32 s33, s9, s37
        s_and_b32 s33, s33, 0xffff
        s_mov_b32 s34, 0x200000
        s_mov_b32 s35, 0x20000
        v_cndmask_b32 v65, v66, v65, vcc
        s_lshl_b32 s45, s2, 2
        s_and_b32 s46, s42, 3
        s_add_u32 s45, s45, s46
        s_lshl_b32 s46, s42, 12
        v_add_u32 v65, s46, v65
        s_lshr_b32 s47, s45, 4
        s_lshl_b32 s47, s47, 16
        s_and_b32 s48, s45, 15
        s_lshl_b32 s48, s48, 7
        s_add_u32 s47, s47, s48""")
        if PACKEARLY:
            k("s_barrier")
            pack_issue(k, 32, 2048, 64, 47, 46, 48)
            return 4
        return 0
    gemv_part(k, "f1", 32, 32768, post, lambda: wait_init("g", 12, 28))
    stamp(k, 3)
    if not PACKEARLY: pack_issue(k, 32, 2048, 64, 47, 46, 48)
    srd_ws(k, 16, 10, WS_WQP, 4*MB)
    k("s_cmp_lg_u32 s42, 7\ns_cbranch_scc1 L_f_nopull")
    code_pull(k, "L_f_end" if ONE else "main_kernel", "L_code_end", 2, 70)
    k(f"""L_f_nopull:
    s_and_b32 s47, s45, 15
    s_lshl_b32 s47, s47, 5
    s_lshr_b32 s48, s45, 4
    s_add_u32 s47, s47, s48
    s_lshl_b32 s47, s47, 12
    s_cmp_lt_u32 s42, 4
    s_waitcnt vmcnt(0)
    s_cbranch_scc0 L_f_pko""")
    pack_read(k, "nat", 65, 32)
    k(f"s_branch L_f_pkst\nL_f_pko:\ns_add_u32 s47, s47, {2*MB}")
    pack_read(k, "att", 65, 32)
    k("L_f_pkst:")
    srd_ws(k, 20, 10, WS_FLG + 262144, 131072)
    k(f"""s_lshl_b32 s48, s2, 10
    s_lshl_b32 s49, s42, 7
    s_add_u32 s48, s48, s49
    v_and_b32 v4, 31, v2
    v_lshlrev_b32 v4, 2, v4
    v_mov_b32 v5, 0
    buffer_store_dword v5, v4, s[20:23], s48 offen {WT}
    s_waitcnt lgkmcnt(0)""")
    for nt in range(4): k(f"buffer_store_dwordx4 {vr(32+4*nt,4)}, v3, s[16:19], s47 offen offset:{1024*nt} {WT}")
    if ONE: k("s_branch L_f_end")
    else:
        stamps_out(k, 0, 4)
        k("s_endpgm")
    XP, XF, SCL, SHF, T, WF, ACC = 8, 24, 56, 88, 120, 144, 120
    MODL = 131072; STATL = MODL + 8192
    k(f"""L_f_ln:
    s_load_dwordx2 s[4:5], s[0:1], {A_X}
    s_load_dwordx2 s[6:7], s[0:1], {A_WK}
    s_load_dwordx2 s[8:9], s[0:1], {A_WV}""")
    tb_map(k, 40, 128)
    k(f"""v_and_b32 v3, 15, v2             ; t
    v_lshrrev_b32 v4, 4, v2          ; g
    v_lshlrev_b32 v5, 11, v3
    v_lshl_add_u32 v5, v4, 4, v5
    s_lshl_b32 s43, s40, 15
    s_lshl_b32 s44, s42, 8
    s_add_u32 s43, s43, s44
    v_lshrrev_b32 v7, 2, v2
    v_and_b32 v136, 3, v2
    v_lshrrev_b32 v137, 5, v2
    v_lshlrev_b32 v137, 1, v137
    v_xor_b32 v136, v136, v137
    v_lshlrev_b32 v7, 6, v7
    v_lshl_add_u32 v7, v136, 4, v7
    s_lshl_b32 s46, s42, 13
    s_lshl_b32 s47, s42, 14
    s_add_u32 s48, s46, 4096
    s_waitcnt lgkmcnt(0)""")
    srd_arg(k, 12, 4, 0, 4*MB)
    srd_arg(k, 16, 6, 0, 65536)
    srd_arg(k, 20, 8, 0, 65536)
    srd_ws(k, 24, 10, WS_MODP, 4*6144*4)
    srd_arg(k, 36, 56, 0, 256)
    k(f"""v_lshlrev_b32 v6, 4, v0
    s_cmp_ge_u32 s2, 136
    s_cbranch_scc1 L_f_noinit
    s_cmp_eq_u32 s42, 0
    s_cbranch_scc1 L_f_init
    s_barrier
    s_branch L_f_noinit
    L_f_init:
    s_and_b32 s55, s2, 7
    s_lshl_b32 s45, s55, 10""")
    for j in range(4): k(f"v_mov_b32 v{XF+j}, -1")
    for p in range(4): k(f"buffer_store_dwordx4 {vr(XF,4)}, v6, s[24:27], s45 offen {WT}\ns_add_u32 s45, s45, {6144*4}")
    srd_ws(k, 28, 10, WS_FF, 16384)
    for j in range(4): k(f"v_mov_b32 v{XF+8+j}, 0")
    k(f"""s_lshl_b32 s45, s55, 11
    buffer_store_dwordx4 {vr(XF+8,4)}, v6, s[28:31], s45 offen {WT}
    buffer_store_dwordx4 {vr(XF+8,4)}, v6, s[28:31], s45 offen offset:1024 {WT}
    s_lshl_b32 s55, s55, 2
    v_mov_b32 v{XF+4}, s55
    s_waitcnt vmcnt(0)
    buffer_store_dword v{XF}, v{XF+4}, s[36:39], 0 offen {WT}
    s_barrier
    L_f_noinit:""")
    stamp(k, 1)
    k(f"""
    s_and_b32 s45, s40, 15
    s_lshl_b32 s45, s45, 12
    s_cmp_lt_u32 s42, 2
    s_cselect_b32 s45, s45, 0x40000000
    v_lshlrev_b32 v141, 6, v2
    s_cmp_eq_u32 s42, 0
    s_cbranch_scc1 L_f_pk
    buffer_load_dword v142, v141, s[20:23], s45 offen
    s_branch L_f_pd
    L_f_pk:
    buffer_load_dword v142, v141, s[16:19], s45 offen
    L_f_pd:""")
    for i in range(4):
        k(f"buffer_load_dwordx4 v[{XP+4*i}:{XP+4*i+3}], v5, s[12:15], s43 offen offset:{64*i}")
    k("s_waitcnt vmcnt(0)")
    def wdma(mat, h):
        srd = 16 + 4*mat
        k(f"s_add_u32 m0, s47, {mat*8192 + h*4096}\ns_nop 0")
        for i in range(4):
            k(f"buffer_load_dwordx4 v7, s[{srd}:{srd+3}], s{46 if h == 0 else 48} offen offset:{1024*i} lds")
    srd_ws(k, 28, 10, WS_H1, SZ_ACT)
    srd_ws(k, 32, 10, WS_KV, 262144)
    stamp(k, 2)
    wdma(0, 0)
    s_, t1, a, b = T, T+1, T+2, T+3
    for i in range(16):
        k(f"v_lshlrev_b32 v{XF+2*i}, 16, v{XP+i}\nv_and_b32 v{XF+2*i+1}, 0xffff0000, v{XP+i}")
    k(f"v_pk_add_f32 v[{s_}:{s_+1}], v[{XF}:{XF+1}], v[{XF+2}:{XF+3}]")
    for i in range(4, 32, 2): k(f"v_pk_add_f32 v[{s_}:{s_+1}], v[{s_}:{s_+1}], v[{XF+i}:{XF+i+1}]")
    k(f"v_add_f32 v{s_}, v{s_}, v{t1}")
    xlane_sum(k, s_, t1)
    k(f"""v_lshlrev_b32 v{a}, 5, v3
    v_add_u32 v{a}, {STATL}, v{a}
    v_lshl_add_u32 v{b}, v1, 2, v{a}
    ds_write_b32 v{b}, v{s_}""")
    wdma(1, 0)
    k(f"""s_waitcnt lgkmcnt(0)
    s_barrier
    ds_read_b128 v[{T+4}:{T+7}], v{a}
    ds_read_b128 v[{T+8}:{T+11}], v{a} offset:16""")
    wdma(0, 1)
    k("s_waitcnt lgkmcnt(0)")
    for i in range(5, 12): k(f"v_add_f32 v{T+4}, v{T+4}, v{T+i}")
    mean = T + 12
    k(f"v_mul_f32 v{mean}, {hex(f2u(-1/1024))}, v{T+4}")
    for i in range(0, 32, 2):
        k(f"v_pk_add_f32 v[{SCL+i}:{SCL+i+1}], v[{XF+i}:{XF+i+1}], v[{mean}:{mean+1}] op_sel_hi:[1,0]")
    k(f"v_pk_mul_f32 v[{s_}:{s_+1}], v[{SCL}:{SCL+1}], v[{SCL}:{SCL+1}]")
    for i in range(2, 32, 2): k(f"v_pk_fma_f32 v[{s_}:{s_+1}], v[{SCL+i}:{SCL+i+1}], v[{SCL+i}:{SCL+i+1}], v[{s_}:{s_+1}]")
    k(f"v_add_f32 v{s_}, v{s_}, v{t1}")
    xlane_sum(k, s_, t1)
    k(f"ds_write_b32 v{b}, v{s_} offset:512")
    wdma(1, 1)
    k("s_cmp_lg_u32 s42, 0\ns_cbranch_scc1 L_f_wdl")
    wait_init("l", 36, 141)
    k(f"""s_waitcnt lgkmcnt(0)
    s_barrier
    ds_read_b128 v[{T+4}:{T+7}], v{a} offset:512
    ds_read_b128 v[{T+8}:{T+11}], v{a} offset:528
    s_lshr_b32 s49, s40, 3
    s_lshl_b32 s49, s49, 18
    s_and_b32 s50, s40, 7
    s_lshl_b32 s50, s50, 10
    s_add_u32 s49, s49, s50
    s_lshl_b32 s50, s42, 15
    s_add_u32 s49, s49, s50
    v_lshlrev_b32 v136, 4, v2
    v_lshrrev_b32 v137, 2, v3
    v_lshl_add_u32 v137, v4, 3, v137
    v_lshlrev_b32 v137, 6, v137
    v_and_b32 v138, 3, v2
    v_lshl_add_u32 v137, v138, 3, v137
    v_and_b32 v138, 1, v4
    v_lshlrev_b32 v138, 5, v138
    v_add_u32 v137, s47, v137
    v_add_u32 v139, v137, v138
    v_xor_b32 v138, 32, v138
    v_add_u32 v140, v137, v138
    s_waitcnt lgkmcnt(0)""")
    for i in range(5, 12): k(f"v_add_f32 v{T+4}, v{T+4}, v{T+i}")
    k(f"v_mul_f32 v{T+5}, {hex(f2u(1/1024))}, v{T+4}")
    ln_finish(k, T+5, mean, T+4)
    for i in range(0, 32, 2):
        k(f"v_pk_fma_f32 v[{XF+i}:{XF+i+1}], v[{XF+i}:{XF+i+1}], v[{T+4}:{T+5}], v[{T+4}:{T+5}] op_sel:[0,1,0] op_sel_hi:[1,1,0]")
    k("s_waitcnt vmcnt(0)")
    for i in range(4):
        for mat in range(2):
            for nt in range(2):
                bb = WF + 16*i + 8*mat + 4*nt
                off = mat*8192 + i*2048
                k(f"ds_read_b64_tr_b16 v[{bb}:{bb+1}], v{139+nt} offset:{off}")
                k(f"ds_read_b64_tr_b16 v[{bb+2}:{bb+3}], v{139+nt} offset:{off+256}")
    stamp(k, 3)
    k(f"s_mov_b32 s51, {1 << 22}\nL_f_poll:")
    for p in range(4):
        k(f"s_mov_b32 s45, {p*6144*4}\nbuffer_load_dwordx4 {vr(SCL+4*p,4)}, v6, s[24:27], s45 offen sc1")
    k(f"s_waitcnt vmcnt(0)\nv_max3_u32 v141, v{SCL}, v{SCL+1}, v{SCL+2}")
    for i in range(3, 15, 2): k(f"v_max3_u32 v141, v141, v{SCL+i}, v{SCL+i+1}")
    k(f"""v_max_u32 v141, v141, v{SCL+15}
    v_cmp_eq_u32 vcc, -1, v141
    s_sub_u32 s51, s51, 1
    s_cbranch_scc1 L_f_ready
    s_cmp_lg_u64 vcc, 0
    s_cbranch_scc1 L_f_poll
    L_f_ready:""")
    stamp(k, 4)
    k(f"""s_cmp_ge_u32 s42, 4
    s_cselect_b32 s45, 1.0, 0
    v_add_u32 v6, {MODL}, v6""")
    for h in range(2): k(f"v_pk_add_f32 {vr(SCL+2*h,2)}, {vr(SCL+2*h,2)}, {vr(SCL+4+2*h,2)}\nv_pk_add_f32 {vr(SCL+8+2*h,2)}, {vr(SCL+8+2*h,2)}, {vr(SCL+12+2*h,2)}")
    for h in range(2): k(f"v_pk_add_f32 {vr(SCL+2*h,2)}, {vr(SCL+2*h,2)}, {vr(SCL+8+2*h,2)}")
    for j in range(4): round_bf16(k, SCL+j)
    for j in range(4): k(f"v_add_f32 v{SCL+j}, s45, v{SCL+j}")
    for j in range(4): round_bf16(k, SCL+j)
    k(f"""ds_write_b128 v6, {vr(SCL,4)}
    s_lshl_b32 s45, s42, 9
    s_add_u32 s45, s45, {MODL}
    v_lshl_add_u32 v6, v4, 5, s45
    s_waitcnt lgkmcnt(0)
    s_barrier""")
    for i in range(4):
        for h in range(2):
            k(f"ds_read_b128 {vr(SHF+8*i+4*h,4)}, v6 offset:{128*i+16*h}")
            k(f"ds_read_b128 {vr(SCL+8*i+4*h,4)}, v6 offset:{4096+128*i+16*h}")
    for i in range(4):
        k(f"s_waitcnt lgkmcnt({12-4*i})")
        for j in range(0, 8, 2): k(f"v_pk_fma_f32 {vr(XF+8*i+j,2)}, {vr(XF+8*i+j,2)}, {vr(SCL+8*i+j,2)}, {vr(SHF+8*i+j,2)}")
        for j in range(4): k(f"v_cvt_pk_bf16_f32 v{XP+4*i+j}, v{XF+8*i+2*j}, v{XF+8*i+2*j+1}")
        k("s_nop 1")
        for mat in range(2):
            for nt in range(2):
                bb = WF + 16*i + 8*mat + 4*nt
                c = ACC + 8*mat + 4*nt
                cin = "0" if i == 0 else vr(c, 4)
                if mat == 0: k(f"v_mfma_f32_16x16x32_bf16 {vr(c,4)}, {vr(bb,4)}, {vr(XP+4*i,4)}, {cin}")
                else:        k(f"v_mfma_f32_16x16x32_bf16 {vr(c,4)}, {vr(XP+4*i,4)}, {vr(bb,4)}, {cin}")
    k("v_add_u32 v137, s47, v136")
    for i in range(4):
        k(f"s_add_u32 s50, s49, {8192*i}\nbuffer_store_dwordx4 v[{XP+4*i}:{XP+4*i+3}], v136, s[28:31], s50 offen {H1ST}")
    for j in range(4): k(f"ds_write_b128 v137, {vr(ACC+4*j,4)} offset:{1024*j}")
    k(f"""s_waitcnt lgkmcnt(0)
    s_barrier
    s_cmp_ge_u32 s42, 2
    s_cbranch_scc1 L_f_end""")
    stamp(k, 5)
    k(f"""s_lshl_b32 s51, s42, 11
    v_add_u32 v137, s51, v136
    v_add_u32 v138, 0x10000, v137""")
    for p in range(8):
        aa = 137 if p < 4 else 138
        for nt in range(2):
            k(f"ds_read_b128 {vr(24+8*p+4*nt,4)}, v{aa} offset:{(p%4)*16384+1024*nt}")
    k(f"""s_lshr_b32 s52, s40, 1
    s_lshl_b32 s52, s52, 12
    s_and_b32 s53, s40, 1
    v_and_b32 v137, 1, v4
    v_lshrrev_b32 v138, 1, v4
    v_lshlrev_b32 v138, 9, v138
    v_lshl_add_u32 v138, v3, 4, v138""")
    for p in range(1, 8):
        k(f"s_waitcnt lgkmcnt({2*(7-p)})")
        for j in range(0, 8, 2): k(f"v_pk_add_f32 {vr(24+j,2)}, {vr(24+j,2)}, {vr(24+8*p+j,2)}")
    for j in range(4): k(f"v_cvt_pk_bf16_f32 v{120+j}, v{24+2*j}, v{25+2*j}")
    k(f"""s_cmp_eq_u32 s42, 1
    s_cbranch_scc1 L_f_v
    s_lshl_b32 s53, s53, 8
    s_add_u32 s52, s52, s53
    v_lshl_add_u32 v137, v137, 10, v138
    buffer_store_dwordx4 v[120:123], v137, s[32:35], s52 offen {WT}""")
    stamp(k, 6)
    if not ONE: stamps_out(k, 1, 7)
    k(f"""s_branch L_f_end
    L_f_v:
    s_lshl_b32 s53, s53, 10
    s_add_u32 s52, s52, s53
    v_lshl_add_u32 v137, v137, 3, v138
    buffer_store_dwordx2 v[120:121], v137, s[32:35], s52 offen offset:2048 {WT}
    buffer_store_dwordx2 v[122:123], v137, s[32:35], s52 offen offset:2304 {WT}
    L_f_end:""")
    if not ONE:
        k("L_f_exit:\ns_endpgm")
        return k, (256, 512, 131072 + 8192 + 1024)
    srd_ws(k, 24, 10, WS_FF, 16384)
    k(f"""v_lshlrev_b32 v3, 4, v2
    v_lshlrev_b32 v5, 5, v2
    v_mov_b32 v6, 0
    v_mov_b32 v7, 1
    s_lshl_b32 s58, s2, 5
    s_waitcnt vmcnt(0) lgkmcnt(0)
    s_barrier
    s_cmp_lg_u32 s42, 4
    s_cbranch_scc1 L_f_nopub
    buffer_store_dword v7, v6, s[24:27], s58 offen {WT}
    L_f_nopub:""")
    stamp(k, 7)
    def gateQ():
        def ld():
            for i in range(4): k(f"s_mov_b32 s58, {2048*i}\nbuffer_load_dword v{28+i}, v5, s[24:27], s58 offen sc1")
        spin(k, "pff", ld, lambda: k("v_min3_u32 v28, v28, v29, v30\nv_min_u32 v28, v28, v31\nv_cmp_eq_u32 vcc, 0, v28"), sleep=2)
    main_body(k, gateQ, os.environ.get("FORCEFB") == "1", S0=7)
    k("L_f_exit:\ns_endpgm")
    return k, (256, 512, 163840)

H1ST = os.environ.get("H1ST", WT)
H2ST = os.environ.get("H2ST", WT)

from gen_main import k_main, main_body
from gen_back import spin

def build(path):
    ks = [k_front()] + ([] if ONE else [k_main(os.environ.get("FORCEFB") == "1")])
    nd = int(os.environ.get("DUMMY", "0"))
    if nd:
        d = Kern("dummy_kernel", 8); d("s_endpgm")
        ks_extra = [(d, (256, 64, 0))] * nd
    else: ks_extra = []
    hdr = ["; adaLN + MQA attention + SiLU MLP block, gfx950. Generated by gen/gen.py (hand-written generator)."]
    for k, (g, b, lds) in ks + ks_extra:
        hdr.append(f"; @launch kernel={k.name} grid=({g},1,1) block=({b},1,1) lds={lds}")
    ks = ks + ks_extra[:1]
    out = "\n".join(hdr) + '\n.amdgcn_target "amdgcn-amd-amdhsa--gfx950"\n.text\n'
    bad = 0
    for k, _ in ks:
        errs, stats = check(k)
        print(f"{k.name}: maxv={stats[0]} maxs={stats[1]} ninstr={stats[3]}", file=sys.stderr)
        for e in errs: print("HAZARD", e, file=sys.stderr); bad += 1
        out += k.text()
    out += 'L_code_end:\n.section .rodata,"a"\n'
    for k, _ in ks: out += k.desc()
    open(path, "w").write(out)
    return bad

if __name__ == "__main__":
    p = sys.argv[1] if len(sys.argv) > 1 else f"cdna_kernels/{NAME}.s"
    sys.exit(1 if build(p) else 0)
```

```python
from asmlib import Kern, vr, sr, check
NAME = "adaLN_cond__grouped_kv_mqa__dense_activation_silu__prompt"
A_X, A_WQ, A_WK, A_WV, A_WO, B_X, B_W1, B_W2, A_C, A_WMOD, A_OUT, A_DBG, A_WS = [8*i for i in range(13)]
MB = 1 << 20
WS_MOD = 0
WS_MODP = 65536
WS_SC = 196608
WS_MOD2 = 262144
WS_ST2 = 524288
WS_H1 = 1*MB
WS_KV = 5*MB
WS_O = 6*MB
WS_X1 = 10*MB
WS_H2 = 14*MB
WS_U = 18*MB
WS_WQP = 32*MB
WS_WOP = 34*MB
WS_W1P = 36*MB
WS_W2P = 43*MB
SZ_ACT = 4*MB
SZ_U = 2048*3584*2
LOG2E = 1.4426950408889634
def f2u(x):
    import struct
    return struct.unpack("<I", struct.pack("<f", x))[0]

def srd_arg(k, d, tmp, argoff, size):
    k(f"s_mov_b32 s{d}, s{tmp}\ns_and_b32 s{d+1}, s{tmp+1}, 0xffff\ns_mov_b32 s{d+2}, {size}\ns_mov_b32 s{d+3}, 0x20000")
def srd_ws(k, d, ws, off, size):
    k(f"s_add_u32 s{d}, s{ws}, {off}\ns_addc_u32 s{d+1}, s{ws+1}, 0\ns_and_b32 s{d+1}, s{d+1}, 0xffff\ns_mov_b32 s{d+2}, {size}\ns_mov_b32 s{d+3}, 0x20000")

def xlane_sum(k, v, t, op="v_add_f32"):
    k(f"v_mov_b32 v{t}, v{v}\ns_nop 1\nv_permlane16_swap_b32 v{v}, v{t}\n{op} v{v}, v{v}, v{t}")
    k(f"v_mov_b32 v{t}, v{v}\ns_nop 1\nv_permlane32_swap_b32 v{v}, v{t}\n{op} v{v}, v{v}, v{t}")

def round_bf16(k, v):
    k(f"v_cvt_pk_bf16_f32 v{v}, v{v}, v{v}\nv_and_b32 v{v}, 0xffff0000, v{v}")


import os
TIMING = os.environ.get("TIMING", "0") != "0"
TINS = "s_memtime" if os.environ.get("TIMING") == "2" else "s_memrealtime"
WS_FLG = 5*MB + 524288
WS_FF = 5*MB + 262144
WS_XB = 50*MB
WS_TIME = 60*MB
TSV = 255
def stamp(k, i):
    if TIMING:
        if i == 0: k(f"v_mov_b32 v{TSV}, 0")
        k(f"{TINS} s[70:71]\ns_waitcnt lgkmcnt(0)\nv_writelane_b32 v{TSV}, s70, {i}")
def stamps_out(k, kidx, n, wsreg=10, vtmp=0):
    if not TIMING: return
    k("s_waitcnt vmcnt(0)")
    stamp(k, n)
    k(f"""s_add_u32 s72, s{wsreg}, {WS_TIME + kidx*262144}
    s_addc_u32 s73, s{wsreg+1}, 0
    s_lshl_b32 s74, s2, 10
    s_lshl_b32 s75, s42, 7
    s_add_u32 s74, s74, s75
    v_and_b32 v0, 31, v2
    v_lshl_add_u32 v0, v0, 2, s74
    s_mov_b32 exec_hi, 0
    global_store_dword v0, v{TSV}, s[72:73]
    s_waitcnt vmcnt(0)""")

PRE_AT = int(os.environ.get("PRE_AT", "4"))
WT = os.environ.get("WT", "sc0 sc1")
ORD = {"nat": (16, 8, 4), "split": (8, 4, 16), "att": (16, 4, 8)}

def pack_addr(k, order, pitch, vl, vsrc, vtr, vt, stmp):
    a, b, sel = ORD[order]
    k(f"""v_lshrrev_b32 v{vsrc}, 3, v{vl}
    s_mov_b32 s{stmp}, {pitch}
    v_mul_lo_u32 v{vsrc}, v{vsrc}, s{stmp}
    v_and_b32 v{vt}, 7, v{vl}
    v_lshl_add_u32 v{vsrc}, v{vt}, 4, v{vsrc}
    v_bfe_u32 v{vtr}, v{vl}, 2, 2
    v_bfe_u32 v{vt}, v{vl}, 4, 1
    v_lshl_add_u32 v{vtr}, v{vt}, {b.bit_length()-1}, v{vtr}
    v_lshrrev_b32 v{vt}, 5, v{vl}
    v_lshl_add_u32 v{vtr}, v{vt}, {a.bit_length()-1}, v{vtr}
    v_lshlrev_b32 v{vtr}, 7, v{vtr}
    v_and_b32 v{vt}, 3, v{vl}
    v_lshl_add_u32 v{vtr}, v{vt}, 3, v{vtr}""")

def pack_issue(k, srd, pitch, vsrc, s_src, s_lds, stmp):
    for i in range(4):
        k(f"s_add_u32 m0, s{s_lds}, {1024*i}\ns_add_u32 s{stmp}, s{s_src}, {8*i*pitch}")
        k(f"buffer_load_dwordx4 v{vsrc}, s[{srd}:{srd+3}], s{stmp} offen lds")

def pack_read(k, order, vaddr, F):
    sel = ORD[order][2]
    for nt in range(4):
        k(f"ds_read_b64_tr_b16 {vr(F+4*nt,2)}, v{vaddr} offset:{32*nt}")
        k(f"ds_read_b64_tr_b16 {vr(F+4*nt+2,2)}, v{vaddr} offset:{32*nt+128*sel}")

def wg_map(k, mode, rb, ct, tmp=39):
    lr = {"R2": 1, "R4": 2, "R8": 3, "R16": 4}[mode]
    if os.environ.get("SCRAMBLE") == "1":
        k("s_lshr_b32 s3, s2, 3\ns_and_b32 s3, s3, 7\ns_xor_b32 s2, s2, s3\ns_lshr_b32 s3, s2, 6\ns_xor_b32 s2, s2, s3")
    k(f"""s_and_b32 s{rb}, s2, 7
    s_lshr_b32 s3, s2, 3
    s_and_b32 s{ct}, s{rb}, {(1 << (lr-1)) - 1}
    s_lshl_b32 s{ct}, s{ct}, {5-lr}
    s_lshr_b32 s{rb}, s{rb}, {lr-1}
    s_lshl_b32 s{rb}, s{rb}, {lr}
    s_and_b32 s{tmp}, s3, {(1 << lr) - 1}
    s_or_b32 s{rb}, s{rb}, s{tmp}
    s_lshr_b32 s{tmp}, s3, {lr}
    s_or_b32 s{ct}, s{ct}, s{tmp}""")

def interleave(mf, other, start=0, step=1):
    slots = [[] for _ in mf]
    for i, o in enumerate(other):
        slots[min(start + int(i*step), len(mf)-1)].append(o)
    out = []
    for m, s in zip(mf, slots):
        out.append(m); out += s
    return out

class Gemm:
    def __init__(self, k, name, KB, KS, NS, BN, base=0, split=1, skh=None, aflag='', bflag=''):
        self.aflag = aflag; self.bflag = bflag
        self.k, self.name, self.KB, self.KS, self.NS, self.BN, self.base = k, name, KB, KS, NS, BN, base
        self.split, self.skh = split, skh
        self.S = KB // KS
        self.ASZ = KS * 8192
        self.BSZ = KS * BN * 64
        self.STG = self.ASZ + self.BSZ
        self.LDS = self.STG * NS
        self.NT = BN // 32; self.MT = 4
        self.bper = self.BSZ // 4
        self.nb = (self.bper + 1023) // 1024
        self.d = 2*KS + self.nb
    def L(self, s): return f"L_{self.name}_{s}"
    def slot_adv(self):
        return [f"s_add_u32 s53, s53, {self.STG}", f"s_cmp_eq_u32 s53, {self.base+self.LDS}", f"s_cselect_b32 s53, {self.base}, s53"]
    def issueA(self, adv=True):
        k = self.k
        k("s_add_u32 m0, s53, s46\ns_nop 0")
        for i in range(2*self.KS):
            k(f"buffer_load_dwordx4 v3, s[12:15], s45 offen offset:{1024*i} {self.aflag} lds")
        k(f"s_add_u32 s45, s45, {self.ASZ}")
        if adv: k("\n".join(self.slot_adv()))
    def issueB(self, slot):
        k = self.k
        k(f"s_add_u32 m0, s49, {slot}\ns_nop 0")
        for i in range(self.nb):
            half = (i+1)*1024 > self.bper
            if half: k("s_mov_b32 exec_hi, 0")
            k(f"buffer_load_dwordx4 v3, s[16:19], s47 offen offset:{1024*i} {self.bflag} lds")
            if half: k("s_mov_b32 exec_hi, -1")
        k(f"s_add_u32 s47, s47, {self.BSZ}")
    def issue(self):
        k = self.k
        k("s_add_u32 m0, s53, s46\ns_add_u32 s54, s53, s49")
        for i in range(2*self.KS):
            k(f"buffer_load_dwordx4 v3, s[12:15], s45 offen offset:{1024*i} {self.aflag} lds")
        k(f"s_mov_b32 m0, s54\ns_add_u32 s45, s45, {self.ASZ}")
        for i in range(self.nb):
            half = (i+1)*1024 > self.bper
            if half: k("s_mov_b32 exec_hi, 0")
            k(f"buffer_load_dwordx4 v3, s[16:19], s47 offen offset:{1024*i} {self.bflag} lds")
            if half: k("s_mov_b32 exec_hi, -1")
        k(f"s_add_u32 s47, s47, {self.BSZ}")
        k("\n".join(self.slot_adv()))
    def loader(self, tail_hooks=None, gate=None, npre=0, st=1, spec=0, gate_ld=None, gate_chk=None):
        k, S, NS, d = self.k, self.S, self.NS, self.d
        tail_hooks = tail_hooks or {}
        k(f"""s_sub_u32 s43, s42, 4
        s_mul_i32 s45, s40, {self.split*self.KB*8192}
        s_mul_i32 s46, s43, {2*self.KS*1024}
        s_add_u32 s45, s45, s46
        s_mul_i32 s47, s41, {self.split*self.KB*self.BN*64}
        s_mul_i32 s49, s43, {self.bper}
        s_add_u32 s47, s47, s49
        s_add_u32 s49, s49, {self.ASZ}
        s_mov_b32 s53, {self.base}""")
        if self.split > 1:
            k(f"s_mul_i32 s48, s{self.skh}, {self.KB*8192}\ns_add_u32 s45, s45, s48\ns_mul_i32 s48, s{self.skh}, {self.KB*self.BN*64}\ns_add_u32 s47, s47, s48")
        assert npre < NS
        for i in range(npre): self.issueB(self.base + i*self.STG)
        if gate: gate()
        ops = []; issued = 0
        def iss(n):
            nonlocal issued
            for _ in range(n):
                if issued < npre: self.issueA(); ops.extend([issued] * (2*self.KS))
                else: self.issue(); ops.extend([issued] * d)
                issued += 1
        def after(s):
            last = max(i for i, o in enumerate(ops) if o == s)
            return len(ops) - 1 - last
        NA = 2*self.KS
        def validate(j):
            k(f"s_mov_b32 s66, {1 << 22}\n{self.L('val%d' % j)}:")
            off = j*self.STG
            k(f"v_add_u32 v61, {self.base + off}, v60")
            for i in range(NA): k(f"ds_read_b128 {vr(64+4*i,4)}, v61 offset:{1024*i}")
            k("s_waitcnt lgkmcnt(0)\nv_max3_u32 v62, v64, v65, v66")
            for i in range(3, 4*NA-1, 2): k(f"v_max3_u32 v62, v62, v{64+i}, v{65+i}")
            k(f"""v_max_u32 v62, v62, v{64+4*NA-1}
            v_cmp_eq_u32 vcc, -1, v62
            s_sub_u32 s66, s66, 1
            s_cbranch_scc1 {self.L('ok%d' % j)}
            s_cmp_eq_u64 vcc, 0
            s_cbranch_scc1 {self.L('ok%d' % j)}""")
            top = min(spec, issued)
            for q in range(j, top):
                k(f"s_add_u32 m0, s46, {self.base + q*self.STG}\ns_add_u32 s63, s62, {q*self.ASZ}")
                for i in range(NA): k(f"buffer_load_dwordx4 v3, s[12:15], s63 offen offset:{1024*i} {self.aflag} lds")
            k(f"s_waitcnt vmcnt({(top-1-j)*NA})\ns_mov_b32 s55, 1\ns_branch {self.L('val%d' % j)}\n{self.L('ok%d' % j)}:")
        def ready(j):
            k(f"s_waitcnt vmcnt({after(j)})")
            if j < spec:
                if j > 0: k(f"s_cmp_eq_u32 s55, 0\ns_cbranch_scc1 {self.L('nr%d' % j)}\ns_waitcnt vmcnt(0)\ns_mov_b32 s55, 0\n{self.L('nr%d' % j)}:")
                validate(j)
        if spec:
            assert 3 <= spec <= NS
            k("s_mov_b32 s62, s45\ns_mov_b32 s55, 0\nv_add_u32 v60, s46, v3")
            iss(SPF)
            stamp(k, st)
            ready(0)
            stamp(k, st+1)
            k("s_barrier")
            if SPF > 1: ready(1)
            iss(min(2, spec - issued))
            if SPF == 1: ready(1)
            k("s_barrier")
            iss(spec - issued)
            gate_ld(); ops.append(-1)
            ready(2)
            k("s_barrier")
            gate_chk()
            k("s_mov_b32 s55, 0")
            s = 2
            iss(min(3, s + NS - issued))
        else:
            iss(2 if npre < 2 else min(npre, 3))
            stamp(k, st)
            k(f"s_waitcnt vmcnt({after(0)})")
            stamp(k, st+1)
            k("s_barrier")
            iss(min(2, NS-issued))
            s = 0
        while issued < s + NS or after(s+1) != (NS-2)*d or s + 1 < spec:
            ready(s+1)
            k("s_barrier")
            iss(min(2, s + NS + 1 - issued))
            s += 1
        assert issued == s + NS
        k(f"s_mov_b32 s56, {S-NS-s}\n{self.L('lloop')}:")
        k(f"s_waitcnt vmcnt({(NS-2)*d})\ns_barrier")
        self.issue()
        k(f"s_sub_u32 s56, s56, 1\ns_cmp_lg_u32 s56, 0\ns_cbranch_scc1 {self.L('lloop')}")
        extra = 0
        for i, s in enumerate(range(S-NS, S)):
            k(f"s_waitcnt vmcnt({max(0, S-2-s)*d + extra})\ns_barrier")
            if i in tail_hooks:
                fn, n = tail_hooks[i]; fn(); extra += n
    def compute(self, X, ACC, va, vb, vca, vcb, pre=None, pre_at=None, hooks=None, st=1, before=None, after=None):
        k, KS, MT, NT = self.k, self.KS, self.MT, self.NT
        NF = KS * (MT + NT); Y = X + 4*NF
        k(f"""s_lshl_b32 s45, s43, 12
        v_add_u32 v{va}, s45, v3
        s_mul_i32 s46, s44, {NT*1024}
        s_add_u32 s46, s46, {self.ASZ}
        v_add_u32 v{vb}, s46, v3
        s_mov_b32 s53, {self.base}""")
        for i in range(4*MT*NT): k(f"v_mov_b32 v{ACC+i}, 0")
        upd = [f"v_add_u32 v{vca}, s53, v{va}", f"v_add_u32 v{vcb}, s53, v{vb}"] + self.slot_adv()
        def reads(F):
            r = []
            for ks in range(KS):
                f = F + 4*ks*(MT+NT)
                a = [f"ds_read_b128 {vr(f+4*m,4)}, v{vca} offset:{ks*8192+1024*m}" for m in range(MT)]
                b = [f"ds_read_b128 {vr(f+4*MT+4*n,4)}, v{vcb} offset:{ks*self.BN*64+1024*n}" for n in range(NT)]
                r += [b[0]] + a + b[1:]
            return r
        def mfmas(F):
            r = []
            if os.environ.get("KINNER", "1") == "1":
                seq = [(ks, (m if n % 2 == 0 else MT-1-m), n) for n in range(NT) for m in range(MT) for ks in range(KS)]
            else:
                seq = [(ks, m, n) for ks in range(KS) for n in range(NT) for m in range(MT)]
            for ks, m, n in seq:
                f = F + 4*ks*(MT+NT)
                a = ACC + 4*(m*NT + n)
                r.append(f"v_mfma_f32_16x16x32_bf16 {vr(a,4)}, {vr(f+4*MT+4*n,4)}, {vr(f+4*m,4)}, {vr(a,4)}")
            return r
        k("\n".join(upd))
        if before: before()
        stamp(k, st)
        k("s_barrier")
        stamp(k, st+1)
        if after: after()
        k("\n".join(reads(X) + upd))
        k(f"s_mov_b32 s56, {self.S//2}\ns_waitcnt lgkmcnt(0)")
        k(f".p2align 6\n{self.L('cloop')}:")
        for (cu, nx) in ((X, Y), (Y, X)):
            k("s_barrier")
            mf = mfmas(cu); oth = reads(nx) + upd
            k("\n".join(interleave(mf, oth, 0, min(1.0, (len(mf)-1)/len(oth)))))
            k("s_waitcnt lgkmcnt(0)")
        hooks = dict(hooks or {})
        if pre: hooks[pre_at or PRE_AT] = pre
        if hooks:
            mask = sum(1 << h for h in hooks)
            k(f"s_bitcmp1_b32 {hex(mask)}, s56\ns_cbranch_scc1 {self.L('hook')}\n{self.L('hookret')}:")
        k(f"s_sub_u32 s56, s56, 1\ns_cmp_lg_u32 s56, 0\ns_cbranch_scc1 {self.L('cloop')}")
        if hooks:
            k(f"s_branch {self.L('cdone')}\n{self.L('hook')}:")
            hs = sorted(hooks)
            for h in hs:
                if h != hs[-1]: k(f"s_cmp_lg_u32 s56, {h}\ns_cbranch_scc1 {self.L('hk%d' % h)}")
                hooks[h]()
                k(f"s_branch {self.L('hookret')}")
                if h != hs[-1]: k(f"{self.L('hk%d' % h)}:")
            k(f"{self.L('cdone')}:")
        return X + 8*NF

CODEPF = os.environ.get("CODEPF", "1") == "1"
def code_pull(k, first, last, vl, vt, sp=68):
    if not CODEPF: return 0
    lab = k.label("pc")
    n = CODE_LINES.get((first, last), 2)
    k(f"""s_getpc_b64 s[{sp}:{sp+1}]
    {lab}:
    s_add_u32 s{sp}, s{sp}, {first}-{lab}
    s_addc_u32 s{sp+1}, s{sp+1}, 0
    v_lshlrev_b32 v{vt}, 7, v{vl}""")
    for i in range(n):
        k(f"v_min_u32 v{vt+1}, {last}-{first}-4, v{vt}\nglobal_load_dword v{vt+2}, v{vt+1}, s[{sp}:{sp+1}]")
        if i + 1 < n: k(f"v_add_u32 v{vt}, 8192, v{vt}")
    return n
CODE_LINES = {("L_f_end", "L_code_end"): 4, ("main_kernel", "L_code_end"): 4, ("back_kernel", "L_code_end"): 2, ("attn_kernel", "back_kernel"): 2, ("front2_kernel", "oproj_kernel"): 3, ("attn_kernel", "oproj_kernel"): 2, ("oproj_kernel", "w1_kernel"): 1, ("w1_kernel", "w2_kernel"): 1, ("w2_kernel", "L_code_end"): 1}

def ln_finish(k, var, nmean, off):
    round_bf16(k, var)
    k(f"v_add_f32 v{var}, {hex(f2u(1e-5))}, v{var}")
    round_bf16(k, var)
    k(f"v_sqrt_f32 v{var}, v{var}\ns_nop 0")
    round_bf16(k, var)
    k(f"v_rcp_f32 v{var}, v{var}")
    round_bf16(k, nmean)
    k(f"v_mul_f32 v{off}, v{nmean}, v{var}")


SPLITK = os.environ.get("SPLITK", "1") == "1"

SPEC = os.environ.get("SPEC", "1") == "1"
SPO, SP1, SP2 = (5, 6, 4) if SPEC else (0, 0, 0)
SPF = int(os.environ.get("SPF", "2"))
```

```python
from common import *

SPIN_MAX = 1 << 22
MAP_W1 = os.environ.get("MAP_w1", "R8")
W2KS = int(os.environ.get('W2KS', '2'))
PULL2 = int(os.environ.get('PULL2', '2'))
NPRE0 = int(os.environ.get("NPRE0", "2"))
NPRE1 = int(os.environ.get("NPRE1", "4"))
NPRE2 = int(os.environ.get("NPRE2", "3"))

class Back:
    def __init__(self, k):
        self.k = k
        self.GO = Gemm(k, "bo", 32, 2, 6, 64, aflag="sc1", bflag="sc1")
        self.G1 = Gemm(k, "b1", 32, 1, 7, 224, aflag="sc1", bflag="sc1")
        self.G2 = Gemm(k, "b2", 56, W2KS, 4 if W2KS == 2 else 9, 128, split=2, skh=61, aflag="sc1", bflag="sc1")
        self.MODL = 159744; self.STL = self.MODL + 1024; self.MODL2 = self.STL + 1024
    def map2(self):
        self.k("""s_and_b32 s61, s2, 1             ; K half
        s_bfe_u32 s40, s2, 0x20001
        s_lshl_b32 s40, s40, 2
        s_bfe_u32 s3, s2, 0x20003
        s_add_u32 s40, s40, s3
        s_lshr_b32 s41, s2, 5""")
    def sv_ld(self):
        for i in range(4): self.k(f"s_mov_b32 s58, {8192 + 2048*i}\nbuffer_load_dword v{28+i}, v51, s[24:27], s58 offen sc1")
    def sv_cmp(self, n): self.k(f"v_min3_u32 v28, v28, v29, v30\nv_min_u32 v28, v28, v31\nv_cmp_gt_u32 vcc, {n}, v28")
    def mods(self):
        k = self.k
        srd_ws(k, 24, 10, WS_FF, 16384)
        k("v_lshlrev_b32 v51, 5, v2")
        spin(k, "psva", self.sv_ld, lambda: self.sv_cmp(1), sleep=16)
        srd_ws(k, 24, 10, WS_MOD2, 16*16384)
        k(f"""s_lshl_b32 s57, s43, 12
        s_lshl_b32 s58, s41, 8
        s_add_u32 s57, s57, s58
        s_and_b32 s59, s43, 1
        s_lshl_b32 s59, s59, 8
        s_lshr_b32 s58, s2, 5
        s_lshl_b32 s58, s58, 9
        s_add_u32 s59, s59, s58
        s_add_u32 s59, s59, {3072*4}
        v_and_b32 v50, 0xf0, v3
        v_lshrrev_b32 v52, 4, v2
        v_lshl_add_u32 v53, v52, 14, v50""")
        for p in range(4):
            k(f"buffer_load_dwordx4 {vr(16+4*p,4)}, v53, s[24:27], s57 offen sc1\ns_add_u32 s57, s57, 65536")
            k(f"buffer_load_dwordx4 {vr(32+4*p,4)}, v53, s[24:27], s59 offen sc1\ns_add_u32 s59, s59, 65536")
        k(f"""s_cmp_eq_u32 s43, 2
        s_cselect_b32 s58, 1.0, 0
        s_lshl_b32 s57, s43, 8
        s_add_u32 s57, s57, {self.MODL}
        v_lshl_add_u32 v50, v52, 2, v50
        v_add_u32 v50, s57, v50
        s_waitcnt vmcnt(0)""")
        for a in (16, 32):
            for p in range(1, 4):
                for h in (0, 2): k(f"v_pk_add_f32 {vr(a+h,2)}, {vr(a+h,2)}, {vr(a+4*p+h,2)}")
        k("s_nop 0")
        for a in (16, 32): k(f"v_permlane16_swap_b32 v{a}, v{a+1}\nv_permlane16_swap_b32 v{a+2}, v{a+3}")
        for a in (16, 32): k(f"v_add_f32 v{a}, v{a}, v{a+1}\nv_add_f32 v{a+2}, v{a+2}, v{a+3}")
        k("s_nop 1")
        for a in (16, 32): k(f"v_permlane32_swap_b32 v{a}, v{a+2}")
        for a in (16, 32):
            k(f"v_add_f32 v{a}, v{a}, v{a+2}")
            round_bf16(k, a)
        k("v_add_f32 v16, s58, v16")
        round_bf16(k, 16)
        k("ds_write_b32 v50, v16\nds_write_b32 v50, v32 offset:2048\ns_waitcnt lgkmcnt(0)")

def spin(k, tag, load, cmp_, sleep=0):
    k(f"s_mov_b32 s66, {SPIN_MAX}")
    if sleep: k(f"s_branch L_{tag}f\nL_{tag}:\ns_sleep {sleep}\nL_{tag}f:")
    else: k(f"L_{tag}:")
    load()
    k("s_waitcnt vmcnt(0)")
    cmp_()
    k(f"""s_sub_u32 s66, s66, 1
    s_cbranch_scc1 L_{tag}d
    s_cmp_lg_u64 vcc, 0
    s_cbranch_scc1 L_{tag}
    L_{tag}d:""")

def flag_gate(k, tag):
    ld = lambda: k("buffer_load_dword v7, v6, s[24:27], s57 offen sc1")
    cm = lambda: k("v_cmp_eq_u32 vcc, 0, v7")
    def chk():
        k("s_waitcnt vmcnt(0)"); cm()
        k(f"s_nop 0\ns_cmp_eq_u64 vcc, 0\ns_cbranch_scc1 L_{tag}d")
        spin(k, tag, ld, cm)
    return (lambda: spin(k, tag, ld, cm)), ld, chk

def back_loader(B, gateO, S0):
    k, GO, G1, G2, MODL, STL, map2 = B.k, B.GO, B.G1, B.G2, B.MODL, B.STL, B.map2
    srd_ws(k, 12, 10, WS_O, SZ_ACT)
    srd_ws(k, 16, 10, WS_WOP, 2*MB)
    def sv0():
        srd_ws(k, 24, 10, WS_FF, 16384)
        k("v_lshlrev_b32 v51, 5, v2")
        B.sv_ld()
    g, gl, gc = flag_gate(k, "po")
    GO.loader({1: (sv0, 4)}, gate=lambda: (gateO(), None if SPEC else g()), npre=NPRE0, st=S0+1, spec=SPO, gate_ld=gl, gate_chk=gc)
    k("s_waitcnt vmcnt(0)")
    B.sv_cmp(2)
    k("s_nop 0\ns_cmp_eq_u64 vcc, 0\ns_cbranch_scc1 L_psvd")
    spin(k, "psv", B.sv_ld, lambda: B.sv_cmp(2))
    stamp(k, S0+3)
    srd_ws(k, 24, 10, WS_ST2, 2048*256)
    k(f"""s_lshl_b32 s57, s40, 15
    s_lshl_b32 s58, s43, 8
    s_add_u32 s57, s57, s58
    v_and_b32 v4, 15, v2
    v_lshrrev_b32 v5, 4, v2
    v_lshlrev_b32 v6, 10, v5
    v_lshl_add_u32 v6, v4, 4, v6""")
    wg_map(k, MAP_W1, 40, 41)
    srd_ws(k, 12, 10, WS_H2, SZ_ACT)
    srd_ws(k, 16, 10, WS_W1P, 7*MB)
    def gate1():
        def ld():
            for i in range(8): k(f"s_add_u32 s58, s57, {4096*i}\nbuffer_load_dwordx4 {vr(8+4*i,4)}, v6, s[24:27], s58 offen sc1")
        def cm():
            k("v_max3_u32 v7, v8, v9, v10")
            for i in range(11, 39, 2): k(f"v_max3_u32 v7, v7, v{i}, v{i+1}")
            k("v_max_u32 v7, v7, v39\nv_cmp_eq_u32 vcc, -1, v7")
        k("s_barrier")
        spin(k, "pst", ld, cm)
        for i in range(1, 8):
            k(f"v_pk_add_f32 v[8:9], v[8:9], {vr(8+4*i,2)}\nv_pk_add_f32 v[10:11], v[10:11], {vr(10+4*i,2)}")
        k(f"""s_lshl_b32 s58, s43, 8
        s_add_u32 s58, s58, {STL}
        v_permlane16_swap_b32 v8, v10
        v_permlane16_swap_b32 v9, v11
        v_pk_add_f32 v[8:9], v[8:9], v[10:11]
        v_and_b32 v5, 1, v5
        v_lshlrev_b32 v5, 3, v5
        v_mov_b64 v[10:11], v[8:9]
        v_lshl_add_u32 v5, v4, 4, v5
        v_add_u32 v5, s58, v5
        v_permlane32_swap_b32 v8, v10
        v_permlane32_swap_b32 v9, v11
        v_pk_add_f32 v[8:9], v[8:9], v[10:11]
        v_mul_f32 v10, {hex(f2u(-1/1024))}, v8
        v_mul_f32 v9, {hex(f2u(1/1024))}, v9
        v_fma_f32 v9, -v10, v10, v9
        v_max_f32 v9, 0, v9""")
        ln_finish(k, 9, 10, 8)
        k("ds_write_b64 v5, v[8:9]\ns_waitcnt lgkmcnt(0)\ns_barrier")
        srd_ws(k, 24, 10, WS_FLG, 524288)
        k("v_lshlrev_b32 v6, 7, v2\ns_lshl_b32 s57, s40, 13\ns_barrier")
        stamp(k, S0+4)
        if not SPEC: g1()
    g1, gl1, gc1 = flag_gate(k, "ph2")
    def pull2():
        srd_ws(k, 28, 10, WS_W2P, 7*MB)
        k(f"""s_lshr_b32 s58, s2, 5
        s_lshl_b32 s58, s58, 1
        s_and_b32 s59, s2, 1
        s_add_u32 s58, s58, s59
        s_mul_i32 s58, s58, {56*8192}
        s_bfe_u32 s59, s2, 0x20003
        s_lshl_b32 s59, s59, 2
        s_add_u32 s59, s59, s43
        s_lshl_b32 s59, s59, 13
        s_add_u32 s58, s58, s59""")
        for i in range(PULL2): k(f"buffer_load_dword v7, v6, s[28:31], s58 offen sc1\ns_add_u32 s58, s58, {16*8192}")
    G1.loader({0: (pull2, PULL2)} if PULL2 else None, gate=gate1, npre=NPRE1, st=S0+5, spec=SP1, gate_ld=gl1, gate_chk=gc1)
    stamp(k, S0+7)
    map2()
    srd_ws(k, 12, 10, WS_U, SZ_U)
    srd_ws(k, 16, 10, WS_W2P, 7*MB)
    k(f"""v_and_b32 v6, 0xf80, v6
    s_lshl_b32 s57, s40, 13
    s_lshl_b32 s58, s61, 12
    s_add_u32 s57, s57, s58
    s_add_u32 s57, s57, 131072""")
    g2, gl2, gc2 = flag_gate(k, "pu1")
    G2.loader(gate=lambda: (k("s_barrier"), None if SPEC else g2()), npre=NPRE2, st=S0+8, spec=SP2, gate_ld=gl2, gate_chk=gc2)
    stamp(k, S0+10)

def back_compute(B, S0):
    k, GO, G1, G2, MODL, STL, map2 = B.k, B.GO, B.G1, B.G2, B.MODL, B.STL, B.map2
    k(f"""s_and_b32 s43, s42, 1            ; th
    s_lshr_b32 s44, s42, 1           ; nh
    v_and_b32 v4, 15, v2             ; t
    v_lshrrev_b32 v5, 4, v2          ; g""")
    X = 12; ACC = X + 96; EPI = ACC + 32
    srd_ws(k, 20, 10, WS_X1, 2*SZ_ACT)
    srd_arg(k, 28, 6, 0, 4*MB)
    srd_ws(k, 32, 10, WS_FLG, 524288)
    k(f"""s_lshl_b32 s59, s40, 18
    s_lshl_b32 s58, s41, 14
    s_add_u32 s59, s59, s58
    s_lshl_b32 s58, s42, 12
    s_add_u32 s59, s59, s58
    s_lshl_b32 s60, s40, 18
    s_lshl_b32 s58, s43, 17
    s_add_u32 s60, s60, s58
    s_lshl_b32 s58, s41, 7
    s_add_u32 s60, s60, s58
    s_lshl_b32 s58, s44, 6
    s_add_u32 s60, s60, s58
    s_lshl_b32 s58, s44, 7
    s_add_u32 s58, s58, {MODL}
    v_lshl_add_u32 v6, v5, 4, s58
    v_lshlrev_b32 v7, 11, v4
    v_lshl_add_u32 v7, v5, 3, v7
    v_mov_b32 v230, 0""")
    def pre():
        for m in range(4):
            k(f"s_add_u32 s58, s60, {m*32768}")
            k(f"buffer_load_dwordx2 {vr(EPI+8+4*m,2)}, v7, s[28:31], s58 offen")
            k(f"buffer_load_dwordx2 {vr(EPI+10+4*m,2)}, v7, s[28:31], s58 offen offset:32")
    GO.compute(X, ACC, 8, 9, 10, 11, pre, st=S0+1)
    stamp(k, S0+3)
    k(f"ds_read_b128 {vr(EPI,4)}, v6\nds_read_b128 {vr(EPI+4,4)}, v6 offset:64")
    for j in range(2):
        k(f"ds_read_b128 {vr(EPI+24+4*j,4)}, v6 offset:{256+64*j}\nds_read_b128 {vr(EPI+32+4*j,4)}, v6 offset:{512+64*j}")
    T = X
    k("s_waitcnt vmcnt(0)")
    for m in range(4):
        for j in range(4):
            t = T + 8*m + 2*j
            k(f"v_lshlrev_b32 v{t}, 16, v{EPI+8+4*m+j}\nv_and_b32 v{t+1}, 0xffff0000, v{EPI+8+4*m+j}")
    k("s_waitcnt lgkmcnt(0)")
    for m in range(4):
        for j in range(4):
            t = T + 8*m + 2*j
            k(f"v_pk_fma_f32 {vr(t,2)}, {vr(ACC+8*m+2*j,2)}, {vr(EPI+2*j,2)}, {vr(t,2)}")
    S1, S2 = T + 32, T + 40
    for m in range(4):
        t = T + 8*m
        k(f"v_pk_add_f32 {vr(S1+2*m,2)}, {vr(t,2)}, {vr(t+2,2)}\nv_pk_mul_f32 {vr(S2+2*m,2)}, {vr(t,2)}, {vr(t,2)}")
    for m in range(4):
        t = T + 8*m
        k(f"v_pk_add_f32 {vr(S1+2*m,2)}, {vr(S1+2*m,2)}, {vr(t+4,2)}\nv_pk_fma_f32 {vr(S2+2*m,2)}, {vr(t+2,2)}, {vr(t+2,2)}, {vr(S2+2*m,2)}")
    for m in range(4):
        t = T + 8*m
        k(f"v_pk_add_f32 {vr(S1+2*m,2)}, {vr(S1+2*m,2)}, {vr(t+6,2)}\nv_pk_fma_f32 {vr(S2+2*m,2)}, {vr(t+4,2)}, {vr(t+4,2)}, {vr(S2+2*m,2)}")
    for m in range(4):
        t = T + 8*m
        k(f"v_pk_fma_f32 {vr(S2+2*m,2)}, {vr(t+6,2)}, {vr(t+6,2)}, {vr(S2+2*m,2)}")
    for m in range(4):
        k(f"v_add_f32 v{S1+2*m}, v{S1+2*m}, v{S1+2*m+1}\nv_add_f32 v{S1+2*m+1}, v{S2+2*m}, v{S2+2*m+1}")
    srd_ws(k, 24, 10, WS_ST2, 2048*256)
    for j in range(2): k(f"v_permlane16_swap_b32 v{S1+j}, v{S1+2+j}\nv_permlane16_swap_b32 v{S1+4+j}, v{S1+6+j}")
    k(f"v_pk_add_f32 {vr(S1,2)}, {vr(S1,2)}, {vr(S1+2,2)}\nv_pk_add_f32 {vr(S1+4,2)}, {vr(S1+4,2)}, {vr(S1+6,2)}")
    k(f"""s_lshl_b32 s57, s40, 15
    s_lshl_b32 s58, s41, 11
    s_add_u32 s57, s57, s58
    s_lshl_b32 s58, s42, 9
    s_add_u32 s57, s57, s58
    v_lshlrev_b32 v7, 3, v2""")
    for j in range(2): k(f"v_permlane32_swap_b32 v{S1+j}, v{S1+4+j}")
    k(f"""v_pk_add_f32 {vr(S1,2)}, {vr(S1,2)}, {vr(S1+4,2)}
    v_min_u32 v{S1}, -2, v{S1}
    v_min_u32 v{S1+1}, -2, v{S1+1}
    buffer_store_dwordx2 {vr(S1,2)}, v7, s[24:27], s57 offen {WT}
    s_barrier""")
    for m in range(4):
        for j in range(4): k(f"v_cvt_pk_bf16_f32 v{EPI+8+4*m+j}, v{T+8*m+2*j}, v{T+8*m+2*j+1}")
        k(f"buffer_store_dwordx4 {vr(EPI+8+4*m,4)}, v3, s[20:23], s59 offen offset:{1024*m} {WT}")
    k(f"""s_lshl_b32 s58, s43, 9
    s_add_u32 s58, s58, {STL}
    v_lshl_add_u32 v7, v4, 3, s58
    s_add_u32 s59, s59, {SZ_ACT}
    s_lshr_b32 s57, s57, 2
    v_mov_b32 v231, 1
    s_barrier""")
    for m in range(4): k(f"ds_read_b64 {vr(S1+2*m,2)}, v7 offset:{128*m}")
    for m in range(4):
        k(f"s_waitcnt lgkmcnt({3-m})")
        for j in range(4):
            t = T + 8*m + 2*j
            k(f"v_pk_fma_f32 {vr(t,2)}, {vr(t,2)}, {vr(S1+2*m,2)}, {vr(S1+2*m,2)} op_sel:[0,1,0] op_sel_hi:[1,1,0]")
        for j in range(4):
            t = T + 8*m + 2*j
            k(f"v_pk_fma_f32 {vr(t,2)}, {vr(t,2)}, {vr(EPI+32+2*j,2)}, {vr(EPI+24+2*j,2)}")
        for j in range(4): k(f"v_cvt_pk_bf16_f32 v{ACC+4*m+j}, v{T+8*m+2*j}, v{T+8*m+2*j+1}")
        for j in range(4): k(f"v_min_u32 v{ACC+4*m+j}, -2, v{ACC+4*m+j}")
        k(f"buffer_store_dwordx4 {vr(ACC+4*m,4)}, v3, s[20:23], s59 offen offset:{1024*m} {WT}")
    stamp(k, S0+4)
    if SPEC: k("s_barrier")
    k(f"s_waitcnt vmcnt(0)\nbuffer_store_dword v231, v230, s[32:35], s57 offen {WT}")
    if not SPEC: k("s_barrier")
    wg_map(k, MAP_W1, 40, 41)
    srd_ws(k, 20, 10, WS_U, SZ_U)
    ACC = X + 88; NT = 7
    G1.compute(X, ACC, 8, 9, 10, 11, st=S0+5)
    stamp(k, S0+7)
    k(f"""s_lshr_b32 s50, s41, 3           ; half
    s_and_b32 s51, s41, 7            ; c
    s_lshl_b32 s67, s40, 1
    s_add_u32 s67, s67, s50
    s_mul_i32 s48, s67, {56*8192}
    s_lshl_b32 s47, s43, 12
    s_add_u32 s48, s48, s47
    s_lshl_b32 s47, s51, 13
    s_add_u32 s50, s48, s47
    s_add_u32 s48, s50, s47
    s_add_u32 s50, s50, {16*8192}
    s_lshl_b32 s47, s44, 9
    s_add_u32 s50, s50, s47
    v_and_b32 v7, 1, v5
    v_lshlrev_b32 v7, 10, v7
    v_lshrrev_b32 v6, 1, v5
    v_lshl_add_u32 v7, v6, 8, v7
    v_lshl_add_u32 v7, v4, 4, v7
    s_lshl_b32 s47, s44, 13
    s_add_u32 s48, s48, s47          ; group 0
    s_lshl_b32 s67, s67, 12
    s_lshl_b32 s47, s51, 9
    s_add_u32 s67, s67, s47
    s_lshl_b32 s47, s42, 7
    s_add_u32 s67, s67, s47
    s_add_u32 s67, s67, 131072
    s_mov_b32 s52, {hex(f2u(-LOG2E))}""")
    def silu(a, n, dst):
        for i in range(0, n, 2): k(f"v_pk_mul_f32 {vr(T+i,2)}, {vr(a+i,2)}, s[52:53] op_sel_hi:[1,0]")
        for i in range(n): k(f"v_exp_f32 v{T+i}, v{T+i}")
        for i in range(0, n, 2): k(f"v_pk_add_f32 {vr(T+i,2)}, {vr(T+i,2)}, 1.0 op_sel_hi:[1,0]")
        for i in range(n): k(f"v_rcp_f32 v{T+i}, v{T+i}")
        for i in range(0, n, 2): k(f"v_pk_mul_f32 {vr(T+i,2)}, {vr(T+i,2)}, {vr(a+i,2)}")
        for i in range(0, n, 2): k(f"v_cvt_pk_bf16_f32 v{dst+i//2}, v{T+i}, v{T+i+1}")
    P = T + 8; H2R = 232
    for m in range(4):
        silu(ACC + 4*(m*NT), 8, P + 4*m)
        for j in range(4): k(f"v_min_u32 v{P+4*m+j}, -2, v{P+4*m+j}")
        k(f"buffer_store_dwordx4 {vr(P+4*m,4)}, v3, s[20:23], s48 offen offset:{1024*m} {WT}")
    for m in range(0, 4, 2):
        silu(ACC + 4*(m*NT + 6), 4, P + 16 + 2*m)
        silu(ACC + 4*((m+1)*NT + 6), 4, P + 18 + 2*m)
        q = P + 16 + 2*m
        k(f"s_nop 1\nv_permlane16_swap_b32 v{q}, v{q+2}\nv_permlane16_swap_b32 v{q+1}, v{q+3}")
        k(f"buffer_store_dwordx4 {vr(q,4)}, v7, s[20:23], s50 offen offset:{1024*m} {WT}")
    if SPEC: k("s_barrier")
    for m in range(4): silu(ACC + 4*(m*NT + 2), 8, P + 24 + 4*m)
    if not SPEC: k(f"s_waitcnt vmcnt(0)\nbuffer_store_dword v231, v230, s[32:35], s67 offen {WT}\ns_barrier")
    for m in range(4): silu(ACC + 4*(m*NT + 4), 8, H2R + 4*m)
    if SPEC: k(f"s_waitcnt vmcnt(0)\nbuffer_store_dword v231, v230, s[32:35], s67 offen {WT}")
    k(f"s_add_u32 s68, s48, {24*8192}\ns_add_u32 s69, s48, {40*8192}")
    srd_ws(k, 36, 10, WS_U, SZ_U)
    map2()
    ACC = X + 128; EPI = ACC + 64
    srd_ws(k, 20, 10, WS_X1, SZ_ACT)
    srd_ws(k, 24, 10, WS_XB, 4*MB)
    srd_arg(k, 28, 8, 0, 4*MB)
    k(f"""s_lshl_b32 s62, s41, 2
    s_lshl_b32 s58, s44, 1
    s_add_u32 s62, s62, s58
    s_add_u32 s62, s62, s61
    s_lshl_b32 s59, s40, 18
    s_lshl_b32 s58, s62, 13
    s_add_u32 s59, s59, s58
    s_lshl_b32 s58, s43, 12
    s_add_u32 s59, s59, s58          ; X1 granule
    s_lshl_b32 s60, s40, 18
    s_lshl_b32 s58, s43, 17
    s_add_u32 s60, s60, s58
    s_lshl_b32 s58, s62, 6
    s_add_u32 s60, s60, s58
    s_and_b32 s58, s62, 3
    s_lshl_b32 s58, s58, 7
    s_add_u32 s58, s58, {B.MODL2}
    v_lshl_add_u32 v6, v5, 4, s58
    s_lshl_b32 s63, s2, 14
    s_lshl_b32 s58, s42, 12
    s_add_u32 s63, s63, s58
    s_xor_b32 s64, s63, 0x4000
    s_lshl_b32 s65, s40, 13
    s_lshl_b32 s58, s61, 12
    s_add_u32 s65, s65, s58
    s_add_u32 s65, s65, 131072
    v_and_b32 v228, 31, v2
    v_lshlrev_b32 v228, 7, v228""")
    def st1():
        for m in range(4): k(f"buffer_store_dwordx4 {vr(P+24+4*m,4)}, v3, s[36:39], s68 offen offset:{1024*m} {WT}")
    def pub(n): k(f"v_mov_b32 v231, {n}\ns_waitcnt vmcnt(0)\nbuffer_store_dword v231, v230, s[32:35], s67 offen {WT}")
    def h13():
        pub(2)
        for m in range(4): k(f"buffer_store_dwordx4 {vr(H2R+4*m,4)}, v3, s[36:39], s69 offen offset:{1024*m} {WT}")
    def pl(): k("buffer_load_dword v229, v228, s[32:35], s65 offen sc1")
    def chk(n, tag, p):
        def f():
            if p: pub(p)
            else: k("s_waitcnt vmcnt(0)")
            k(f"v_cmp_gt_u32 vcc, {n}, v229\ns_nop 0\ns_cmp_eq_u64 vcc, 0\ns_cbranch_scc1 L_{tag}d")
            spin(k, tag, pl, lambda: k(f"v_cmp_gt_u32 vcc, {n}, v229"))
        return f
    def pre2():
        for m in range(4): k(f"buffer_load_dwordx4 {vr(EPI+8+4*m,4)}, v3, s[20:23], s59 offen offset:{1024*m} sc1")
    G2.compute(X, ACC, 8, 9, 10, 11, hooks=({13: h13, 12: pl, 11: chk(2, "pu2", 3), 8: pl, 7: chk(3, "pu3", 0), 3: pre2} if W2KS == 2 else
        {26: h13, 24: pl, 22: chk(2, "pu2", 3), 16: pl, 14: chk(3, "pu3", 0), 5: pre2}), st=S0+8, after=st1)
    stamp(k, S0+10)
    k(f"ds_read_b128 {vr(EPI,4)}, v6\nds_read_b128 {vr(EPI+4,4)}, v6 offset:64\ns_waitcnt vmcnt(0)\ns_nop 2")
    T = X; R = X + 32; SND = X + 64; RB = X + 80
    for m in range(4):
        for j in range(4): k(f"v_cvt_pk_bf16_f32 v{SND+4*m+j}, v{ACC+16*m+8+2*j}, v{ACC+16*m+9+2*j}")
        for j in range(4): k(f"v_min_u32 v{SND+4*m+j}, -2, v{SND+4*m+j}")
        k(f"buffer_store_dwordx4 {vr(SND+4*m,4)}, v3, s[24:27], s64 offen offset:{1024*m} {WT}")
    for m in range(4):
        for j in range(4):
            t = T + 8*m + 2*j
            k(f"v_lshlrev_b32 v{t}, 16, v{EPI+8+4*m+j}\nv_and_b32 v{t+1}, 0xffff0000, v{EPI+8+4*m+j}")
    def ldx():
        for j in range(4): k(f"buffer_load_dwordx4 {vr(RB+4*j,4)}, v3, s[24:27], s63 offen offset:{1024*j} sc1")
    def cmx():
        k(f"v_max3_u32 v7, v{RB}, v{RB+1}, v{RB+2}")
        for i in range(3, 15, 2): k(f"v_max3_u32 v7, v7, v{RB+i}, v{RB+i+1}")
        k(f"v_max_u32 v7, v7, v{RB+15}\nv_cmp_eq_u32 vcc, -1, v7")
    spin(k, "px", ldx, cmx)
    k(f"""v_and_b32 v7, 1, v5
    v_lshlrev_b32 v7, 5, v7
    v_lshrrev_b32 v8, 1, v5
    v_lshl_add_u32 v7, v8, 4, v7
    v_lshl_add_u32 v7, v4, 11, v7
    s_waitcnt lgkmcnt(0)""")
    for m in range(4):
        xr = EPI + 8 + 4*m
        for j in range(4): k(f"v_lshlrev_b32 v{R+8*m+2*j}, 16, v{RB+4*m+j}\nv_and_b32 v{R+8*m+2*j+1}, 0xffff0000, v{RB+4*m+j}")
        for j in range(4): k(f"v_pk_add_f32 {vr(R+8*m+2*j,2)}, {vr(R+8*m+2*j,2)}, {vr(ACC+16*m+2*j,2)}")
        for j in range(4): k(f"v_pk_fma_f32 {vr(T+8*m+2*j,2)}, {vr(R+8*m+2*j,2)}, {vr(EPI+2*j,2)}, {vr(T+8*m+2*j,2)}")
        for j in range(4): k(f"v_cvt_pk_bf16_f32 v{xr+j}, v{T+8*m+2*j}, v{T+8*m+2*j+1}")
        k(f"s_add_u32 s58, s60, {m*32768}\ns_nop 0")
        k(f"v_permlane16_swap_b32 v{xr}, v{xr+2}\nv_permlane16_swap_b32 v{xr+1}, v{xr+3}")
        k(f"buffer_store_dwordx4 {vr(xr,4)}, v7, s[28:31], s58 offen {WT}")
```

```python
from common import *
from gen_back import Back, back_loader, back_compute, spin
import math

def main_body(k, gateQ=None, force_fallback=False, S0=0, kvgate=None):
    L = lambda s: f"L_attn_{s}"
    QB = 65536; SCR = 128*1024
    SA, SB, OA, OB, MA, MB_ = 16, 32, 48, 64, 80, 96
    KF, V0, V1, LA, LB, ONE, IDX, VC, VN, QA, QBr = 112, 120, 124, 128, 132, 136, 140, 141, 142, 144, 152
    ALT = 48
    B = Back(k)
    wg_map(k, "R2", 40, 41)
    srd_ws(k, 12, 10, WS_H1, SZ_ACT)
    srd_ws(k, 16, 10, WS_WQP, 2*MB)
    srd_ws(k, 20, 10, WS_KV, 262144)
    G = Gemm(k, "attnq", 32, 2, 4, 64, base=QB, aflag="sc1", bflag="sc1")
    k(f"s_cmp_lt_u32 s42, 4\ns_cbranch_scc1 {L('qcomp')}")
    k(f"""s_load_dwordx2 s[8:9], s[0:1], {B_W1}
    s_load_dwordx2 s[6:7], s[0:1], {B_W2}
    s_load_dwordx2 s[4:5], s[0:1], {A_WMOD}
    s_load_dwordx2 s[64:65], s[0:1], {A_X}
    s_and_b32 s57, s42, 3
    s_lshl_b32 s57, s57, 14""")
    def kv(st, parts):
        for q in parts:
            k(f"s_add_u32 m0, s57, {65536*(st%2) + 4096*q}\ns_add_u32 s59, s57, {65536*st + 4096*q}")
            for i in range(4): k(f"buffer_load_dwordx4 v3, s[20:23], s59 offen offset:{1024*i} sc1 lds")
    if kvgate: hk = {0: (kvgate[0], 4), 1: (lambda: (kvgate[1](), kv(0, (0, 1))), 8), 2: (lambda: kv(0, (2, 3)), 8)}
    else: hk = {0: (lambda: kv(0, (0, 1)), 8), 1: (lambda: kv(0, (2, 3)), 8)}
    G.loader(hk, gate=gateQ, st=S0+1)
    stamp(k, S0+3)
    k(f"s_setprio {os.environ.get('SVP', '3')}\ns_waitcnt vmcnt(0) lgkmcnt(0)\ns_barrier")
    srd_arg(k, 32, 8, 0, 1024*7168)
    srd_arg(k, 36, 6, 0, 3584*2048)
    srd_arg(k, 4, 4, 0, 1024*12288)
    srd_arg(k, 64, 64, 0, 4*MB)
    srd_ws(k, 12, 10, WS_W1P, 7*MB)
    srd_ws(k, 16, 10, WS_W2P, 7*MB)
    srd_ws(k, 28, 10, 0, WS_XB + 4*MB)
    pack_addr(k, "split", 2048, 2, 4, 5, 6, 47)
    k(f"""v_add_u32 v5, {SCR}, v5
    v_lshrrev_b32 v7, 3, v2
    v_mul_u32_u24 v11, 12288, v7
    v_mul_u32_u24 v7, 7168, v7
    v_and_b32 v6, 7, v2
    v_lshl_add_u32 v7, v6, 4, v7
    v_lshl_add_u32 v11, v6, 4, v11
    v_lshlrev_b32 v8, 7, v2
    v_lshrrev_b32 v13, 4, v2
    v_lshl_add_u32 v12, v13, 9, v5
    v_lshlrev_b32 v15, 3, v13
    s_mul_i32 s45, s2, 7
    s_and_b32 s54, s2, 63
    s_lshr_b32 s55, s2, 6""")
    def blocks(name, body):
        k(f"s_mov_b32 s56, s43\n{L(name)}:\ns_add_u32 s52, s45, s56\ns_lshl_b32 s53, s56, 12")
        body()
        k(f"s_add_u32 s56, s56, 4\ns_cmp_lt_u32 s56, 7\ns_cbranch_scc1 {L(name)}")
    def w2_in():
        k(f"""s_lshr_b32 s47, s52, 4
        s_lshl_b32 s47, s47, 16
        s_and_b32 s48, s52, 15
        s_lshl_b32 s48, s48, 7
        s_add_u32 s47, s47, s48
        s_add_u32 s46, s53, {SCR}""")
        pack_issue(k, 36, 2048, 4, 47, 46, 48)
    def w2_out():
        k(f"""s_lshr_b32 s48, s52, 4           ; kb
        s_mul_i32 s49, s48, 9363
        s_lshr_b32 s49, s49, 16
        s_mul_i32 s50, s49, 7
        s_sub_u32 s48, s48, s50          ; pair
        s_cmp_eq_u32 s48, 6
        s_cselect_b64 vcc, -1, 0
        s_cselect_b32 s51, 4, 16
        s_lshl_b32 s51, s51, 7
        v_cndmask_b32 v10, v5, v12, vcc
        v_add_u32 v10, s53, v10
        v_add_u32 v9, s51, v10""")
        for nt in range(4):
            k(f"ds_read_b64_tr_b16 {vr(16+4*nt,2)}, v10 offset:{32*nt}\nds_read_b64_tr_b16 {vr(18+4*nt,2)}, v9 offset:{32*nt}")
        k(f"""s_and_b32 s50, s49, 7            ; c
        s_lshr_b32 s49, s49, 3           ; half
        s_cmp_ge_u32 s48, 3
        s_cselect_b32 s51, -47, 0
        s_lshl_b32 s47, s48, 4
        s_add_u32 s47, s47, s51
        s_cmp_ge_u32 s47, 16
        s_cselect_b32 s51, 8, 0
        s_add_u32 s47, s47, s51
        s_add_u32 s47, s47, s50          ; (0,24,40)[g] + nh + c
        s_cmp_eq_u32 s48, 6
        s_cselect_b32 s47, 16, s47
        s_add_u32 s47, s47, s50
        s_mul_i32 s50, s49, 56
        s_add_u32 s47, s47, s50          ; kb'
        s_bfe_u32 s50, s52, 0x30001
        s_mul_i32 s50, s50, 112
        s_add_u32 s47, s47, s50
        s_lshl_b32 s47, s47, 13
        s_and_b32 s50, s52, 1
        s_lshl_b32 s50, s50, 12
        s_add_u32 s47, s47, s50
        s_lshl_b32 s49, s49, 11
        s_add_u32 s47, s47, s49
        s_xor_b32 s48, s47, 2048
        s_waitcnt lgkmcnt(0)""")
        for nt in range(4): k(f"buffer_store_dwordx4 {vr(16+4*nt,4)}, v3, s[16:19], s{47 + nt//2} offen offset:{1024*(nt%2)} {WT}")
    def w1_in():
        k(f"""s_and_b32 s47, s52, 31
        s_mul_i32 s47, s47, {32*7168}
        s_lshr_b32 s48, s52, 5
        s_lshl_b32 s48, s48, 7
        s_add_u32 s47, s47, s48
        s_add_u32 s46, s53, {SCR}""")
        pack_issue(k, 32, 7168, 7, 47, 46, 48)
    def w1_out():
        k("v_add_u32 v10, s53, v5")
        pack_read(k, "split", 10, 16)
        k(f"""s_and_b32 s47, s52, 31
        s_mul_i32 s47, s47, {14*1024}
        s_lshr_b32 s48, s52, 5
        s_lshl_b32 s48, s48, 2
        s_waitcnt lgkmcnt(0)""")
        for nt in range(4):
            k(f"""s_add_u32 s49, s48, {nt}
            s_mul_i32 s50, s49, 4682
            s_lshr_b32 s50, s50, 16
            s_mul_i32 s51, s50, 14
            s_sub_u32 s49, s49, s51
            s_cmp_ge_u32 s49, 6
            s_addc_u32 s51, s49, 0
            s_cmp_eq_u32 s49, 12
            s_cselect_b32 s51, 6, s51
            s_min_u32 s51, s51, 13
            s_mul_i32 s50, s50, {32*14*1024}
            s_lshl_b32 s51, s51, 10
            s_add_u32 s50, s50, s51
            s_add_u32 s50, s50, s47
            buffer_store_dwordx4 {vr(16+4*nt,4)}, v3, s[12:15], s50 offen {WT}""")
    kv(1, range(4))
    k(f"""s_lshl_b32 s47, s54, 7
    s_add_u32 s47, s47, 4096
    s_lshl_b32 s48, s55, 3
    s_add_u32 s48, s48, s43
    s_lshl_b32 s49, s48, 6
    s_add_u32 s49, s49, {WS_SC}
    s_mul_i32 s48, s48, {32*12288}
    s_add_u32 s47, s47, s48
    s_lshl_b32 s46, s43, 12
    v_add_u32 v10, s46, v5
    s_add_u32 s46, s46, {SCR}""")
    pack_issue(k, 4, 12288, 11, 47, 46, 48)
    k(f"s_add_u32 s47, s47, {4*32*12288}\ns_add_u32 s46, s46, 16384")
    pack_issue(k, 4, 12288, 11, 47, 46, 48)
    for i in range(2):
        k(f"buffer_load_dwordx2 {vr(48+4*i,2)}, v15, s[28:31], s49 offen offset:{256*i} sc1")
        k(f"buffer_load_dwordx2 {vr(50+4*i,2)}, v15, s[28:31], s49 offen offset:{256*i+32} sc1")
    for j in range(4): k(f"v_mov_b32 v{84+j}, -1")
    k(f"s_lshl_b32 s47, s2, 14\ns_lshl_b32 s48, s43, 12\ns_add_u32 s47, s47, s48\ns_add_u32 s47, s47, {WS_XB}")
    for i in range(4): k(f"buffer_store_dwordx4 v[84:87], v3, s[28:31], s47 offen offset:{1024*i} {WT}")
    k(f"""s_lshl_b32 s47, s2, 11
    s_lshl_b32 s48, s43, 9
    s_add_u32 s47, s47, s48
    s_lshr_b32 s48, s47, 1
    s_add_u32 s47, s47, {WS_ST2}
    s_add_u32 s48, s48, {WS_FLG}
    v_lshlrev_b32 v9, 3, v2
    buffer_store_dwordx2 v[84:85], v9, s[28:31], s47 offen {WT}
    v_lshlrev_b32 v9, 2, v2
    v_mov_b32 v88, 0
    buffer_store_dword v88, v9, s[28:31], s48 offen {WT}
    s_waitcnt vmcnt(18)""")
    stamp(k, S0+4)
    k("s_barrier\ns_waitcnt vmcnt(0)")
    kv(2, range(4))
    pack_read(k, "split", 10, 16)
    k("v_add_u32 v10, 16384, v10")
    pack_read(k, "split", 10, 32)
    k(f"""s_lshl_b32 s47, s55, 2
    s_add_u32 s47, s47, s43
    s_lshl_b32 s47, s47, 14
    s_lshl_b32 s48, s54, 8
    s_add_u32 s47, s47, s48
    s_add_u32 s47, s47, {WS_MOD2}
    v_lshlrev_b32 v15, 1, v15
    s_waitcnt lgkmcnt(0)""")
    for c in range(2):
        for nt in range(4): k(f"v_mfma_f32_16x16x32_bf16 {vr(64+4*nt,4)}, {vr(16+16*c+4*nt,4)}, {vr(48+4*c,4)}, {'0' if c == 0 else vr(64+4*nt,4)}")
    k("s_nop 7")
    for nt in range(4): k(f"buffer_store_dwordx4 {vr(64+4*nt,4)}, v15, s[28:31], s47 offen offset:{64*nt} {WT}")
    if SPEC:
        k(f"""s_lshl_b32 s47, s40, 18
        s_lshl_b32 s48, s41, 14
        s_add_u32 s47, s47, s48
        s_lshl_b32 s48, s43, 12
        s_add_u32 s47, s47, s48
        s_add_u32 s47, s47, {WS_O}
        s_cmp_ge_u32 s41, {SPO}
        s_cselect_b32 s47, 0x40000000, s47""")
        for i in range(4): k(f"buffer_store_dwordx4 v[84:87], v3, s[28:31], s47 offen offset:{1024*i} {WT}")
        assert SP1 == 6 and SP2 == 4
        k(f"""s_lshr_b32 s47, s2, 4
        s_lshl_b32 s47, s47, 18
        s_and_b32 s48, s2, 15
        s_mul_i32 s48, s48, 3
        s_add_u32 s48, s48, s43
        s_lshl_b32 s48, s48, 10
        s_add_u32 s47, s47, s48
        s_add_u32 s47, s47, {WS_H2}
        s_lshr_b32 s49, s2, 3
        s_mul_i32 s49, s49, {56*8192}
        s_and_b32 s48, s2, 7
        s_lshl_b32 s48, s48, 2
        s_add_u32 s48, s48, s43
        s_lshl_b32 s48, s48, 11
        s_add_u32 s49, s49, s48
        s_add_u32 s49, s49, {WS_U}
        s_cmp_eq_u32 s43, 3
        s_cselect_b32 s47, 0x40000000, s47
        buffer_store_dwordx4 v[84:87], v3, s[28:31], s47 offen {WT}
        buffer_store_dwordx4 v[84:87], v3, s[28:31], s49 offen {WT}
        buffer_store_dwordx4 v[84:87], v3, s[28:31], s49 offen offset:1024 {WT}""")
    k("s_waitcnt vmcnt(0)")
    blocks("sw2i", w2_in)
    k(f"""; L2 pulls: packed wo (16KB per wave), x rows (4KB per wave)
    s_lshr_b32 s50, s2, 3
    s_lshl_b32 s50, s50, 2
    s_add_u32 s50, s50, s43
    s_lshl_b32 s51, s50, 14
    s_add_u32 s51, s51, {WS_WOP}
    s_lshl_b32 s50, s50, 12
    s_and_b32 s49, s2, 7
    s_lshl_b32 s49, s49, 19
    s_add_u32 s50, s50, s49
    v_lshlrev_b32 v9, 6, v2
    buffer_load_dword v14, v9, s[64:67], s50 offen
    buffer_load_dword v14, v8, s[28:31], s51 offen sc1
    s_add_u32 s51, s51, 8192
    buffer_load_dword v14, v8, s[28:31], s51 offen sc1""")
    stamp(k, S0+5)
    k("s_barrier\ns_waitcnt vmcnt(0)")
    k(f"""s_cmp_lg_u32 s43, 0
    s_cbranch_scc1 {L('nosva')}
    s_lshl_b32 s58, s2, 5
    s_add_u32 s58, s58, {WS_FF + 8192}
    v_mov_b32 v9, 0
    v_mov_b32 v10, 1
    buffer_store_dword v10, v9, s[28:31], s58 offen {WT}
    {L('nosva')}:""")
    kv(3, range(4))
    k("s_waitcnt vmcnt(0)")
    blocks("sw2o", w2_out)
    blocks("sw1i", w1_in)
    stamp(k, S0+6)
    k("s_barrier\ns_waitcnt vmcnt(0)")
    B.mods()
    blocks("sw1o", w1_out)
    k("s_waitcnt vmcnt(0)\ns_setprio 0")
    stamp(k, S0+7)
    def gateO():
        srd_ws(k, 24, 10, WS_FLG, 524288)
        k(f"v_lshlrev_b32 v6, 7, v2\ns_lshl_b32 s57, s40, 13\ns_add_u32 s57, s57, 262144\ns_barrier")
        k(f"""s_cmp_lg_u32 s43, 0
        s_cbranch_scc1 {L('nosv')}
        s_lshl_b32 s58, s2, 5
        s_add_u32 s58, s58, {WS_FF + 8192}
        v_mov_b32 v9, 0
        v_mov_b32 v10, 2
        buffer_store_dword v10, v9, s[28:31], s58 offen {WT}
        {L('nosv')}:""")
        stamp(k, S0+8)
    back_loader(B, gateO, S0+8)
    stamps_out(k, 2, S0+19)
    k("s_endpgm")
    k(f"""{L('qcomp')}:
    s_load_dwordx2 s[6:7], s[0:1], {A_X}
    s_load_dwordx2 s[8:9], s[0:1], {A_OUT}
    s_and_b32 s43, s42, 1
    s_lshr_b32 s44, s42, 1
    s_waitcnt lgkmcnt(0)""")
    QACC = 112
    G.compute(16, QACC, 8, 9, 10, 11, st=S0+1)
    stamp(k, S0+3)
    def zero_init():
        for i in range(0, 16, 2): k(f"v_mov_b64 {vr(OA+i,2)}, 0\nv_mov_b64 {vr(OB+i,2)}, 0")
        for i in range(0, 4, 2): k(f"v_mov_b64 {vr(LA+i,2)}, 0\nv_mov_b64 {vr(LB+i,2)}, 0")
    k(f"s_mov_b32 s50, {hex(f2u(LOG2E / math.sqrt(32.0)))}")
    for i in range(0, 16, 2): k(f"v_mov_b64 {vr(SB+i,2)}, 0")
    for i in range(0, 32, 2): k(f"v_pk_mul_f32 {vr(QACC+i,2)}, {vr(QACC+i,2)}, s[50:51] op_sel_hi:[1,0]")
    for i in range(16): k(f"v_cvt_pk_bf16_f32 v{QA+i}, v{QACC+2*i}, v{QACC+2*i+1}")
    k(f"""s_barrier
    ds_read_b128 {vr(KF,4)}, v3
    ds_read_b128 {vr(KF+4,4)}, v3 offset:1024
    ds_read_b128 {vr(V0,4)}, v3 offset:2048
    ds_read_b128 {vr(V1,4)}, v3 offset:3072
    ds_read_b128 {vr(KF+ALT,4)}, v3 offset:4096
    ds_read_b128 {vr(KF+ALT+4,4)}, v3 offset:5120
    ds_read_b128 {vr(V0+ALT,4)}, v3 offset:6144""")
    for p in range(2):
        for i in range(4): k(f"v_permlane16_swap_b32 v{QA+8*p+i}, v{QA+8*p+4+i}")
    srd_ws(k, 24, 10, WS_O, SZ_ACT)
    k(f"""v_mov_b32 v{IDX}, 0xdddddddd
    v_and_b32 v12, 7, v2
    v_mov_b32 v13, 0x3f803f80
    s_waitcnt lgkmcnt(5)
    v_mfma_f32_32x32x16_bf16 {vr(SA,16)}, {vr(KF,4)}, {vr(QA,4)}, 0
    v_cmp_eq_u32 vcc, 0, v12
    v_mfma_f32_32x32x16_bf16 {vr(MB_,16)}, {vr(KF,4)}, {vr(QBr,4)}, 0
    v_mov_b32 v{VC}, v3
    v_add_u32 v{VN}, 0x8000, v3
    v_cndmask_b32 v{ONE}, 0, v13, vcc
    v_cndmask_b32 v{ONE+1}, 0, v13, vcc
    v_mfma_f32_32x32x16_bf16 {vr(SA,16)}, {vr(KF+4,4)}, {vr(QA+4,4)}, {vr(SA,16)}
    v_cmp_eq_u32 vcc, 4, v12
    v_mfma_f32_32x32x16_bf16 {vr(MB_,16)}, {vr(KF+4,4)}, {vr(QBr+4,4)}, {vr(MB_,16)}
    v_mov_b64 {vr(V1+ALT,2)}, 0
    v_mov_b64 {vr(V1+ALT+2,2)}, 0
    v_cndmask_b32 v{ONE+2}, 0, v13, vcc
    v_cndmask_b32 v{ONE+3}, 0, v13, vcc""")
    zero_init()
    def rowmax(S, dst, first):
        if first:
            k(f"v_max3_f32 v{dst}, v{S}, v{S+1}, v{S+2}")
            for i in range(3, 15, 2): k(f"v_max3_f32 v{dst}, v{dst}, v{S+i}, v{S+i+1}")
            k(f"v_max_f32 v{dst}, v{dst}, v{S+15}")
        else:
            for i in range(0, 16, 2): k(f"v_max3_f32 v{dst}, v{dst}, v{S+i}, v{S+i+1}")
    def negm():
        k(f"""v_mov_b32 v13, v12
        v_mov_b32 v15, v14
        s_nop 1
        v_permlane32_swap_b32 v12, v13
        v_permlane32_swap_b32 v14, v15
        v_max_f32 v12, v12, v13
        v_max_f32 v14, v14, v15
        v_sub_f32 v12, 0, v12
        v_sub_f32 v14, 0, v14
        v_mov_b32 v13, v12
        v_mov_b32 v15, v14""")
        for i in range(0, 16, 2): k(f"v_mov_b64 {vr(MA+i,2)}, v[12:13]")
        for i in range(0, 16, 2): k(f"v_mov_b64 {vr(MB_+i,2)}, v[14:15]")
    rowmax(SA, 12, True); rowmax(MB_, 14, True)
    if force_fallback:
        k("v_add_f32 v12, 0xc3000000, v12\nv_add_f32 v14, 0xc3000000, v14")
    negm()
    for i in range(0, 16, 2): k(f"v_pk_add_f32 {vr(SA+i,2)}, {vr(SA+i,2)}, v[12:13]")
    k("s_mov_b32 s56, 0\ns_mov_b32 s61, 0x8000\ns_waitcnt lgkmcnt(0)")
    stamp(k, S0+4)
    k(f".p2align 6\n{L('loop')}:")
    def pv(O, V, S): return f"v_smfmac_f32_32x32x32_bf16 {vr(O,16)}, {vr(V,4)}, {vr(S,8)}, v{IDX}"
    def sm(Lr, S): return f"v_smfmac_f32_16x16x64_bf16 {vr(Lr,4)}, {vr(ONE,4)}, {vr(S,8)}, v{IDX}"
    NTL = 8
    def phase(X, OX, LX, Y, OY, LY, QY, MY, isA, j):
        e = [f"v_exp_f32 v{X+i}, v{X+i}" for i in range(16)]
        me, ot = ALT*(j & 1), ALT*((j+1) & 1)
        def at(t, off): return f"v{VC} offset:{t*4096+off}" if t < NTL else f"v{VN} offset:{(t-NTL)*4096+off}"
        bar = j == NTL - 2; last = j == NTL - 1
        kq = me if isA else ot
        o = e[0:2] + [pv(OY, V1 + (ot if isA else me), Y+8)]
        if last and not isA: o.append("s_add_u32 s56, s56, 1")
        o += e[2:5] + [sm(LY, Y+8)]
        o.append(f"ds_read_b128 {vr(V1+ot,4)}, {at(j+1, 3072)}" if isA else f"ds_read_b128 {vr(KF+me+4,4)}, {at(j+2, 1024)}")
        o += e[5:6] + [f"v_mfma_f32_32x32x16_bf16 {vr(Y,16)}, {vr(KF+kq,4)}, {vr(QY,4)}, {vr(MY,16)}"]
        if isA and bar: o.append("s_bitcmp1_b32 0x2a, s56")
        o += e[6:9] + [f"v_mfma_f32_32x32x16_bf16 {vr(Y,16)}, {vr(KF+kq+4,4)}, {vr(QY+4,4)}, {vr(Y,16)}"]
        o.append("s_waitcnt lgkmcnt(2)" if isA else "s_waitcnt lgkmcnt(3)")
        o += e[9:12] + [pv(OX, V0+me, X)]
        if isA and bar: o += [f"s_cbranch_scc1 {L('bar')}", f"{L('barret')}:"]
        elif last and not isA: o.append("s_cmp_lt_u32 s56, 8")
        else: o.append("s_nop 0")
        o += e[12:15] + [sm(LX, X)]
        o.append(f"ds_read_b128 {vr(KF+me,4)}, {at(j+2, 0)}" if isA else f"ds_read_b128 {vr(V0+me,4)}, {at(j+2, 2048)}")
        if last and not isA: o += [f"v_mov_b32 v{VC}, v{VN}", f"v_add_u32 v{VN}, s61, v3"]
        if j == 0 and isA: o[3:3] = ["s_add_u32 s61, s61, 0x8000"];
        if j == 0 and not isA: o[3:3] = ["s_and_b32 s61, s61, 0x1ffff"]
        o += e[15:16]
        k("\n".join(o))
    PAD = os.environ.get("PAD", "s_nop 0")
    for j in range(NTL):
        phase(SA, OA, LA, SB, OB, LB, QBr, MB_, True, j)
        phase(SB, OB, LB, SA, OA, LA, QA, MA, False, j)
    k(f"""s_cbranch_scc1 {L('loop')}
    s_nop 0
    {pv(OB, V1+ALT, SB+8)}
    {sm(LB, SB+8)}""")
    stamp(k, S0+5)
    k(f"""s_mov_b32 s52, {hex(f2u(2.0**127))}
    s_mov_b32 s53, {hex(f2u(2.0**80))}
    v_max3_f32 v12, |v{OA}|, |v{OA+1}|, |v{OA+2}|""")
    for i in range(3, 15, 2): k(f"v_max3_f32 v12, v12, |v{OA+i}|, |v{OA+i+1}|")
    k(f"v_cmp_nlt_f32 s[48:49], v{LA}, s53\nv_cmp_nlt_f32 vcc, v{LB}, s53\ns_nop 0\nv_max3_f32 v12, v12, |v{OA+15}|, |v{OB}|")
    for i in range(1, 15, 2): k(f"v_max3_f32 v12, v12, |v{OB+i}|, |v{OB+i+1}|")
    k(f"""v_max_f32 v12, v12, |v{OB+15}|
    v_cmp_nlt_f32 s[54:55], v12, s52
    s_or_b64 s[48:49], s[48:49], vcc
    s_or_b64 s[54:55], s[54:55], s[48:49]
    s_cbranch_scc1 {L('fallback')}
    {L('norm')}:
    v_rcp_f32 v{LA}, v{LA}
    v_rcp_f32 v{LB}, v{LB}
    v_bfe_u32 v11, v2, 4, 1
    v_lshlrev_b32 v11, 10, v11
    v_lshrrev_b32 v15, 5, v2
    v_lshl_add_u32 v11, v15, 8, v11
    v_and_b32 v15, 15, v2
    v_lshl_add_u32 v11, v15, 4, v11
    s_lshl_b32 s50, s40, 18
    s_lshl_b32 s51, s41, 14
    s_add_u32 s50, s50, s51
    s_lshl_b32 s51, s42, 12
    s_add_u32 s50, s50, s51""")
    for (O, Lr, off) in ((OA, LA, 0), (OB, LB, 2048)):
        for h in range(2):
            d = SA + (off // 256) + 4*h
            for j in range(0, 8, 2): k(f"v_pk_mul_f32 {vr(O+8*h+j,2)}, {vr(O+8*h+j,2)}, {vr(Lr,2)} op_sel_hi:[1,0]")
            for j in range(4): k(f"v_cvt_pk_bf16_f32 v{d+j}, v{O+8*h+2*j}, v{O+8*h+2*j+1}")
            for j in range(4): k(f"v_min_u32 v{d+j}, -2, v{d+j}")
            k(f"buffer_store_dwordx4 {vr(d,4)}, v11, s[24:27], s50 offen offset:{off+512*h} {WT}")
    srd_ws(k, 32, 10, WS_FLG, 524288)
    k(f"""s_lshr_b32 s50, s50, 5
    s_add_u32 s50, s50, 262144
    v_mov_b32 v12, 0
    v_mov_b32 v13, 1
    s_waitcnt lgkmcnt(0)""")
    if SPEC: k("s_barrier")
    k(f"s_waitcnt vmcnt(0)\nbuffer_store_dword v13, v12, s[32:35], s50 offen {WT}")
    if not SPEC: k("s_barrier")
    stamp(k, S0+8)
    back_compute(B, S0+8)
    stamps_out(k, 2, S0+19)
    k(f"""s_endpgm
    {L('bar')}:
    s_waitcnt lgkmcnt(0)
    s_barrier
    s_branch {L('barret')}
    {L('fallback')}:
    v_mov_b32 v12, 0xff800000
    v_mov_b32 v14, 0xff800000
    s_mov_b32 s50, 0
    s_waitcnt lgkmcnt(0)
    {L('floop')}:
    buffer_load_dwordx4 {vr(KF,4)}, v3, s[20:23], s50 offen sc1
    buffer_load_dwordx4 {vr(KF+4,4)}, v3, s[20:23], s50 offen offset:1024 sc1
    s_waitcnt vmcnt(0)
    v_mfma_f32_32x32x16_bf16 {vr(SA,16)}, {vr(KF,4)}, {vr(QA,4)}, 0
    v_mfma_f32_32x32x16_bf16 {vr(SB,16)}, {vr(KF,4)}, {vr(QBr,4)}, 0
    v_mfma_f32_32x32x16_bf16 {vr(SA,16)}, {vr(KF+4,4)}, {vr(QA+4,4)}, {vr(SA,16)}
    v_mfma_f32_32x32x16_bf16 {vr(SB,16)}, {vr(KF+4,4)}, {vr(QBr+4,4)}, {vr(SB,16)}
    s_nop 11""")
    rowmax(SA, 12, False); rowmax(SB, 14, False)
    k(f"""s_add_u32 s50, s50, 4096
    s_cmp_lt_u32 s50, 262144
    s_cbranch_scc1 {L('floop')}""")
    negm()
    zero_init()
    k(f"""s_mov_b32 s50, 0
    {L('floop2')}:
    buffer_load_dwordx4 {vr(KF,4)}, v3, s[20:23], s50 offen sc1
    buffer_load_dwordx4 {vr(KF+4,4)}, v3, s[20:23], s50 offen offset:1024 sc1
    buffer_load_dwordx4 {vr(V0,4)}, v3, s[20:23], s50 offen offset:2048 sc1
    buffer_load_dwordx4 {vr(V1,4)}, v3, s[20:23], s50 offen offset:3072 sc1
    s_waitcnt vmcnt(0)
    v_mfma_f32_32x32x16_bf16 {vr(SA,16)}, {vr(KF,4)}, {vr(QA,4)}, {vr(MA,16)}
    v_mfma_f32_32x32x16_bf16 {vr(SB,16)}, {vr(KF,4)}, {vr(QBr,4)}, {vr(MB_,16)}
    v_mfma_f32_32x32x16_bf16 {vr(SA,16)}, {vr(KF+4,4)}, {vr(QA+4,4)}, {vr(SA,16)}
    v_mfma_f32_32x32x16_bf16 {vr(SB,16)}, {vr(KF+4,4)}, {vr(QBr+4,4)}, {vr(SB,16)}
    s_nop 11""")
    for i in range(32): k(f"v_exp_f32 v{SA+i}, v{SA+i}")
    k("s_nop 1")
    for (O, Lr, S) in ((OA, LA, SA), (OB, LB, SB)):
        k("\n".join([pv(O, V0, S), pv(O, V1, S+8), sm(Lr, S), sm(Lr, S+8)]))
    k(f"""s_add_u32 s50, s50, 4096
    s_cmp_lt_u32 s50, 262144
    s_cbranch_scc1 {L('floop2')}
    s_nop 11
    s_branch {L('norm')}""")

def k_main(force_fallback=False):
    k = Kern("main_kernel", 248)
    k("s_cmp_ge_u32 s2, 256\ns_cbranch_scc1 L_main_end")
    stamp(k, 0)
    k(f"""s_load_dwordx2 s[10:11], s[0:1], {A_WS}
    v_lshrrev_b32 v1, 6, v0
    v_and_b32 v2, 63, v0
    v_readfirstlane_b32 s42, v1
    v_lshlrev_b32 v3, 4, v2
    s_waitcnt lgkmcnt(0)""")
    main_body(k, None, force_fallback)
    k("L_main_end:\ns_endpgm")
    return k, (256, 512, 163840)
```

```python
import sys, math
from common import *

PACKEARLY = os.environ.get("PACKEARLY", "0") == "1"
def tb_map(k, dst, sub=0, shift=0):
    k(f"s_and_b32 s{dst}, s2, 7\ns_lshl_b32 s{dst}, s{dst}, 4\ns_sub_u32 s3, s2, {sub}\ns_lshr_b32 s3, s3, {3+shift}\ns_add_u32 s{dst}, s{dst}, s3")

def gemv_part(k, pfx, RW, lds, mid=None, publish=None):
    NI = RW // 8
    k(f"""v_lshrrev_b32 v4, 3, v2          ; r
    v_and_b32 v5, 7, v2              ; c8
    v_mul_u32_u24 v6, {NI*12288}, v4
    v_lshl_add_u32 v6, v5, 4, v6
    s_lshl_b32 s30, s29, 3
    s_add_u32 s30, s30, s42
    s_mul_i32 s31, s30, {RW*2}
    s_mul_i32 s30, s30, {RW*12288}
    s_lshl_b32 s21, s28, 7
    s_add_u32 s30, s30, s21
    v_lshlrev_b32 v7, 2, v2
    s_waitcnt lgkmcnt(0)""")
    srd_arg(k, 12, 4, 0, 2048)
    srd_arg(k, 16, 6, 0, 1024*12288)
    srd_ws(k, 24, 10, WS_MODP, 4*6144*4)
    k("buffer_load_dword v8, v7, s[12:15], s31 offen")
    for i in range(NI):
        k(f"s_add_u32 s22, s30, {i*12288}\nbuffer_load_dwordx4 v[{32+4*i}:{35+4*i}], v6, s[16:19], s22 offen")
    nmid = mid() if mid else 0
    stamp(k, 1)
    k(f"""s_waitcnt vmcnt({NI+nmid})
    v_and_b32 v9, 0xffff0000, v8
    v_lshlrev_b32 v8, 16, v8
    v_mul_f32 v10, {hex(f2u(-LOG2E))}, v8
    v_mul_f32 v11, {hex(f2u(-LOG2E))}, v9
    v_exp_f32 v10, v10
    v_exp_f32 v11, v11
    s_lshl_b32 s22, s42, 9
    v_add_f32 v10, 1.0, v10
    v_add_f32 v11, 1.0, v11
    v_rcp_f32 v10, v10
    v_rcp_f32 v11, v11
    s_add_u32 s22, s22, {lds}
    v_mul_f32 v8, v8, v10
    v_mul_f32 v9, v9, v11""")
    srd_ws(k, 12, 10, WS_SC, 2048)
    k(f"""v_cvt_pk_bf16_f32 v10, v8, v9
    s_cmp_eq_u32 s28, 0
    s_cselect_b32 s14, 2048, 0
    v_mov_b32 v11, 0x80000000
    v_cmp_gt_u32 vcc, {RW//2}, v2
    v_lshlrev_b32 v8, 16, v10
    v_and_b32 v9, 0xffff0000, v10
    v_cndmask_b32 v11, v11, v7, vcc
    buffer_store_dword v10, v11, s[12:15], s31 offen {WT}""")
    nmid += 1
    k(f"""v_lshl_add_u32 v10, v2, 3, s22
    ds_write_b64 v10, v[8:9]
    v_lshl_add_u32 v10, v4, {(NI*4).bit_length()-1}, s22
    s_waitcnt lgkmcnt(0)""")
    for i in range(NI//4): k(f"ds_read_b128 v[{12+4*i}:{15+4*i}], v10 offset:{16*i}")
    k("s_waitcnt lgkmcnt(0)")
    for i in range(NI):
        k(f"s_waitcnt vmcnt({NI-1-i+nmid})")
        for d in range(4):
            w = 32 + 4*i + d
            op = "v_mul_f32" if i == 0 else "v_fmac_f32"
            k(f"v_lshlrev_b32 v{28+2*(d%2)}, 16, v{w}\nv_and_b32 v{29+2*(d%2)}, 0xffff0000, v{w}")
            k(f"{op} v{20+2*d}, v{28+2*(d%2)}, v{12+i}\n{op} v{21+2*d}, v{29+2*(d%2)}, v{12+i}")
    stamp(k, 2)
    k("s_nop 1")
    for j in range(4): k(f"v_permlane32_swap_b32 v{20+j}, v{24+j}")
    for j in range(4): k(f"v_add_f32 v{20+j}, v{20+j}, v{24+j}")
    k("s_nop 1")
    for j in range(2): k(f"v_permlane16_swap_b32 v{20+j}, v{22+j}")
    for j in range(2): k(f"v_add_f32 v{20+j}, v{20+j}, v{22+j}")
    k("s_nop 1")
    for j in range(2): k(f"v_add_f32_dpp v{20+j}, v{20+j}, v{20+j} row_ror:8 row_mask:0xf bank_mask:0xf")
    k(f"""v_lshrrev_b32 v10, 4, v2
    v_lshlrev_b32 v10, 3, v10
    v_lshl_add_u32 v10, v5, 5, v10
    s_lshl_b32 s22, s42, 8
    s_add_u32 s22, s22, {lds+4096}
    v_add_u32 v10, s22, v10
    ds_write_b64 v10, v[20:21]
    s_cmp_lg_u32 s42, 0
    s_cbranch_scc1 L_{pfx}_nowait""")
    publish()
    k(f"""L_{pfx}_nowait:
    s_waitcnt lgkmcnt(0)
    s_barrier
    s_cmp_lg_u32 s42, 0
    s_cbranch_scc1 L_{pfx}_gdone
    v_add_u32 v10, {lds+4096}, v7""")
    for p in range(8): k(f"ds_read_b32 v{12+p}, v10 offset:{256*p}")
    k(f"""s_mul_i32 s21, s29, {6144*4}
    s_lshl_b32 s22, s28, 8
    s_add_u32 s21, s21, s22
    s_waitcnt lgkmcnt(0)""")
    for p in range(1, 8): k(f"v_add_f32 v12, v12, v{12+p}")
    k(f"v_min_u32 v12, -2, v12\nbuffer_store_dword v12, v7, s[24:27], s21 offen {WT}")
    k(f"L_{pfx}_gdone:")

ONE = os.environ.get("ONE", "1") == "1"
def k_front():
    k = Kern(NAME + "_kernel" if ONE else "front_kernel", 248 if ONE else 216)
    k("s_cmp_ge_u32 s2, 256\ns_cbranch_scc1 L_f_exit")
    stamp(k, 0)
    k(f"""v_lshrrev_b32 v1, 6, v0
    v_and_b32 v2, 63, v0
    v_readfirstlane_b32 s42, v1
    s_load_dwordx2 s[10:11], s[0:1], {A_WS}
    s_load_dwordx2 s[56:57], s[0:1], {A_DBG}
    s_cmp_ge_u32 s2, 128
    s_cbranch_scc1 L_f_ln
    s_load_dwordx2 s[4:5], s[0:1], {A_C}
    s_load_dwordx2 s[6:7], s[0:1], {A_WMOD}
    s_load_dwordx2 s[8:9], s[0:1], {A_WQ}
    s_load_dwordx2 s[36:37], s[0:1], {A_WO}
    s_and_b32 s28, s2, 31
    s_lshr_b32 s29, s2, 5
    v_lshlrev_b32 v3, 4, v2""")
    def wait_init(tag, srd, v):
        srd_arg(k, srd, 56, 0, 256)
        k(f"""v_and_b32 v{v}, 7, v2
        v_lshlrev_b32 v{v}, 2, v{v}
        s_mov_b32 s51, {1 << 22}
        L_f_wi{tag}:
        buffer_load_dword v{v+1}, v{v}, s[{srd}:{srd+3}], 0 offen sc1
        s_waitcnt vmcnt(0)
        v_cmp_eq_u32 vcc, 0, v{v+1}
        s_sub_u32 s51, s51, 1
        s_cbranch_scc1 L_f_wd{tag}
        s_cmp_lg_u64 vcc, 0
        s_cbranch_scc1 L_f_wi{tag}
        L_f_wd{tag}:""")
    def post():
        pack_addr(k, "nat", 2048, 2, 64, 65, 66, 47)
        k("""v_bfe_u32 v66, v2, 4, 1
        v_lshlrev_b32 v66, 9, v66
        v_sub_u32 v66, v65, v66
        s_cmp_lt_u32 s42, 4
        s_cselect_b64 vcc, -1, 0
        s_cselect_b32 s32, s8, s36
        s_cselect_b32 s33, s9, s37
        s_and_b32 s33, s33, 0xffff
        s_mov_b32 s34, 0x200000
        s_mov_b32 s35, 0x20000
        v_cndmask_b32 v65, v66, v65, vcc
        s_lshl_b32 s45, s2, 2
        s_and_b32 s46, s42, 3
        s_add_u32 s45, s45, s46
        s_lshl_b32 s46, s42, 12
        v_add_u32 v65, s46, v65
        s_and_b32 s47, s45, 31
        s_lshl_b32 s47, s47, 16
        s_lshr_b32 s48, s45, 5
        s_lshl_b32 s48, s48, 7
        s_add_u32 s47, s47, s48""")
        if PACKEARLY:
            k("s_barrier")
            pack_issue(k, 32, 2048, 64, 47, 46, 48)
            return 4
        return 0
    gemv_part(k, "f1", 32, 32768, post, lambda: wait_init("g", 12, 28))
    k("s_barrier")
    stamp(k, 3)
    if not PACKEARLY: pack_issue(k, 32, 2048, 64, 47, 46, 48)
    srd_ws(k, 16, 10, WS_WQP, 4*MB)
    k("s_cmp_lg_u32 s42, 7\ns_cbranch_scc1 L_f_nopull")
    code_pull(k, "L_f_end" if ONE else "main_kernel", "L_code_end", 2, 70)
    k(f"""L_f_nopull:
    s_lshl_b32 s47, s45, 12
    s_cmp_lt_u32 s42, 4
    s_waitcnt vmcnt(0)
    s_cbranch_scc0 L_f_pko""")
    pack_read(k, "nat", 65, 32)
    k(f"s_branch L_f_pkst\nL_f_pko:\ns_add_u32 s47, s47, {2*MB}")
    pack_read(k, "att", 65, 32)
    k("L_f_pkst:")
    srd_ws(k, 20, 10, WS_FLG + 262144, 131072)
    k(f"""s_lshl_b32 s48, s2, 10
    s_lshl_b32 s49, s42, 7
    s_add_u32 s48, s48, s49
    v_and_b32 v4, 31, v2
    v_lshlrev_b32 v4, 2, v4
    v_mov_b32 v5, 0
    buffer_store_dword v5, v4, s[20:23], s48 offen {WT}
    s_waitcnt lgkmcnt(0)""")
    for nt in range(4): k(f"buffer_store_dwordx4 {vr(32+4*nt,4)}, v3, s[16:19], s47 offen offset:{1024*nt} {WT}")
    if ONE: k("s_branch L_f_end")
    else:
        stamps_out(k, 0, 4)
        k("s_endpgm")
    XP, XF, SCL, SHF, T, WF, ACC = 8, 24, 56, 88, 120, 144, 120
    MODL = 131072; STATL = MODL + 8192
    k(f"""L_f_ln:
    s_load_dwordx2 s[4:5], s[0:1], {A_X}
    s_load_dwordx2 s[6:7], s[0:1], {A_WK}
    s_load_dwordx2 s[8:9], s[0:1], {A_WV}""")
    tb_map(k, 40, 128)
    k(f"""v_and_b32 v3, 15, v2             ; t
    v_lshrrev_b32 v4, 4, v2          ; g
    v_lshlrev_b32 v5, 11, v3
    v_lshl_add_u32 v5, v4, 4, v5
    s_lshl_b32 s43, s40, 15
    s_lshl_b32 s44, s42, 8
    s_add_u32 s43, s43, s44
    v_lshrrev_b32 v7, 2, v2
    v_and_b32 v136, 3, v2
    v_lshrrev_b32 v137, 5, v2
    v_lshlrev_b32 v137, 1, v137
    v_xor_b32 v136, v136, v137
    v_lshlrev_b32 v7, 6, v7
    v_lshl_add_u32 v7, v136, 4, v7
    s_lshl_b32 s46, s42, 13
    s_lshl_b32 s47, s42, 14
    s_add_u32 s48, s46, 4096
    s_waitcnt lgkmcnt(0)""")
    srd_arg(k, 12, 4, 0, 4*MB)
    srd_arg(k, 16, 6, 0, 65536)
    srd_arg(k, 20, 8, 0, 65536)
    srd_ws(k, 24, 10, WS_MODP, 4*6144*4)
    srd_arg(k, 36, 56, 0, 256)
    k(f"""v_lshlrev_b32 v6, 4, v0
    s_cmp_ge_u32 s2, 136
    s_cbranch_scc1 L_f_noinit
    s_cmp_eq_u32 s42, 0
    s_cbranch_scc1 L_f_init
    s_barrier
    s_branch L_f_noinit
    L_f_init:
    s_and_b32 s55, s2, 7
    s_lshl_b32 s45, s55, 10""")
    for j in range(4): k(f"v_mov_b32 v{XF+j}, -1")
    for p in range(4): k(f"buffer_store_dwordx4 {vr(XF,4)}, v6, s[24:27], s45 offen {WT}\ns_add_u32 s45, s45, {6144*4}")
    srd_ws(k, 28, 10, WS_FF, 16384)
    for j in range(4): k(f"v_mov_b32 v{XF+8+j}, 0")
    k(f"""s_lshl_b32 s45, s55, 11
    buffer_store_dwordx4 {vr(XF+8,4)}, v6, s[28:31], s45 offen {WT}
    buffer_store_dwordx4 {vr(XF+8,4)}, v6, s[28:31], s45 offen offset:1024 {WT}
    s_lshl_b32 s55, s55, 2
    v_mov_b32 v{XF+4}, s55
    s_waitcnt vmcnt(0)
    buffer_store_dword v{XF}, v{XF+4}, s[36:39], 0 offen {WT}
    s_barrier
    L_f_noinit:""")
    stamp(k, 1)
    k(f"""
    s_and_b32 s45, s40, 15
    s_lshl_b32 s45, s45, 12
    s_cmp_lt_u32 s42, 2
    s_cselect_b32 s45, s45, 0x40000000
    v_lshlrev_b32 v141, 6, v2
    s_cmp_eq_u32 s42, 0
    s_cbranch_scc1 L_f_pk
    buffer_load_dword v142, v141, s[20:23], s45 offen
    s_branch L_f_pd
    L_f_pk:
    buffer_load_dword v142, v141, s[16:19], s45 offen
    L_f_pd:""")
    for i in range(4):
        k(f"buffer_load_dwordx4 v[{XP+4*i}:{XP+4*i+3}], v5, s[12:15], s43 offen offset:{64*i}")
    def wdma(mat, h):
        srd = 16 + 4*mat
        k(f"s_add_u32 m0, s47, {mat*8192 + h*4096}\ns_nop 0")
        for i in range(4):
            k(f"buffer_load_dwordx4 v7, s[{srd}:{srd+3}], s{46 if h == 0 else 48} offen offset:{1024*i} lds")
    srd_ws(k, 28, 10, WS_H1, SZ_ACT)
    srd_ws(k, 32, 10, WS_KV, 262144)
    k("s_barrier")
    wdma(0, 0); wdma(1, 0)
    k("s_waitcnt vmcnt(8)")
    stamp(k, 2)
    s_, t1, a, b = T, T+1, T+2, T+3
    mean = T + 12
    for i in range(16):
        k(f"v_lshlrev_b32 v{XF+2*i}, 16, v{XP+i}\nv_and_b32 v{XF+2*i+1}, 0xffff0000, v{XP+i}")
    k(f"v_pk_add_f32 v[{s_}:{s_+1}], v[{XF}:{XF+1}], v[{XF+2}:{XF+3}]")
    for i in range(4, 32, 2): k(f"v_pk_add_f32 v[{s_}:{s_+1}], v[{s_}:{s_+1}], v[{XF+i}:{XF+i+1}]")
    k(f"v_add_f32 v{s_}, v{s_}, v{t1}")
    xlane_sum(k, s_, t1)
    k(f"v_mul_f32 v{mean}, {hex(f2u(-1/128))}, v{s_}")
    wdma(0, 1)
    for i in range(0, 32, 2):
        k(f"v_pk_add_f32 v[{SCL+i}:{SCL+i+1}], v[{XF+i}:{XF+i+1}], v[{mean}:{mean+1}] op_sel_hi:[1,0]")
    k(f"v_pk_mul_f32 v[{s_}:{s_+1}], v[{SCL}:{SCL+1}], v[{SCL}:{SCL+1}]")
    for i in range(2, 32, 2): k(f"v_pk_fma_f32 v[{s_}:{s_+1}], v[{SCL+i}:{SCL+i+1}], v[{SCL+i}:{SCL+i+1}], v[{s_}:{s_+1}]")
    k(f"v_add_f32 v{s_}, v{s_}, v{t1}")
    xlane_sum(k, s_, t1)
    k(f"""v_lshlrev_b32 v{a}, 5, v3
    v_add_u32 v{a}, {STATL}, v{a}
    v_lshl_add_u32 v{b}, v1, 2, v{a}
    ds_write_b32 v{b}, v{mean}
    ds_write_b32 v{b}, v{s_} offset:512""")
    wdma(1, 1)
    k("s_cmp_lg_u32 s42, 0\ns_cbranch_scc1 L_f_wdl")
    wait_init("l", 36, 141)
    k(f"""s_waitcnt lgkmcnt(0)
    s_barrier
    ds_read_b128 v[{SCL}:{SCL+3}], v{a}
    ds_read_b128 v[{SCL+4}:{SCL+7}], v{a} offset:16
    ds_read_b128 v[{T+4}:{T+7}], v{a} offset:512
    ds_read_b128 v[{T+8}:{T+11}], v{a} offset:528
    s_lshr_b32 s49, s40, 3
    s_lshl_b32 s49, s49, 18
    s_and_b32 s50, s40, 7
    s_lshl_b32 s50, s50, 10
    s_add_u32 s49, s49, s50
    s_lshl_b32 s50, s42, 15
    s_add_u32 s49, s49, s50
    v_lshlrev_b32 v136, 4, v2
    v_lshrrev_b32 v137, 2, v3
    v_lshl_add_u32 v137, v4, 3, v137
    v_lshlrev_b32 v137, 6, v137
    v_and_b32 v138, 3, v2
    v_lshl_add_u32 v137, v138, 3, v137
    v_and_b32 v138, 1, v4
    v_lshlrev_b32 v138, 5, v138
    v_add_u32 v137, s47, v137
    v_add_u32 v139, v137, v138
    v_xor_b32 v138, 32, v138
    v_add_u32 v140, v137, v138
    s_waitcnt lgkmcnt(0)""")
    k(f"v_pk_add_f32 v[{mean}:{mean+1}], v[{SCL}:{SCL+1}], v[{SCL+2}:{SCL+3}]")
    for i in (4, 6): k(f"v_pk_add_f32 v[{mean}:{mean+1}], v[{mean}:{mean+1}], v[{SCL+i}:{SCL+i+1}]")
    for i in (6, 8, 10): k(f"v_pk_add_f32 v[{T+4}:{T+5}], v[{T+4}:{T+5}], v[{T+i}:{T+i+1}]")
    k(f"v_add_f32 v{mean}, v{mean}, v{mean+1}\nv_add_f32 v{T+4}, v{T+4}, v{T+5}\nv_mul_f32 v{mean}, 0x3e000000, v{mean}")
    for i in range(0, 8, 2): k(f"v_pk_add_f32 v[{SCL+i}:{SCL+i+1}], v[{SCL+i}:{SCL+i+1}], v[{mean}:{mean+1}] op_sel_hi:[1,0] neg_lo:[0,1] neg_hi:[0,1]")
    k(f"v_pk_mul_f32 v[{T+6}:{T+7}], v[{SCL}:{SCL+1}], v[{SCL}:{SCL+1}]")
    for i in (2, 4, 6): k(f"v_pk_fma_f32 v[{T+6}:{T+7}], v[{SCL+i}:{SCL+i+1}], v[{SCL+i}:{SCL+i+1}], v[{T+6}:{T+7}]")
    k(f"""v_add_f32 v{T+6}, v{T+6}, v{T+7}
    v_mul_f32 v{T+5}, {hex(f2u(1/1024))}, v{T+4}
    v_fmac_f32 v{T+5}, 0x3e000000, v{T+6}""")
    ln_finish(k, T+5, mean, T+4)
    for i in range(0, 32, 2):
        k(f"v_pk_fma_f32 v[{XF+i}:{XF+i+1}], v[{XF+i}:{XF+i+1}], v[{T+4}:{T+5}], v[{T+4}:{T+5}] op_sel:[0,1,0] op_sel_hi:[1,1,0]")
    k("s_waitcnt vmcnt(0)")
    for i in range(4):
        for mat in range(2):
            for nt in range(2):
                bb = WF + 16*i + 8*mat + 4*nt
                off = mat*8192 + i*2048
                k(f"ds_read_b64_tr_b16 v[{bb}:{bb+1}], v{139+nt} offset:{off}")
                k(f"ds_read_b64_tr_b16 v[{bb+2}:{bb+3}], v{139+nt} offset:{off+256}")
    stamp(k, 3)
    k(f"s_mov_b32 s51, {1 << 22}\nL_f_poll:")
    for p in range(4):
        k(f"s_mov_b32 s45, {p*6144*4}\nbuffer_load_dwordx4 {vr(SCL+4*p,4)}, v6, s[24:27], s45 offen sc1")
    k(f"s_waitcnt vmcnt(0)\nv_max3_u32 v141, v{SCL}, v{SCL+1}, v{SCL+2}")
    for i in range(3, 15, 2): k(f"v_max3_u32 v141, v141, v{SCL+i}, v{SCL+i+1}")
    k(f"""v_max_u32 v141, v141, v{SCL+15}
    v_cmp_eq_u32 vcc, -1, v141
    s_sub_u32 s51, s51, 1
    s_cbranch_scc1 L_f_ready
    s_cmp_lg_u64 vcc, 0
    s_cbranch_scc1 L_f_poll
    L_f_ready:""")
    stamp(k, 4)
    k(f"""s_cmp_ge_u32 s42, 4
    s_cselect_b32 s45, 1.0, 0
    v_add_u32 v6, {MODL}, v6""")
    for h in range(2): k(f"v_pk_add_f32 {vr(SCL+2*h,2)}, {vr(SCL+2*h,2)}, {vr(SCL+4+2*h,2)}\nv_pk_add_f32 {vr(SCL+8+2*h,2)}, {vr(SCL+8+2*h,2)}, {vr(SCL+12+2*h,2)}")
    for h in range(2): k(f"v_pk_add_f32 {vr(SCL+2*h,2)}, {vr(SCL+2*h,2)}, {vr(SCL+8+2*h,2)}")
    for j in range(4): round_bf16(k, SCL+j)
    for j in range(4): k(f"v_add_f32 v{SCL+j}, s45, v{SCL+j}")
    for j in range(4): round_bf16(k, SCL+j)
    k(f"""ds_write_b128 v6, {vr(SCL,4)}
    s_lshl_b32 s45, s42, 9
    s_add_u32 s45, s45, {MODL}
    v_lshl_add_u32 v6, v4, 5, s45
    s_waitcnt lgkmcnt(0)
    s_barrier""")
    for i in range(4):
        for h in range(2):
            k(f"ds_read_b128 {vr(SHF+8*i+4*h,4)}, v6 offset:{128*i+16*h}")
            k(f"ds_read_b128 {vr(SCL+8*i+4*h,4)}, v6 offset:{4096+128*i+16*h}")
    for i in range(4):
        k(f"s_waitcnt lgkmcnt({12-4*i})")
        for j in range(0, 8, 2): k(f"v_pk_fma_f32 {vr(XF+8*i+j,2)}, {vr(XF+8*i+j,2)}, {vr(SCL+8*i+j,2)}, {vr(SHF+8*i+j,2)}")
        for j in range(4): k(f"v_cvt_pk_bf16_f32 v{XP+4*i+j}, v{XF+8*i+2*j}, v{XF+8*i+2*j+1}")
        k("s_nop 1")
        for mat in range(2):
            for nt in range(2):
                bb = WF + 16*i + 8*mat + 4*nt
                c = ACC + 8*mat + 4*nt
                cin = "0" if i == 0 else vr(c, 4)
                if mat == 0: k(f"v_mfma_f32_16x16x32_bf16 {vr(c,4)}, {vr(bb,4)}, {vr(XP+4*i,4)}, {cin}")
                else:        k(f"v_mfma_f32_16x16x32_bf16 {vr(c,4)}, {vr(XP+4*i,4)}, {vr(bb,4)}, {cin}")
    k("v_add_u32 v137, s47, v136")
    for i in range(4):
        k(f"s_add_u32 s50, s49, {8192*i}\nbuffer_store_dwordx4 v[{XP+4*i}:{XP+4*i+3}], v136, s[28:31], s50 offen {H1ST}")
    for j in range(4): k(f"ds_write_b128 v137, {vr(ACC+4*j,4)} offset:{1024*j}")
    k(f"""s_waitcnt lgkmcnt(0)
    s_barrier
    s_cmp_ge_u32 s42, 2
    s_cbranch_scc1 L_f_end""")
    stamp(k, 5)
    k(f"""s_lshl_b32 s51, s42, 11
    v_add_u32 v137, s51, v136
    v_add_u32 v138, 0x10000, v137""")
    for p in range(8):
        aa = 137 if p < 4 else 138
        for nt in range(2):
            k(f"ds_read_b128 {vr(24+8*p+4*nt,4)}, v{aa} offset:{(p%4)*16384+1024*nt}")
    k(f"""s_lshr_b32 s52, s40, 1
    s_lshl_b32 s52, s52, 12
    s_and_b32 s53, s40, 1
    v_and_b32 v137, 1, v4
    v_lshrrev_b32 v138, 1, v4
    v_lshlrev_b32 v138, 9, v138
    v_lshl_add_u32 v138, v3, 4, v138""")
    for p in range(1, 8):
        k(f"s_waitcnt lgkmcnt({2*(7-p)})")
        for j in range(0, 8, 2): k(f"v_pk_add_f32 {vr(24+j,2)}, {vr(24+j,2)}, {vr(24+8*p+j,2)}")
    for j in range(4): k(f"v_cvt_pk_bf16_f32 v{120+j}, v{24+2*j}, v{25+2*j}")
    k(f"""s_cmp_eq_u32 s42, 1
    s_cbranch_scc1 L_f_v
    s_lshl_b32 s53, s53, 8
    s_add_u32 s52, s52, s53
    v_lshl_add_u32 v137, v137, 10, v138
    buffer_store_dwordx4 v[120:123], v137, s[32:35], s52 offen {WT}""")
    stamp(k, 6)
    if not ONE: stamps_out(k, 1, 7)
    k(f"""s_branch L_f_end
    L_f_v:
    s_lshl_b32 s53, s53, 10
    s_add_u32 s52, s52, s53
    v_lshl_add_u32 v137, v137, 3, v138
    buffer_store_dwordx2 v[120:121], v137, s[32:35], s52 offen offset:2048 {WT}
    buffer_store_dwordx2 v[122:123], v137, s[32:35], s52 offen offset:2304 {WT}
    L_f_end:""")
    if not ONE:
        k("L_f_exit:\ns_endpgm")
        return k, (256, 512, 131072 + 8192 + 1024)
    srd_ws(k, 24, 10, WS_FF, 16384)
    k(f"""v_lshlrev_b32 v3, 4, v2
    v_lshlrev_b32 v5, 5, v2
    v_mov_b32 v6, 0
    v_mov_b32 v7, 1
    s_lshl_b32 s58, s2, 5
    s_waitcnt vmcnt(0) lgkmcnt(0)
    s_barrier
    s_cmp_lg_u32 s42, 4
    s_cbranch_scc1 L_f_nopub
    buffer_store_dword v7, v6, s[24:27], s58 offen {WT}
    L_f_nopub:""")
    stamp(k, 7)
    def gateQ():
        k(f"""v_and_b32 v8, 7, v2
        s_lshl_b32 s58, s41, 3
        v_add_u32 v9, s58, v8            ; G ids
        s_and_b32 s58, s40, 1
        s_lshl_b32 s58, s58, 6
        s_lshr_b32 s59, s40, 1
        s_add_u32 s58, s58, s59
        s_add_u32 s58, s58, 128
        v_lshl_add_u32 v8, v8, 3, s58
        v_cmp_gt_u32 vcc, 32, v2
        s_nop 1
        v_cndmask_b32 v8, v8, v9, vcc
        v_lshlrev_b32 v8, 5, v8""")
        spin(k, "pff", lambda: k("buffer_load_dword v28, v8, s[24:27], 0 offen sc1"), lambda: k("v_cmp_eq_u32 vcc, 0, v28"), sleep=4)
    def ld():
        for i in range(4): k(f"s_mov_b32 s58, {2048*i}\nbuffer_load_dword v{28+i}, v5, s[24:27], s58 offen sc1")
    def cm(): k("v_min3_u32 v28, v28, v29, v30\nv_min_u32 v28, v28, v31\nv_cmp_eq_u32 vcc, 0, v28")
    def gateKV():
        k("s_waitcnt vmcnt(0)")
        cm()
        k("s_nop 0\ns_cmp_eq_u64 vcc, 0\ns_cbranch_scc1 L_pkvd")
        spin(k, "pkv", ld, cm)
    main_body(k, gateQ, os.environ.get("FORCEFB") == "1", S0=7, kvgate=(ld, gateKV))
    k("L_f_exit:\ns_endpgm")
    return k, (256, 512, 163840)

H1ST = os.environ.get("H1ST", WT)
H2ST = os.environ.get("H2ST", WT)

from gen_main import k_main, main_body
from gen_back import spin

def build(path):
    ks = [k_front()] + ([] if ONE else [k_main(os.environ.get("FORCEFB") == "1")])
    nd = int(os.environ.get("DUMMY", "0"))
    if nd:
        d = Kern("dummy_kernel", 8); d("s_endpgm")
        ks_extra = [(d, (256, 64, 0))] * nd
    else: ks_extra = []
    hdr = ["; adaLN + MQA attention + SiLU MLP block, gfx950. Generated by gen/gen.py (hand-written generator)."]
    for k, (g, b, lds) in ks + ks_extra:
        if len(ks + ks_extra) == 1 and os.environ.get("PLAIN", "0") == "1": hdr.append(f"; @launch grid=({g},1,1) block=({b},1,1) lds={lds}")
        else: hdr.append(f"; @launch kernel={k.name} grid=({g},1,1) block=({b},1,1) lds={lds}")
    ks = ks + ks_extra[:1]
    out = "\n".join(hdr) + '\n.amdgcn_target "amdgcn-amd-amdhsa--gfx950"\n.text\n'
    bad = 0
    for k, _ in ks:
        errs, stats = check(k)
        print(f"{k.name}: maxv={stats[0]} maxs={stats[1]} ninstr={stats[3]}", file=sys.stderr)
        for e in errs: print("HAZARD", e, file=sys.stderr); bad += 1
        out += k.text()
    out += 'L_code_end:\n.section .rodata,"a"\n'
    for k, _ in ks: out += k.desc()
    open(path, "w").write(out)
    return bad

if __name__ == "__main__":
    p = sys.argv[1] if len(sys.argv) > 1 else f"cdna_kernels/{NAME}.s"
    sys.exit(1 if build(p) else 0)
```

```python
from gen_valu import gen
import sys
ITERS=40
T = {}
def body(order, acc):
    o = []
    R = (lambda i: f"v[{72+4*i}:{75+4*i}]") if acc == "v" else (lambda i: f"a[{4*i}:{4*i+3}]")
    if order == "kouter_nm":
        seq = [(ks, m, n) for ks in range(2) for n in range(4) for m in range(4)]
    elif order == "kinner":
        seq = [(ks, m, n) for n in range(4) for m in range(4) for ks in range(2)]
    elif order == "snake":
        seq = [(ks, (m if n % 2 == 0 else 3 - m), n) for ks in range(2) for n in range(4) for m in range(4)]
    for ks, m, n in seq:
        a = 8 + 16*ks + 4*m; b = 40 + 16*ks + 4*n
        o.append(f"  v_mfma_f32_16x16x32_bf16 {R(4*m+n)}, v[{b}:{b+3}], v[{a}:{a+3}], {R(4*m+n)}")
    return "\n".join(o + o[:16])
for order in ("kouter_nm", "kinner", "snake"):
    for acc in ("v", "a"):
        nm = f"{order}_{acc}"
        gen(f"pw2_{nm}.s", body(order, acc), 1, iters=ITERS, vgprs=136)
        if acc == "a":
            s = open(f"pw2_{nm}.s").read().replace(".amdhsa_next_free_vgpr 136", ".amdhsa_next_free_vgpr 200")
            s = s.replace("  s_barrier\n", "".join(f"  v_accvgpr_write_b32 a{i}, 0\n" for i in range(64)) + "  s_barrier\n", 1)
            open(f"pw2_{nm}.s", "w").write(s)
        T[nm] = 1
print(" ".join(T))
```
